```python
import torch

def _softmax(x, axis=-1):
    return torch.softmax(x, dim=axis)
def _gelu(x):
    return torch.nn.functional.gelu(x, approximate="tanh")
def _silu(x):
    return torch.nn.functional.silu(x)
def _sigmoid(x):
    return torch.sigmoid(x)
def _layernorm(x, axis=-1, eps=1e-5):
    m = x.mean(dim=axis, keepdim=True)
    v = x.var(dim=axis, keepdim=True, unbiased=False)
    return (x - m) / torch.sqrt(v + eps)
def _scatter_add(tgt, idx, src, axis=0):
    return tgt.clone().index_add_(axis, idx, src)
def _segment_sum(src, seg, n):
    out = torch.zeros((n,) + src.shape[1:], dtype=src.dtype)
    return out.index_add_(0, seg, src)
def _pad(x, pw):
    flat = tuple(v for pair in reversed(pw) for v in pair)
    return torch.nn.functional.pad(x, flat)

kernel_name = 'standalone__paged_block_table_kv_pagedattention__decode'

def setup_inputs():

    _w = (lambda a: (lambda t: t.to(torch.bfloat16) if t.is_floating_point() else t)(torch.as_tensor(a)))
    B, Hq, Hkv, Sq, Skv, D = 4, 32, 8, 1, 4096, 128
    bs = 16
    nbps = max(1, Skv // bs)
    num_phys = B * nbps + 4
    bt = torch.randperm(num_phys)[: B * nbps].reshape(B, nbps).to(torch.int64)
    cl = (nbps * bs - (torch.arange(1, B + 1, dtype=torch.int64) * 2654435761) % max(1, nbps * bs // 2)).to(torch.int64)
    return {
        "q": _w((lambda *s: torch.randn(*s, dtype=torch.bfloat16) * 0.8)(B, Hq, Sq, D)),
        "k_cache": _w((lambda *s: torch.randn(*s, dtype=torch.bfloat16) * 0.8)(num_phys, bs, Hkv, D)),
        "v_cache": _w((lambda *s: torch.randn(*s, dtype=torch.bfloat16) * 0.05)(num_phys, bs, Hkv, D)),
        "block_table": _w(bt),
        "context_lens": _w(cl),
    }

def reference(q, k_cache, v_cache, block_table, context_lens):
    B, Hq, Sq, D = q.shape
    bs = k_cache.shape[1]
    Hkv = k_cache.shape[2]
    nbps = block_table.shape[1]
    Skv = nbps * bs
    bt = block_table.reshape(-1)
    k = (lambda x, *d: x.permute(*d))(k_cache[bt].reshape(B, Skv, Hkv, D), 0, 2, 1, 3)
    v = (lambda x, *d: x.permute(*d))(v_cache[bt].reshape(B, Skv, Hkv, D), 0, 2, 1, 3)
    g = Hq // Hkv
    qg = q.reshape(B, Hkv, g, Sq, D)
    scores = torch.einsum("bhgqd,bhkd->bhgqk", qg, k) * (D ** -0.5)
    pos = torch.arange(Skv)
    msk = pos[None, :] < context_lens[:, None]
    scores = torch.where(msk[:, None, None, None, :], scores, -1e9)
    p = _softmax(scores, axis=-1)
    out = torch.einsum("bhgqk,bhkd->bhgqd", p, v)
    return out.reshape(B, Hq, Sq, D)
```

```python
import sys, argparse, math, struct

NAME = "standalone__paged_block_table_kv_pagedattention__decode"
HDR = """; Kernarg layout for this problem (64 bytes, ptrs only, base s[0:1]):
"""

def f32bits(x):
    return struct.unpack("<I", struct.pack("<f", x))[0]

class G:
    def __init__(self):
        self.l = []
    def __call__(self, s):
        for ln in s.strip("\n").split("\n"):
            self.l.append("    " + ln.strip() if not ln.strip().endswith(":") else ln.strip())
    def text(self):
        return "\n".join(self.l) + "\n"

def gen(a):
    NW, NB = a.nw, 32 // a.nw
    nt = " nt" if a.nt else ""
    g = G()
    KVSIZE = 1028 * 32768
    C = (128 ** -0.5) * math.log2(math.e)
    NEG = 0xDF800000
    vK, vV, vQo, vL4, vML, vT4, vNEG, vWS, vOUT, vTK, vMX, vLS, vX = [f"v{i}" for i in range(1, 14)]
    Q = 16; ACC = 20; PA = 28; T = 36; S = 52
    KB = S + 4 * NB
    VB = KB + 16 * NB
    NV = VB + 16 * NB
    def vr(b, n=4): return f"v[{b}:{b+n-1}]"
    sBLK = 32
    sCL, sNBLK, sC, sPL, sPH, sJ0, sW, sTMP = 40, 41, 42, 43, 44, 45, 46, 47
    sM = 48
    sSIB = 56
    sST = 64
    nst = [0]
    def stamp():
        if a.stamps:
            k = nst[0]; nst[0] += 1
            g(f"s_memrealtime s[{sST+2*k}:{sST+2*k+1}]")
    stamp()
    g(f"""
    s_load_dwordx2 s[8:9], s[0:1], 8
    s_load_dwordx2 s[12:13], s[0:1], 16
    s_load_dwordx4 s[16:19], s[0:1], 24
    s_load_dwordx2 s[4:5], s[0:1], 0
    s_load_dwordx4 s[20:23], s[0:1], 40
    s_load_dwordx2 s[24:25], s[0:1], 56
    s_cmp_ge_u32 s2, 256
    s_cbranch_scc1 L_end
    v_readfirstlane_b32 s3, v0
    s_mov_b32 s11, 0x20000
    s_mov_b32 s15, 0x20000
    s_mov_b32 s26, 0x100000
    s_mov_b32 s27, 0x20000
    s_lshr_b32 s{sW}, s3, 6
    """)
    if a.map == 0:
        g(f"""
        s_and_b32 s29, s2, 7
        s_bfe_u32 s30, s2, 0x30003
        s_lshr_b32 s31, s2, 6
        s_mov_b32 s28, s2
        """)
    else:
        g(f"""
        s_and_b32 s30, s2, 7
        s_bfe_u32 s29, s2, 0x30003
        s_lshr_b32 s31, s2, 6
        s_andn2_b32 s28, s2, 63
        s_lshl_b32 s3, s30, 3
        s_or_b32 s28, s28, s3
        s_or_b32 s28, s28, s29
        """)
    g(f"""
    s_lshl_b32 s{sJ0}, s{sW}, 3
    s_add_u32 s{sJ0}, s{sJ0}, s29
    s_lshl_b32 s{sTMP}, s31, 8
    s_add_u32 s{sTMP}, s{sTMP}, s{sJ0}
    s_lshl_b32 s{sTMP}, s{sTMP}, 2
    s_lshl_b32 s31, s31, 2
    s_lshl_b32 s30, s30, 8
    s_lshr_b32 s6, s28, 3
    s_lshl_b32 s7, s6, 10
    v_and_b32 v14, 63, v0
    v_and_b32 v15, 3, v0
    v_lshrrev_b32 {vT4}, 4, v14
    v_bfe_u32 {vX}, v0, 2, 2
    v_lshlrev_b32 {vK}, 4, v15
    v_lshl_add_u32 {vK}, {vT4}, 6, {vK}
    v_lshl_add_u32 {vK}, {vX}, 13, {vK}
    v_add_u32 {vK}, s30, {vK}
    v_and_b32 {vX}, 15, v0
    v_lshlrev_b32 {vV}, 4, {vX}
    v_lshl_add_u32 {vV}, {vT4}, 13, {vV}
    v_add_u32 {vV}, s30, {vV}
    v_lshl_add_u32 {vOUT}, {vX}, 2, {vT4}
    v_lshlrev_b32 {vOUT}, 2, {vOUT}
    v_lshrrev_b32 {vQo}, 2, v14
    v_lshlrev_b32 {vQo}, 4, {vQo}
    v_lshl_add_u32 {vQo}, v15, 8, {vQo}
    v_add_u32 {vQo}, s7, {vQo}
    v_lshlrev_b32 {vL4}, 2, v14
    v_lshlrev_b32 {vML}, 3, v15
    v_add_u32 {vML}, 0x800, {vML}
    v_lshlrev_b32 {vT4}, 2, {vT4}
    v_mov_b32 {vNEG}, 0x{NEG:08x}
    v_lshlrev_b32 {vWS}, 4, v0
    v_mov_b32 {vLS}, 0
    """)
    for i in range(8):
        g(f"v_mov_b32 v{ACC+i}, 0")
    for i in range(8):
        g(f"v_mov_b32 v{PA+i}, 0")
    for i in range(4):
        g(f"v_mov_b32 v{T+i}, -1")
    g(f"""
    v_mov_b32 v{T+4}, {vNEG}
    v_mov_b32 v{T+5}, 0
    v_lshlrev_b32 v14, 4, v14
    s_lshl_b32 s3, s28, 12
    s_waitcnt lgkmcnt(0)
    """)
    stamp()
    for u in range(NB):
        off = 32 * NW * u
        g(f"s_load_dword s{sBLK+u}, s[16:17], s{sTMP}" + (f" offset:{off}" if off else ""))
    g(f"""
    s_load_dword s{sCL}, s[18:19], s31
    s_cmp_ge_u32 s{sW}, 4
    s_cbranch_scc1 L_noclear
    buffer_store_dwordx4 {vr(T)}, {vWS}, s[24:27], s3 offen sc1
L_noclear:
    global_load_dwordx4 {vr(Q)}, {vQo}, s[4:5]
    ds_write_b128 v14, {vr(ACC)}
    ds_write_b128 v14, {vr(ACC)} offset:1024
    ds_write_b64 {vML}, v[{T+4}:{T+5}]
    s_mov_b32 s{sC}, 0x{f32bits(C):08x}
    s_mov_b32 s{sPL}, 0x05040100
    s_mov_b32 s{sPH}, 0x07060302
    s_waitcnt lgkmcnt(0)
    """)
    stamp()
    g(f"""
    s_add_i32 s{sNBLK}, s{sCL}, 15
    s_ashr_i32 s{sNBLK}, s{sNBLK}, 4
    s_min_i32 s{sNBLK}, s{sNBLK}, 256
    s_cmp_le_i32 s{sCL}, 0
    s_cselect_b32 s{sNBLK}, 256, s{sNBLK}
    s_sub_i32 s{sNBLK}, s{sNBLK}, s{sJ0}
    """)
    def loads(srd, voff, base):
        for u in range(NB):
            g(f"""
            s_cmp_gt_i32 s{sNBLK}, {8*NW*u}
            s_cselect_b32 s{srd+2}, 0x{KVSIZE:x}, 0
            """)
            if srd == 8:
                g(f"s_lshl_b32 s{sBLK+u}, s{sBLK+u}, 15")
            g(f"s_add_u32 s{sTMP}, s{sBLK+u}, 0x1000")
            for e in range(4):
                so = f"s{sBLK+u}" if e < 2 else f"s{sTMP}"
                io = " offset:2048" if e & 1 else ""
                g(f"buffer_load_dwordx4 {vr(base+16*u+4*e)}, {voff}, s[{srd}:{srd+3}], {so} offen{io}{nt}")
    loads(8, vK, KB)
    stamp()
    if a.barv:
        g("s_barrier")
    loads(12, vV, VB)
    if not a.barv:
        g("s_barrier")
    stamp()
    g(f"s_andn2_b32 s6, s28, 7")
    for k in range(1, 8):
        g(f"""
        s_add_u32 s{sTMP}, s28, {k}
        s_and_b32 s{sTMP}, s{sTMP}, 7
        s_or_b32 s{sTMP}, s{sTMP}, s6
        s_lshl_b32 s{sSIB+k-1}, s{sTMP}, 12
        """)
    g(f"""
    s_lshl_b32 s{sJ0}, s{sJ0}, 4
    s_sub_i32 s{sCL}, s{sCL}, s{sJ0}
    """)
    def Dreg(u): return T if u == 0 else KB + 16 * (u - 1)
    def reduce(u):
        D = Dreg(u)
        for e in range(4):
            g(f"v_add_f32_dpp v{S+4*u+e}, v{D+4*e+1}, v{D+4*e} row_shl:4 row_mask:0xf bank_mask:0x1")
        for e in range(4):
            g(f"v_add_f32_dpp v{S+4*u+e}, v{D+4*e+3}, v{D+4*e+2} row_shl:4 row_mask:0xf bank_mask:0x4")
        g(f"s_sub_i32 s{sTMP}, s{sCL}, {16*8*NW*u}")
        g(f"v_subrev_u32 {vX}, s{sTMP}, {vT4}")
        for e in range(4):
            g(f"v_add_f32_dpp v{S+4*u+e}, v{S+4*u+e}, v{S+4*u+e} row_ror:8 row_mask:0xf bank_mask:0xf")
        for e in range(4):
            g(f"v_cmp_gt_i32_e64 s[{sM+2*e}:{sM+2*e+1}], {-e}, {vX}")
        for e in range(4):
            if e == 0: g("s_nop 0")
            g(f"v_cndmask_b32_e64 v{S+4*u+e}, {vNEG}, v{S+4*u+e}, s[{sM+2*e}:{sM+2*e+1}]")
        if u == 0:
            g(f"v_max3_f32 {vMX}, v{S}, v{S+1}, v{S+2}")
            g(f"v_max_f32 {vMX}, {vMX}, v{S+3}")
        else:
            g(f"v_max3_f32 {vMX}, {vMX}, v{S+4*u}, v{S+4*u+1}")
            g(f"v_max3_f32 {vMX}, {vMX}, v{S+4*u+2}, v{S+4*u+3}")
    for u in range(NB):
        g(f"s_waitcnt vmcnt({4*(NB-1-u)+4*NB})")
        if u == NB - 1: stamp()
        for e in range(4):
            g(f"v_mfma_f32_16x16x32_bf16 {vr(Dreg(u)+4*e)}, {vr(KB+16*u+4*e)}, {vr(Q)}, 0")
        if u > 0:
            reduce(u - 1)
    g(f"""
    s_cmp_ge_u32 s{sW}, 4
    s_cbranch_scc1 L_noticket
    s_lshl_b32 s{sTMP}, s{sW}, 3
    s_lshl_b32 s{sTMP}, 1, s{sTMP}
    v_mov_b32 v14, s{sTMP}
    s_lshr_b32 s{sTMP}, s28, 3
    s_lshl_b32 s{sTMP}, s{sTMP}, 2
    v_mov_b32 v15, s{sTMP}
    s_mov_b64 exec, 1
    global_atomic_add {vTK}, v15, v14, s[22:23] sc0 sc1
    s_mov_b64 exec, -1
L_noticket:
    s_nop 7
    """)
    reduce(NB - 1)
    g(f"""
    s_mov_b32 exec_lo, 0x000f000f
    s_mov_b32 exec_hi, 0x000f000f
    ds_max_f32 {vML}, {vMX}
    s_mov_b64 exec, -1
    s_waitcnt lgkmcnt(0)
    s_barrier
    ds_read_b32 {vMX}, {vML}
    s_waitcnt lgkmcnt(0)
    """)
    stamp()
    g(f"v_mul_f32 {vMX}, s{sC}, {vMX}")
    for i in range(4 * NB):
        g(f"v_fma_f32 v{S+i}, v{S+i}, s{sC}, -{vMX}")
    for i in range(4 * NB):
        g(f"v_exp_f32 v{S+i}, v{S+i}")
    g("s_nop 0")
    for i in range(4 * NB):
        g(f"v_add_f32 {vLS}, {vLS}, v{S+i}")
    for u in range(NB):
        g(f"v_cvt_pk_bf16_f32 v{S+4*u}, v{S+4*u}, v{S+4*u+1}")
        g(f"v_cvt_pk_bf16_f32 v{S+4*u+1}, v{S+4*u+2}, v{S+4*u+3}")
    g(f"""
    s_mov_b32 exec_lo, 0x000f000f
    s_mov_b32 exec_hi, 0x000f000f
    ds_add_f32 {vML}, {vLS} offset:4
    s_mov_b64 exec, -1
    """)
    for u in range(NB):
        for x in range(2):
            src = f"v{S+4*u+x}"
            g(f"""
            v_mov_b32_dpp v{PA+0+x}, {src} quad_perm:[0,1,2,3] row_mask:0xf bank_mask:0x1
            v_mov_b32_dpp v{PA+2+x}, {src} row_shr:4 row_mask:0xf bank_mask:0x2
            v_mov_b32_dpp v{PA+4+x}, {src} quad_perm:[0,1,2,3] row_mask:0xf bank_mask:0x4
            v_mov_b32_dpp v{PA+6+x}, {src} row_shr:4 row_mask:0xf bank_mask:0x8
            """)
        g(f"s_waitcnt vmcnt({4*(NB-1-u)})")
        if u == NB - 1: stamp()
        V = VB + 16 * u
        for i in range(8):
            m = i >> 1
            sel = sPL if (i & 1) == 0 else sPH
            g(f"v_perm_b32 v{T+2*i}, v{V+4+m}, v{V+m}, s{sel}")
            g(f"v_perm_b32 v{T+2*i+1}, v{V+12+m}, v{V+8+m}, s{sel}")
        g("s_nop 1")
        for i in range(8):
            aa, uu = i >> 1, i & 1
            g(f"v_mfma_f32_16x16x16_bf16 {vr(ACC+4*uu)}, v[{PA+2*aa}:{PA+2*aa+1}], v[{T+2*i}:{T+2*i+1}], {vr(ACC+4*uu)}")
    g("s_nop 7")
    for uu in range(2):
        for r in range(4):
            off = (r * 128 + uu * 64) * 4
            g(f"ds_add_f32 {vL4}, v{ACC+4*uu+r}" + (f" offset:{off}" if off else ""))
    g(f"""
    s_waitcnt lgkmcnt(0)
    s_barrier
    """)
    stamp()
    E = KB
    g(f"""
    s_cmp_ge_u32 s{sW}, 4
    s_cbranch_scc1 L_fin
    s_lshl_b32 s{sTMP}, s{sW}, 9
    v_add_u32 {vL4}, s{sTMP}, {vL4}
    s_lshl_b32 s{sTMP}, s{sW}, 3
    v_mov_b32 v14, s{sTMP}
    ds_read2_b32 v[{E}:{E+1}], {vL4} offset0:0 offset1:64
    ds_read_b64 v[{E+2}:{E+3}], v14 offset:2048
    v_readfirstlane_b32 s6, {vTK}
    s_lshr_b32 s6, s6, s{sTMP}
    s_and_b32 s6, s6, 0xff
    s_cmp_eq_u32 s6, 7
    s_cbranch_scc1 L_consumer
    s_waitcnt lgkmcnt(0)
    v_mul_f32 v{E+2}, s{sC}, v{E+2}
    v_min_u32 v{E}, -2, v{E}
    v_min_u32 v{E+1}, -2, v{E+1}
    v_min_u32 v{E+3}, -2, v{E+3}
    v_min_u32 v{E+2}, -2, v{E+2}
    buffer_store_dwordx4 {vr(E)}, {vWS}, s[24:27], s3 offen sc1
    s_branch L_fin
L_consumer:
    s_mov_b32 s6, 0x20000
L_poll:
    """)
    for k in range(1, 8):
        g(f"buffer_load_dwordx4 {vr(E+4*k)}, {vWS}, s[24:27], s{sSIB+k-1} offen sc1")
    g("s_waitcnt vmcnt(0)")
    g(f"v_max3_u32 v14, v{E+4}, v{E+5}, v{E+6}")
    g(f"v_max_u32 v14, v14, v{E+7}")
    for r in range(E + 8, E + 32, 2):
        g(f"v_max3_u32 v14, v14, v{r}, v{r+1}")
    g(f"""
    v_cmp_eq_u32 vcc, -1, v14
    s_cbranch_vccz L_got
    s_sub_u32 s6, s6, 1
    s_cbranch_scc0 L_poll
L_got:
    s_waitcnt lgkmcnt(0)
    v_mul_f32 v{E+2}, s{sC}, v{E+2}
    v_max3_f32 v14, v{E+6}, v{E+10}, v{E+14}
    v_max3_f32 v15, v{E+18}, v{E+22}, v{E+26}
    v_max3_f32 v14, v14, v{E+30}, v{E+2}
    v_max_f32 v14, v14, v15
    """)
    for k in range(8):
        g(f"v_sub_f32 v{E+4*k+2}, v{E+4*k+2}, v14")
    for k in range(8):
        g(f"v_exp_f32 v{E+4*k+2}, v{E+4*k+2}")
    g(f"""
    v_mul_f32 v{E+3}, v{E+2}, v{E+3}
    v_mul_f32 v{E}, v{E+2}, v{E}
    v_mul_f32 v{E+1}, v{E+2}, v{E+1}
    """)
    for k in range(1, 8):
        g(f"v_fmac_f32 v{E+3}, v{E+4*k+2}, v{E+4*k+3}")
    g(f"v_rcp_f32 v{E+3}, v{E+3}")
    for k in range(1, 8):
        g(f"v_fmac_f32 v{E}, v{E+4*k+2}, v{E+4*k}")
        g(f"v_fmac_f32 v{E+1}, v{E+4*k+2}, v{E+4*k+1}")
    g(f"""
    s_lshl_b32 s{sTMP}, s{sW}, 8
    s_add_u32 s7, s7, s{sTMP}
    v_add_u32 {vOUT}, s7, {vOUT}
    v_mul_f32 v{E}, v{E}, v{E+3}
    v_mul_f32 v{E+1}, v{E+1}, v{E+3}
    v_cvt_pk_bf16_f32 v{E}, v{E}, v{E+1}
    global_store_dword {vOUT}, v{E}, s[20:21]
L_fin:
    """)
    if a.stamps:
        stamp()
        n = nst[0]
        g(f"""
        s_waitcnt lgkmcnt(0)
        s_lshl_b32 s6, s2, 4
        s_add_u32 s6, s6, s{sW}
        s_lshl_b32 s6, s6, 7
        s_add_u32 s6, s6, 0x1000000
        v_mov_b32 v14, s6
        s_getreg_b32 s6, hwreg(HW_REG_XCC_ID)
        s_getreg_b32 s7, hwreg(HW_REG_HW_ID)
        s_mov_b64 exec, 1
        """)
        for k in range(n):
            g(f"v_mov_b32 v15, s{sST+2*k}")
            g(f"global_store_dword v14, v15, s[24:25] offset:{4*k}")
        g(f"""
        v_mov_b32 v15, s6
        global_store_dword v14, v15, s[24:25] offset:120
        v_mov_b32 v15, s7
        global_store_dword v14, v15, s[24:25] offset:124
        """)
    g("L_end:")
    g("s_endpgm")
    nsg = 102 if a.stamps else 64
    nv = max(NV, {16: 72, 8: 136, 4: 264}[NW] if a.full else 0)
    acc = (nv + 3) // 4 * 4
    out = HDR + f"; @launch grid=(256,1,1) block=({64*NW},1,1) lds=2112\n"
    out += f""".amdgcn_target "amdgcn-amd-amdhsa--gfx950"
.text
.globl {NAME}_kernel
.p2align 8
.type {NAME}_kernel,@function
{NAME}_kernel:
""" + g.text() + f""".section .rodata,"a"
.p2align 6
.amdhsa_kernel {NAME}_kernel
  .amdhsa_next_free_vgpr {nv}
  .amdhsa_next_free_sgpr {nsg}
  .amdhsa_accum_offset {acc}
  .amdhsa_group_segment_fixed_size 0
  .amdhsa_kernarg_size 64
  .amdhsa_user_sgpr_count 2
  .amdhsa_user_sgpr_kernarg_segment_ptr 1
  .amdhsa_system_sgpr_workgroup_id_x 1
.end_amdhsa_kernel
"""
    return out

if __name__ == "__main__":
    p = argparse.ArgumentParser()
    p.add_argument("--nw", type=int, default=16)
    p.add_argument("--nt", type=int, default=0)
    p.add_argument("--map", type=int, default=0)
    p.add_argument("--barv", type=int, default=1)
    p.add_argument("--stamps", type=int, default=0)
    p.add_argument("--full", type=int, default=1)
    p.add_argument("-o", default="-")
    a = p.parse_args()
    t = gen(a)
    if a.o == "-": sys.stdout.write(t)
    else: open(a.o, "w").write(t)
```

```python
import sys, argparse, math, struct
from gen import NAME, HDR, f32bits, G

def gen(a):
    g = G()
    NW = 8
    CH = a.ch
    KVSIZE = 1028 * 32768
    C = (128 ** -0.5) * math.log2(math.e)
    NEG = 0xCE800000
    TBL = 131072
    LDS = TBL + 5376
    snt = " nt" if a.snt else ""
    sI, sJ, sHP, sH256 = 28, 29, 30, 31
    sB, sCB, sNB, sREM, sNU, sNXT, sKM, sVM, sSO, sC, sT0, sT1, sOWN, sK0, sFLD, sSPIN, sX0, sX1, sQO = range(32, 51)
    sM = 52
    sSIB = 60
    sST = 84
    nst = [0]
    def stamp(cond=True):
        if a.stamps and cond:
            k = nst[0]; nst[0] += 1
            assert sST + 2 * k + 1 <= 101
            g(f"s_memrealtime s[{sST+2*k}:{sST+2*k+1}]")
    vL, vT0, vT1, vT2, vT3, vT4, vT5, vSO, vWS, vOUT, vTK, vM, vMC, vAL, vNEG, vT4q = range(1, 17)
    vSW, vSR = 17, 18
    ACC = 20
    LA = 28
    ML = 32
    KF = 36
    E = 52
    KD, VD, KR, VR = 56, 60, 64, 68
    Q = 76
    PA = 92
    PK = 100
    ONE = 102
    S = 104
    VF = 108
    NV = max(E + 4 * (CH + 1), VF + 16)
    FLG = TBL + 5376 - 16
    def v(i): return f"v{i}"
    def vr(b, n=4): return f"v[{b}:{b+n-1}]"
    stamp()
    g(f"""
    s_load_dwordx4 s[16:19], s[0:1], 24
    s_load_dwordx2 s[24:25], s[0:1], 56
    s_load_dwordx2 s[8:9], s[0:1], 8
    s_load_dwordx2 s[12:13], s[0:1], 16
    s_load_dwordx2 s[4:5], s[0:1], 0
    s_load_dwordx4 s[20:23], s[0:1], 40
    s_cmp_ge_u32 s2, 256
    s_cbranch_scc1 L_end
    v_readfirstlane_b32 s3, v0
    v_and_b32 {v(vL)}, 63, v0
    v_and_b32 {v(vT0)}, 3, v0
    v_lshlrev_b32 {v(vT0)}, 2, {v(vT0)}
    v_lshlrev_b32 {v(vWS)}, 4, v0
    v_and_b32 {v(vT1)}, 0xfff, {v(vWS)}
    s_lshr_b32 s{sI}, s3, 6
    s_lshl_b32 s3, s3, 4
    s_and_b32 s3, s3, 0xfff
    s_add_u32 s3, s3, {TBL}
    s_mov_b32 m0, s3
    s_mov_b32 s10, 0x{KVSIZE:x}
    s_mov_b32 s11, 0x20000
    s_mov_b32 s14, 0x{KVSIZE:x}
    s_mov_b32 s15, 0x20000
    s_mov_b32 s26, 0x200000
    s_mov_b32 s27, 0x20000
    """)
    if a.map == 0:
        g(f"""
        s_and_b32 s{sHP}, s2, 3
        s_lshr_b32 s{sJ}, s2, 2
        """)
    else:
        g(f"""
        s_lshr_b32 s{sHP}, s2, 6
        s_and_b32 s{sJ}, s2, 63
        """)
    g(f"""
    s_lshl_b32 s{sOWN}, s{sHP}, 6
    s_add_u32 s{sOWN}, s{sOWN}, s{sJ}
    s_lshl_b32 s{sOWN}, s{sOWN}, 13
    v_mov_b32 v{E}, -1
    v_mov_b32 v{E+1}, -1
    v_mov_b32 v{E+2}, -1
    v_mov_b32 v{E+3}, -1
    s_and_b32 s{sT0}, s{sI}, 1
    s_lshl_b32 s{sH256}, s{sHP}, 1
    s_add_u32 s{sH256}, s{sH256}, s{sT0}
    s_lshl_b32 s{sH256}, s{sH256}, 8
    s_lshl_b32 s{sKM}, s{sI}, 14
    s_add_u32 s{sVM}, s{sKM}, 0x2000
    v_lshrrev_b32 {v(vT4q)}, 4, {v(vL)}
    v_and_b32 {v(vT2)}, 15, v0
    s_waitcnt lgkmcnt(0)
    """)
    stamp()
    g(f"""
    global_load_dword {v(vT0)}, {v(vT0)}, s[18:19]{snt}
    s_cmp_eq_u32 s{sI}, 8
    s_cbranch_scc1 L_svc1
    global_load_lds_dwordx4 {v(vT1)}, s[16:17]{snt}
L_svc1back:
    v_xor_b32 {v(vT3)}, {v(vT2)}, {v(vT4q)}
    v_lshlrev_b32 {v(vT3)}, 4, {v(vT3)}
    v_lshl_add_u32 v{KR}, {v(vT2)}, 8, {v(vT3)}
    v_add_u32 v{KR}, s{sKM}, v{KR}
    v_lshl_add_u32 v{KD}, {v(vT4q)}, 11, {v(vT3)}
    v_add_u32 v{KD}, s{sH256}, v{KD}
    v_lshlrev_b32 {v(vT3)}, 1, {v(vT4q)}
    v_xor_b32 {v(vT3)}, {v(vT2)}, {v(vT3)}
    v_lshlrev_b32 {v(vT3)}, 4, {v(vT3)}
    v_lshl_add_u32 v{VD}, {v(vT4q)}, 11, {v(vT3)}
    v_add_u32 v{VD}, s{sH256}, v{VD}
    """)
    for e in range(1, 4):
        g(f"""
        v_xor_b32 v{KR+e}, {e<<6}, v{KR}
        v_xor_b32 v{KD+e}, {e<<6}, v{KD}
        v_add_u32 v{KD+e}, {e*7168}, v{KD+e}
        """)
    if a.noswz:
        g(f"""
        v_lshlrev_b32 {v(vT3)}, 4, {v(vT2)}
        v_lshl_add_u32 v{KD}, {v(vT4q)}, 11, {v(vT3)}
        v_add_u32 v{KD}, s{sH256}, v{KD}
        v_add_u32 v{KD+1}, 7168, v{KD}
        v_add_u32 v{KD+2}, 2*7168, v{KD}
        v_add_u32 v{KD+3}, 3*7168, v{KD}
        v_mov_b32 v{VD}, v{KD}
        """)
    g(f"""
    v_xor_b32 v{VD+1}, {0 if a.noswz else 0x80}, v{VD}
    v_add_u32 v{VD+2}, {2*7168}, v{VD}
    v_add_u32 v{VD+3}, {3*7168}, v{VD+1}
    v_add_u32 v{VD+1}, 7168, v{VD+1}
    v_add_u32 {v(vT5)}, 1, {v(vL)}
    s_mov_b32 s{sT1}, 0x42700000
    s_waitcnt vmcnt(1)
    """)
    stamp()
    cl, nb, pf, cn, cb, x0, x1 = vT0, vT1, vT3, vSO, vTK, vM, vMC
    fq, n_, k_ = vAL, vNEG, vOUT
    g(f"""
    v_add_u32 {v(nb)}, -1, {v(cl)}
    v_ashrrev_i32 {v(nb)}, 4, {v(nb)}
    v_min_u32 {v(nb)}, 0xff, {v(nb)}
    v_add_u32 {v(nb)}, 1, {v(nb)}
    s_nop 1
    v_add_u32_dpp {v(pf)}, {v(nb)}, {v(nb)} row_shr:1 row_mask:0xf bank_mask:0xf bound_ctrl:0
    v_lshlrev_b32 {v(nb)}, 1, {v(nb)}
    v_cvt_f32_u32 {v(fq)}, {v(nb)}
    v_add_u32_dpp {v(pf)}, {v(pf)}, {v(pf)} row_shr:2 row_mask:0xf bank_mask:0xf bound_ctrl:0
    s_nop 1
    v_cvt_f32_u32_dpp {v(cn)}, {v(pf)} quad_perm:[3,3,3,3] row_mask:0xf bank_mask:0xf
    v_cvt_f32_u32 {v(pf)}, {v(pf)}
    v_rcp_f32 {v(cn)}, {v(cn)}
    v_mul_f32 {v(pf)}, s{sT1}, {v(pf)}
    v_fma_f32 {v(cn)}, {v(pf)}, {v(cn)}, 0.5
    v_cvt_u32_f32 {v(cn)}, {v(cn)}
    v_add_u32 {v(cn)}, {v(cn)}, {v(vT5)}
    v_cmp_ge_u32 vcc, s{sJ}, {v(cn)}
    s_nop 0
    v_mov_b32_dpp {v(cb)}, {v(cn)} row_shr:1 row_mask:0xf bank_mask:0xf bound_ctrl:0
    s_and_b32 s{sB}, vcc_lo, 7
    v_sub_u32 {v(n_)}, {v(cn)}, {v(cb)}
    v_sub_u32 {v(k_)}, s{sJ}, {v(cb)}
    v_cvt_f32_u32 {v(x0)}, {v(n_)}
    v_rcp_f32 {v(x0)}, {v(x0)}
    v_add_u32 {v(pf)}, 1, {v(k_)}
    v_mul_f32 {v(fq)}, {v(fq)}, {v(x0)}
    v_cvt_f32_u32 {v(x0)}, {v(k_)}
    v_cvt_f32_u32 {v(x1)}, {v(pf)}
    v_cmp_eq_u32 vcc, {v(pf)}, {v(n_)}
    v_mul_f32 {v(x0)}, {v(x0)}, {v(fq)}
    v_mul_f32 {v(x1)}, {v(x1)}, {v(fq)}
    v_cvt_u32_f32 {v(x0)}, {v(x0)}
    v_cvt_u32_f32 {v(x1)}, {v(x1)}
    s_bcnt1_i32_b32 s{sB}, s{sB}
    v_cndmask_b32 {v(x1)}, {v(x1)}, {v(nb)}, vcc
    v_readlane_b32 s{sX0}, {v(x0)}, s{sB}
    v_readlane_b32 s{sREM}, {v(cl)}, s{sB}
    v_readlane_b32 s{sX1}, {v(x1)}, s{sB}
    v_readlane_b32 s{sCB}, {v(cb)}, s{sB}
    v_readlane_b32 s{sNB}, {v(n_)}, s{sB}
    s_cmp_eq_u32 s{sI}, 8
    s_cbranch_scc1 L_svc2
    s_xor_b32 s{sT0}, s{sX0}, s{sI}
    s_and_b32 s{sT0}, s{sT0}, 1
    s_add_u32 s{sX0}, s{sX0}, s{sT0}
    s_andn2_b32 s{sT0}, s{sI}, 1
    s_add_u32 s{sX0}, s{sX0}, s{sT0}
    s_sub_i32 s{sNU}, s{sX1}, s{sX0}
    s_lshr_b32 s{sX0}, s{sX0}, 1
    s_lshl_b32 s{sT0}, s{sB}, 8
    s_add_u32 s{sT0}, s{sT0}, s{sX0}
    s_lshl_b32 s{sT0}, s{sT0}, 2
    s_add_u32 s{sT0}, s{sT0}, {TBL}
    v_lshl_add_u32 {v(vT0)}, {v(vL)}, 4, s{sT0}
    s_waitcnt vmcnt(0)
    s_barrier
    ds_read_b32 {v(vSO)}, {v(vT0)}
    s_add_i32 s{sNU}, s{sNU}, 7
    s_ashr_i32 s{sNU}, s{sNU}, 3
    s_lshl_b32 s{sX0}, s{sX0}, 4
    s_sub_i32 s{sREM}, s{sREM}, s{sX0}
    s_lshl_b32 s{sQO}, s{sB}, 13
    s_lshl_b32 s{sT0}, s{sH256}, 2
    s_add_u32 s{sQO}, s{sQO}, s{sT0}
    v_and_b32 {v(vT1)}, 3, v0
    v_lshlrev_b32 {v(vT3)}, 4, {v(vT4q)}
    v_lshl_add_u32 {v(vT3)}, {v(vT1)}, 8, {v(vT3)}
    v_add_u32 {v(vT3)}, s{sQO}, {v(vT3)}
    s_mov_b32 m0, s{sKM}
    s_cmp_lt_i32 s{sNU}, 1
    s_cbranch_scc1 L_issued
    s_waitcnt lgkmcnt(0)
    v_lshlrev_b32 {v(vSO)}, 15, {v(vSO)}
    s_nop 0
    v_readlane_b32 s{sSO}, {v(vSO)}, 0
    v_readlane_b32 s{sT1}, {v(vSO)}, 1
    s_nop 3
    """)
    stamp()
    def dma(srd, offs, so):
        for e in range(4):
            io = f" offset:{e*1024}" if e else ""
            g(f"buffer_load_dwordx4 v{offs+e}, s[{srd}:{srd+3}], s{so} offen{io} nt lds")
    dma(8, KD, sSO)
    for jj in range(4):
        g(f"global_load_dwordx4 {vr(Q+4*jj)}, {v(vT3)}, s[4:5]" + (f" offset:{64*jj}" if jj else "") + snt)
    g(f"s_mov_b32 m0, s{sVM}")
    g(f"s_nop 0")
    dma(12, VD, sSO)
    g(f"""
    s_cmp_lt_i32 s{sNU}, 2
    s_cbranch_scc1 L_issued
    s_add_u32 s{sT0}, s{sKM}, 0x1000
    s_mov_b32 m0, s{sT0}
    s_add_u32 s{sT0}, s{sVM}, 0x1000
    """)
    dma(8, KD, sT1)
    g(f"s_mov_b32 m0, s{sT0}")
    g(f"s_nop 0")
    dma(12, VD, sT1)
    g("L_issued:")
    stamp()
    g(f"""
    v_lshrrev_b32 {v(vT0)}, 2, {v(vT2)}
    v_lshl_add_u32 {v(vT0)}, {v(vT4q)}, 2, {v(vT0)}
    v_and_b32 {v(vT3)}, 7, {v(vT0)}
    v_lshlrev_b32 {v(vT3)}, 5, {v(vT3)}
    v_lshl_add_u32 {v(vT3)}, {v(vT0)}, 8, {v(vT3)}
    v_lshl_add_u32 {v(vT3)}, {v(vT1)}, 3, {v(vT3)}
    v_add_u32 v{VR}, s{sVM}, {v(vT3)}
    """)
    for i in range(1, 8):
        g(f"v_xor_b32 v{VR+i}, {i<<5}, v{VR}")
    g(f"""
    v_bfe_u32 {v(vT0)}, v0, 2, 2
    v_lshlrev_b32 {v(vOUT)}, 8, {v(vT1)}
    v_lshl_add_u32 {v(vOUT)}, {v(vT0)}, 6, {v(vOUT)}
    v_lshl_add_u32 {v(vOUT)}, {v(vT4q)}, 3, {v(vOUT)}
    s_bfe_u32 s{sT0}, s{sI}, 0x10002
    s_lshl_b32 s{sT0}, s{sT0}, 5
    s_add_u32 s{sQO}, s{sQO}, s{sT0}
    s_and_b32 s{sT0}, s{sI}, 2
    s_lshl_b32 s{sT0}, s{sT0}, 1
    s_add_u32 s{sQO}, s{sQO}, s{sT0}
    v_add_u32 {v(vOUT)}, s{sQO}, {v(vOUT)}
    v_lshlrev_b32 {v(vT4q)}, 2, {v(vT4q)}
    v_lshl_add_u32 v{vSW}, {v(vL)}, 4, s{sKM}
    s_and_b32 s{sT0}, s{sI}, 1
    s_lshl_b32 s{sT0}, s{sT0}, 14
    s_lshr_b32 s{sT1}, s{sI}, 1
    s_lshl_b32 s{sT1}, s{sT1}, 10
    s_add_u32 s{sT0}, s{sT0}, s{sT1}
    v_lshl_add_u32 v{vSR}, {v(vL)}, 4, s{sT0}
    v_mov_b32 {v(vNEG)}, 0x{NEG:08x}
    s_mov_b32 s{sC}, 0x{f32bits(C):08x}
    v_mov_b32 {v(vM)}, {v(vNEG)}
    v_mul_f32 {v(vMC)}, s{sC}, {v(vNEG)}
    v_mov_b32 v{ONE}, 0x3f803f80
    v_mov_b32 v{ONE+1}, 0x3f803f80
    """)
    for i in range(8): g(f"v_mov_b32 v{ACC+i}, 0")
    for i in range(4): g(f"v_mov_b32 v{LA+i}, 0")
    for i in range(8): g(f"v_mov_b32 v{PA+i}, 0")
    g(f"""
    s_lshl_b32 s{sT0}, s{sHP}, 6
    s_add_u32 s{sT0}, s{sT0}, s{sCB}
    s_lshl_b32 s{sT0}, s{sT0}, 13
    s_add_u32 s4, s24, s{sT0}
    s_addc_u32 s5, s25, 0
    s_lshl_b32 s6, s{sNB}, 13
    s_mov_b32 s7, 0x20000
    s_sub_u32 s{sCB}, s{sJ}, s{sCB}
    s_mov_b32 s{sK0}, 0
    s_branch L_sib
L_sibback:
    v_mov_b32 {v(vTK)}, {FLG}
    s_mov_b32 s{sNXT}, 2
    s_cmp_lt_i32 s{sNU}, 1
    s_cbranch_scc1 L_done
L_loop:
    s_waitcnt vmcnt(12)
    s_cmp_gt_i32 s{sNU}, 1
    s_cbranch_scc1 L_kready
    s_waitcnt vmcnt(4)
L_kready:
    """)
    for jj in range(4):
        g(f"ds_read_b128 {vr(KF+4*jj)}, v{KR+jj}")
    g(f"v_readlane_b32 s{sSO}, {v(vSO)}, s{sNXT}")
    g(f"s_mov_b32 m0, s{sKM}")
    for jj in range(4):
        g(f"s_waitcnt lgkmcnt({3-jj})")
        g(f"v_mfma_f32_16x16x32_bf16 {vr(S)}, {vr(KF+4*jj)}, {vr(Q+4*jj)}, " + ("0" if jj == 0 else vr(S)))
    g(f"""
    s_cmp_lt_i32 s{sNU}, 3
    s_cbranch_scc1 L_nok
    """)
    dma(8, KD, sSO)
    g("L_nok:")
    for jj in range(4):
        g(f"v_xor_b32 v{KR+jj}, 0x1000, v{KR+jj}")
    g(f"""
    s_xor_b32 s{sKM}, s{sKM}, 0x1000
    s_mov_b32 m0, s{sVM}
    s_nop 1
    s_cmp_ge_i32 s{sREM}, 16
    s_cbranch_scc1 L_nomask
    v_subrev_u32 {v(vT0)}, s{sREM}, {v(vT4q)}
    """)
    for e in range(4):
        g(f"v_cmp_gt_i32_e64 s[{sM+2*e}:{sM+2*e+1}], {-e}, {v(vT0)}")
    for e in range(4):
        g(f"v_cndmask_b32_e64 v{S+e}, {v(vNEG)}, v{S+e}, s[{sM+2*e}:{sM+2*e+1}]")
    g(f"""
L_nomask:
    v_max3_f32 {v(vM)}, v{S}, v{S+1}, {v(vM)}
    v_max3_f32 {v(vM)}, v{S+2}, v{S+3}, {v(vM)}
    v_mov_b32 {v(vT0)}, {v(vM)}
    s_nop 1
    v_permlane16_swap_b32 {v(vM)}, {v(vT0)}
    v_max_f32 {v(vM)}, {v(vM)}, {v(vT0)}
    v_mov_b32 {v(vT0)}, {v(vM)}
    s_nop 1
    v_permlane32_swap_b32 {v(vM)}, {v(vT0)}
    v_max_f32 {v(vM)}, {v(vM)}, {v(vT0)}
    v_mul_f32 {v(vT0)}, s{sC}, {v(vM)}
    v_sub_f32 {v(vAL)}, {v(vMC)}, {v(vT0)}
    """)
    for e in range(4):
        g(f"v_fma_f32 v{S+e}, v{S+e}, s{sC}, -{v(vT0)}")
    g(f"v_exp_f32 {v(vAL)}, {v(vAL)}")
    for e in range(4):
        g(f"v_exp_f32 v{S+e}, v{S+e}")
    g(f"""
    v_mov_b32 {v(vMC)}, {v(vT0)}
    v_cvt_pk_bf16_f32 v{PK}, v{S}, v{S+1}
    v_cvt_pk_bf16_f32 v{PK+1}, v{S+2}, v{S+3}
    v_mul_f32 v{LA}, {v(vAL)}, v{LA}
    """)
    for i in range(8):
        g(f"v_mul_f32 v{ACC+i}, {v(vAL)}, v{ACC+i}")
    g(f"v_mfma_f32_16x16x16_bf16 {vr(LA)}, v[{ONE}:{ONE+1}], v[{PK}:{PK+1}], {vr(LA)}")
    for aa in range(4):
        for x in range(2):
            g(f"v_mov_b32_dpp v{PA+2*aa+x}, v{PK+x} quad_perm:[0,1,2,3] row_mask:0xf bank_mask:0x{1<<aa:x}")
    g(f"""
    s_waitcnt vmcnt(12)
    s_cmp_gt_i32 s{sNU}, 2
    s_cbranch_scc1 L_vready
    s_waitcnt vmcnt(8)
    s_cmp_gt_i32 s{sNU}, 1
    s_cbranch_scc1 L_vready
    s_waitcnt vmcnt(0)
L_vready:
    """)
    for i in range(8):
        g(f"ds_read_b64_tr_b16 v[{VF+2*i}:{VF+2*i+1}], v{VR+i}")
    for i in range(8):
        aa, uu = i >> 1, i & 1
        g(f"s_waitcnt lgkmcnt({7-i})")
        g(f"v_mfma_f32_16x16x16_bf16 {vr(ACC+4*uu)}, v[{VF+2*i}:{VF+2*i+1}], v[{PA+2*aa}:{PA+2*aa+1}], {vr(ACC+4*uu)}")
    g(f"""
    s_cmp_lt_i32 s{sNU}, 2
    s_cbranch_scc1 L_last
    s_cmp_lt_i32 s{sNU}, 3
    s_cbranch_scc1 L_nov
    """)
    dma(12, VD, sSO)
    g("L_nov:")
    for i in range(8):
        g(f"v_xor_b32 v{VR+i}, 0x1000, v{VR+i}")
    g(f"""
    s_xor_b32 s{sVM}, s{sVM}, 0x1000
    s_sub_i32 s{sNU}, s{sNU}, 1
    s_sub_i32 s{sREM}, s{sREM}, 64
    s_add_u32 s{sNXT}, s{sNXT}, 1
    s_branch L_loop
L_last:
    s_nop 3
L_done:
    """)
    stamp()
    g(f"""
    v_mov_b32 v{ML}, v{LA}
    v_mov_b32 v{ML+1}, {v(vMC)}
    ds_read_b32 {v(vT2)}, {v(vTK)}
    v_add_u32 {v(vT0)}, 0x800, v{vSW}
    ds_write2_b64 v{vSW}, v[{ACC}:{ACC+1}], v[{ML}:{ML+1}] offset0:0 offset1:1
    ds_write2_b64 v{vSW}, v[{ACC+2}:{ACC+3}], v[{ML}:{ML+1}] offset0:128 offset1:129
    ds_write2_b64 {v(vT0)}, v[{ACC+4}:{ACC+5}], v[{ML}:{ML+1}] offset0:0 offset1:1
    ds_write2_b64 {v(vT0)}, v[{ACC+6}:{ACC+7}], v[{ML}:{ML+1}] offset0:128 offset1:129
    v_add_u32 {v(vT1)}, 0x10000, v{vSR}
    s_waitcnt lgkmcnt(4)
    v_readfirstlane_b32 s{sFLD}, {v(vT2)}
    """)
    def polls():
        for k in range(CH):
            g(f"buffer_load_dwordx4 {vr(E+4+4*k)}, {v(vWS)}, s[4:7], s{sSIB+k} offen sc1")
    if a.early:
        g(f"""
        s_cmp_lg_u32 s{sFLD}, 1
        s_cbranch_scc1 L_nopoll
        """)
        polls()
        g("L_nopoll:")
    X = KF
    g(f"""
    s_waitcnt lgkmcnt(0)
    s_barrier
    ds_read_b32 {v(vT2)}, {v(vTK)}
    ds_read_b128 {vr(X)}, v{vSR}
    ds_read_b128 {vr(X+4)}, v{vSR} offset:32768
    ds_read_b128 {vr(X+8)}, {v(vT1)}
    ds_read_b128 {vr(X+12)}, {v(vT1)} offset:32768
    s_mov_b32 s{sT0}, 0x4e000000
    v_mov_b32 {v(vT1)}, 0xce000000
    s_waitcnt lgkmcnt(0)
    """)
    stamp()
    g(f"""
    v_readfirstlane_b32 s{sX0}, {v(vT2)}
    v_max3_f32 {v(vT0)}, v{X+3}, v{X+7}, v{X+11}
    v_max_f32 {v(vT0)}, {v(vT0)}, v{X+15}
    v_ceil_f32 {v(vT0)}, {v(vT0)}
    v_med3_f32 {v(vT0)}, {v(vT0)}, {v(vT1)}, s{sT0}
    v_sub_f32 v{X+3}, v{X+3}, {v(vT0)}
    v_sub_f32 v{X+7}, v{X+7}, {v(vT0)}
    v_sub_f32 v{X+11}, v{X+11}, {v(vT0)}
    v_sub_f32 v{X+15}, v{X+15}, {v(vT0)}
    v_exp_f32 v{X+3}, v{X+3}
    v_exp_f32 v{X+7}, v{X+7}
    v_exp_f32 v{X+11}, v{X+11}
    v_exp_f32 v{X+15}, v{X+15}
    v_cvt_i32_f32 v{E+3}, {v(vT0)}
    v_pk_mul_f32 v[{E}:{E+1}], v[{X}:{X+1}], v[{X+2}:{X+3}] op_sel:[0,1] op_sel_hi:[1,1]
    v_mul_f32 v{E+2}, v{X+2}, v{X+3}
    v_add_u32 v{E+3}, 0x40000000, v{E+3}
    """)
    for k in range(1, 4):
        g(f"v_pk_fma_f32 v[{E}:{E+1}], v[{X+4*k}:{X+4*k+1}], v[{X+4*k+2}:{X+4*k+3}], v[{E}:{E+1}] op_sel:[0,1,0] op_sel_hi:[1,1,1]")
        g(f"v_fmac_f32 v{E+2}, v{X+4*k+2}, v{X+4*k+3}")
    g(f"""
    s_cmp_eq_u32 s{sX0}, 1
    s_cbranch_scc1 L_consumer
    buffer_store_dwordx4 {vr(E)}, {v(vWS)}, s[24:27], s{sOWN} offen sc1
    s_branch L_fin
L_svc1:
    v_lshlrev_b32 {v(vWS)}, 4, {v(vL)}
    s_add_u32 s{sT0}, s{sOWN}, 0x1000
    v_mov_b32 {v(vT2)}, {FLG}
    v_mov_b32 {v(vT4)}, 0
    buffer_store_dwordx4 {vr(E)}, {v(vWS)}, s[24:27], s{sOWN} offen {a.clrpol}
    buffer_store_dwordx4 {vr(E)}, {v(vWS)}, s[24:27], s{sOWN} offen offset:1024 {a.clrpol}
    buffer_store_dwordx4 {vr(E)}, {v(vWS)}, s[24:27], s{sOWN} offen offset:2048 {a.clrpol}
    buffer_store_dwordx4 {vr(E)}, {v(vWS)}, s[24:27], s{sOWN} offen offset:3072 {a.clrpol}
    buffer_store_dwordx4 {vr(E)}, {v(vWS)}, s[24:27], s{sT0} offen {a.clrpol}
    buffer_store_dwordx4 {vr(E)}, {v(vWS)}, s[24:27], s{sT0} offen offset:1024 {a.clrpol}
    buffer_store_dwordx4 {vr(E)}, {v(vWS)}, s[24:27], s{sT0} offen offset:2048 {a.clrpol}
    buffer_store_dwordx4 {vr(E)}, {v(vWS)}, s[24:27], s{sT0} offen offset:3072 {a.clrpol}
    ds_write_b32 {v(vT2)}, {v(vT4)}
    s_waitcnt lgkmcnt(0)
    s_barrier
    s_branch L_svc1back
L_svc2:
    s_lshl_b32 s{sT0}, s{sHP}, 2
    s_add_u32 s{sT0}, s{sT0}, s{sB}
    s_lshl_b32 s{sT0}, s{sT0}, 4
    v_mov_b32 {v(vT0)}, s{sT0}
    v_mov_b32 {v(vT1)}, 1
    s_mov_b64 exec, 1
    s_waitcnt vmcnt(0)
    global_atomic_add {v(vT1)}, {v(vT0)}, {v(vT1)}, s[22:23] sc0 sc1
    s_waitcnt vmcnt(0)
    v_readfirstlane_b32 s{sT0}, {v(vT1)}
    s_add_u32 s{sT0}, s{sT0}, 1
    s_cmp_eq_u32 s{sT0}, s{sNB}
    s_cselect_b32 s{sFLD}, 1, 2
    v_mov_b32 {v(vT1)}, s{sFLD}
    ds_write_b32 {v(vT2)}, {v(vT1)}
    s_waitcnt lgkmcnt(0)
    s_barrier
    s_branch L_fin
L_sib:
    v_add_u32 {v(vT0)}, s{sK0}, {v(vL)}
    v_cmp_le_u32 vcc, s{sCB}, {v(vT0)}
    s_nop 1
    v_addc_co_u32 {v(vT0)}, vcc, 0, {v(vT0)}, vcc
    v_lshlrev_b32 {v(vT0)}, 13, {v(vT0)}
    s_nop 0
    """)
    for k in range(CH):
        g(f"v_readlane_b32 s{sSIB+k}, {v(vT0)}, {k}")
    g(f"""
    s_cmp_eq_u32 s{sK0}, 0
    s_cbranch_scc1 L_sibback
    s_nop 2
    s_branch L_poll
L_consumer:
    s_mov_b32 s{sSPIN}, 0x10000
    s_mov_b32 s{sT1}, 3
    """)
    if a.early:
        g(f"""
        s_cmp_eq_u32 s{sFLD}, 1
        s_cbranch_scc1 L_check
        """)
    g("L_poll:")
    polls()
    g("L_check:")
    g("s_waitcnt vmcnt(0)")
    ns = [E + 3 + 4 * k for k in range(CH + 1)]
    g(f"v_max3_u32 {v(vT0)}, v{ns[0]}, v{ns[1]}, v{ns[2]}")
    i = 3
    while i < len(ns):
        if i + 1 < len(ns):
            g(f"v_max3_u32 {v(vT0)}, {v(vT0)}, v{ns[i]}, v{ns[i+1]}"); i += 2
        else:
            g(f"v_max_u32 {v(vT0)}, {v(vT0)}, v{ns[i]}"); i += 1
    g(f"""
    v_cmp_eq_u32 vcc, -1, {v(vT0)}
    s_cbranch_vccz L_got
    s_sub_u32 s{sSPIN}, s{sSPIN}, 1
    s_cbranch_scc0 L_poll
L_got:
    """)
    for k in range(CH + 1):
        g(f"v_sub_u32 v{ns[k]}, v{ns[k]}, {v(vT0)}" if k else f"v_sub_u32 v{X+3}, v{ns[0]}, {v(vT0)}")
    for k in range(CH + 1):
        g(f"v_ldexp_f32 v{ns[k]}, 1.0, v{ns[k]}" if k else f"v_ldexp_f32 v{X+3}, 1.0, v{X+3}")
    g(f"""
    v_mul_f32 v{X}, v{E}, v{X+3}
    v_mul_f32 v{X+1}, v{E+1}, v{X+3}
    v_mul_f32 v{X+2}, v{E+2}, v{X+3}
    """)
    for k in range(1, CH + 1):
        b = E + 4 * k
        g(f"v_fmac_f32 v{X+2}, v{b+2}, v{b+3}")
        g(f"v_pk_fma_f32 v[{X}:{X+1}], v[{b}:{b+1}], v[{b+2}:{b+3}], v[{X}:{X+1}] op_sel:[0,1,0] op_sel_hi:[1,1,1]")
    g(f"""
    v_rcp_f32 v{X+3}, v{X+2}
    v_add_f32 {v(vT1)}, v{X}, v{X+1}
    v_cmp_u_f32 vcc, {v(vT1)}, v{X+2}
    s_cbranch_vccz L_clean
    s_sub_u32 s{sT1}, s{sT1}, 1
    s_cbranch_scc0 L_poll
L_clean:
    s_add_u32 s{sK0}, s{sK0}, {CH}
    s_add_u32 s{sT0}, s{sK0}, 1
    s_cmp_ge_u32 s{sT0}, s{sNB}
    s_cbranch_scc1 L_out
    v_mov_b32 v{E}, v{X}
    v_mov_b32 v{E+1}, v{X+1}
    v_mov_b32 v{E+2}, v{X+2}
    v_mov_b32 v{E+3}, {v(vT0)}
    s_branch L_sib
L_out:
    v_mul_f32 v{X}, v{X}, v{X+3}
    v_mul_f32 v{X+1}, v{X+1}, v{X+3}
    v_cvt_pk_bf16_f32 v{X}, v{X}, v{X+1}
    global_store_dword {v(vOUT)}, v{X}, s[20:21]
L_fin:
    """)
    if a.stamps:
        stamp()
        n = nst[0]
        g(f"""
        s_waitcnt lgkmcnt(0)
        s_lshl_b32 s6, s2, 4
        s_add_u32 s6, s6, s{sI}
        s_lshl_b32 s6, s6, 7
        s_add_u32 s6, s6, 0x1000000
        v_mov_b32 v14, s6
        s_getreg_b32 s6, hwreg(HW_REG_XCC_ID)
        s_mov_b64 exec, 1
        """)
        for k in range(n):
            g(f"v_mov_b32 v15, s{sST+2*k}")
            g(f"global_store_dword v14, v15, s[24:25] offset:{4*k}")
        g(f"""
        v_mov_b32 v15, s6
        global_store_dword v14, v15, s[24:25] offset:120
        v_mov_b32 v15, s{sFLD}
        global_store_dword v14, v15, s[24:25] offset:124
        """)
    g("L_end:")
    g("s_endpgm")
    acc = (NV + 3) // 4 * 4
    out = HDR + f"; @launch grid=(256,1,1) block=(576,1,1) lds={LDS}\n"
    out += f""".amdgcn_target "amdgcn-amd-amdhsa--gfx950"
.text
.globl {NAME}_kernel
.p2align 8
.type {NAME}_kernel,@function
{NAME}_kernel:
""" + g.text() + f""".section .rodata,"a"
.p2align 6
.amdhsa_kernel {NAME}_kernel
  .amdhsa_next_free_vgpr {NV}
  .amdhsa_next_free_sgpr 102
  .amdhsa_accum_offset {acc}
  .amdhsa_group_segment_fixed_size 0
  .amdhsa_kernarg_size 64
  .amdhsa_user_sgpr_count 2
  .amdhsa_user_sgpr_kernarg_segment_ptr 1
  .amdhsa_system_sgpr_workgroup_id_x 1
.end_amdhsa_kernel
"""
    return out

if __name__ == "__main__":
    p = argparse.ArgumentParser()
    p.add_argument("--map", type=int, default=0)
    p.add_argument("--stamps", type=int, default=0)
    p.add_argument("--ch", type=int, default=20)
    p.add_argument("--early", type=int, default=1)
    p.add_argument("--noclear", type=int, default=0)
    p.add_argument("--noswz", type=int, default=0)
    p.add_argument("--clrpol", default="sc1")
    p.add_argument("--snt", type=int, default=0)
    p.add_argument("-o", default="-")
    a = p.parse_args()
    t = gen(a)
    if a.o == "-": sys.stdout.write(t)
    else: open(a.o, "w").write(t)
```

```python
import sys, argparse, math, struct
from gen import NAME, HDR, f32bits, G

def gen(a):
    g = G()
    NW = 8
    CH = a.ch
    KVSIZE = 1028 * 32768
    C = (128 ** -0.5) * math.log2(math.e)
    NEG = 0xCE800000
    TBL = 131072
    LDS = TBL + 5376
    snt = " nt" if a.snt else ""
    kvnt = " nt" if a.nt else ""
    sI, sJ, sHP, sH256 = 28, 29, 30, 31
    sB, sCB, sNB, sREM, sNU, sNXT, sKM, sVM, sSO, sC, sT0, sT1, sOWN, sK0, sFLD, sSPIN, sX0, sX1, sQO = range(32, 51)
    sM = 52
    sSIB = 60
    sST = 84
    nst = [0]
    def stamp(cond=True):
        if (a.stamps or a.dbg) and cond:
            k = nst[0]; nst[0] += 1
            assert sST + 2 * k + 1 <= 101
            g(f"s_memrealtime s[{sST+2*k}:{sST+2*k+1}]")
    vL, vT0, vT1, vT2, vT3, vT4, vT5, vSO, vWS, vOUT, vTK, vM, vMC, vAL, vNEG, vT4q = range(1, 17)
    vSW, vSR = 17, 18
    ACC = 20
    LA = 28
    ML = 32
    KF = 36
    E = 52
    KD, VD, KR, VR = 56, 60, 64, 68
    Q = 76
    PA = 92
    PK = 100
    ONE = 102
    S = 104
    VF = 108
    NV = max(E + 4 * (CH + 1), VF + 16)
    FLG = TBL + 5376 - 16
    def v(i): return f"v{i}"
    def vr(b, n=4): return f"v[{b}:{b+n-1}]"
    stamp()
    g(f"""
    s_load_dwordx4 s[16:19], s[0:1], 24
    s_load_dwordx2 s[24:25], s[0:1], 56
    s_load_dwordx2 s[8:9], s[0:1], 8
    s_load_dwordx2 s[12:13], s[0:1], 16
    s_load_dwordx2 s[4:5], s[0:1], 0
    s_load_dwordx4 s[20:23], s[0:1], 40
    s_cmp_ge_u32 s2, 256
    s_cbranch_scc1 L_end
    v_readfirstlane_b32 s3, v0
    v_and_b32 {v(vL)}, 63, v0
    v_and_b32 {v(vT0)}, 3, v0
    v_lshlrev_b32 {v(vT0)}, 2, {v(vT0)}
    v_lshlrev_b32 {v(vWS)}, 4, v0
    v_and_b32 {v(vT1)}, 0xfff, {v(vWS)}
    s_lshr_b32 s{sI}, s3, 6
    s_lshl_b32 s3, s3, 4
    s_and_b32 s3, s3, 0xfff
    s_add_u32 s3, s3, {TBL}
    s_mov_b32 m0, s3
    s_mov_b32 s10, 0x{KVSIZE:x}
    s_mov_b32 s11, 0x20000
    s_mov_b32 s14, 0x{KVSIZE:x}
    s_mov_b32 s15, 0x20000
    s_mov_b32 s26, 0x200000
    s_mov_b32 s27, 0x20000
    """)
    if a.map == 0:
        g(f"""
        s_and_b32 s{sHP}, s2, 3
        s_lshr_b32 s{sJ}, s2, 2
        """)
    else:
        g(f"""
        s_lshr_b32 s{sHP}, s2, 6
        s_and_b32 s{sJ}, s2, 63
        """)
    g(f"""
    s_lshl_b32 s{sOWN}, s{sHP}, 6
    s_add_u32 s{sOWN}, s{sOWN}, s{sJ}
    s_lshl_b32 s{sOWN}, s{sOWN}, 13
    v_mov_b32 v{E}, -1
    v_mov_b32 v{E+1}, -1
    v_mov_b32 v{E+2}, -1
    v_mov_b32 v{E+3}, -1
    s_and_b32 s{sT0}, s{sI}, 1
    s_lshl_b32 s{sH256}, s{sHP}, 1
    s_add_u32 s{sH256}, s{sH256}, s{sT0}
    s_lshl_b32 s{sH256}, s{sH256}, 8
    s_lshl_b32 s{sKM}, s{sI}, 14
    s_add_u32 s{sVM}, s{sKM}, 0x2000
    v_lshrrev_b32 {v(vT4q)}, 4, {v(vL)}
    v_and_b32 {v(vT2)}, 15, v0
    s_waitcnt lgkmcnt(0)
    """)
    stamp()
    g(f"""
    global_load_dword {v(vT0)}, {v(vT0)}, s[18:19]{snt}
    s_cmp_eq_u32 s{sI}, 8
    s_cbranch_scc1 L_svc1
    global_load_lds_dwordx4 {v(vT1)}, s[16:17]{snt}
L_svc1back:
    v_xor_b32 {v(vT3)}, {v(vT2)}, {v(vT4q)}
    v_lshlrev_b32 {v(vT3)}, 4, {v(vT3)}
    v_lshl_add_u32 v{KR}, {v(vT2)}, 8, {v(vT3)}
    v_add_u32 v{KR}, s{sKM}, v{KR}
    v_lshl_add_u32 v{KD}, {v(vT4q)}, 11, {v(vT3)}
    v_add_u32 v{KD}, s{sH256}, v{KD}
    v_lshlrev_b32 {v(vT3)}, 1, {v(vT4q)}
    v_xor_b32 {v(vT3)}, {v(vT2)}, {v(vT3)}
    v_lshlrev_b32 {v(vT3)}, 4, {v(vT3)}
    v_lshl_add_u32 v{VD}, {v(vT4q)}, 11, {v(vT3)}
    v_add_u32 v{VD}, s{sH256}, v{VD}
    """)
    for e in range(1, 4):
        g(f"""
        v_xor_b32 v{KR+e}, {e<<6}, v{KR}
        v_xor_b32 v{KD+e}, {e<<6}, v{KD}
        v_add_u32 v{KD+e}, {e*7168}, v{KD+e}
        """)
    if a.noswz:
        g(f"""
        v_lshlrev_b32 {v(vT3)}, 4, {v(vT2)}
        v_lshl_add_u32 v{KD}, {v(vT4q)}, 11, {v(vT3)}
        v_add_u32 v{KD}, s{sH256}, v{KD}
        v_add_u32 v{KD+1}, 7168, v{KD}
        v_add_u32 v{KD+2}, 2*7168, v{KD}
        v_add_u32 v{KD+3}, 3*7168, v{KD}
        v_mov_b32 v{VD}, v{KD}
        """)
    g(f"""
    v_xor_b32 v{VD+1}, {0 if a.noswz else 0x80}, v{VD}
    v_add_u32 v{VD+2}, {2*7168}, v{VD}
    v_add_u32 v{VD+3}, {3*7168}, v{VD+1}
    v_add_u32 v{VD+1}, 7168, v{VD+1}
    v_add_u32 {v(vT5)}, 1, {v(vL)}
    s_mov_b32 s{sT1}, 0x42700000
    s_waitcnt vmcnt(1)
    """)
    stamp()
    cl, nb, pf, cn, cb, x0, x1 = vT0, vT1, vT3, vSO, vTK, vM, vMC
    fq, n_, k_ = vAL, vNEG, vOUT
    g(f"""
    v_add_u32 {v(nb)}, -1, {v(cl)}
    v_ashrrev_i32 {v(nb)}, 4, {v(nb)}
    v_min_u32 {v(nb)}, 0xff, {v(nb)}
    v_add_u32 {v(nb)}, 1, {v(nb)}
    s_nop 1
    v_add_u32_dpp {v(pf)}, {v(nb)}, {v(nb)} row_shr:1 row_mask:0xf bank_mask:0xf bound_ctrl:0
    v_lshlrev_b32 {v(nb)}, 1, {v(nb)}
    v_cvt_f32_u32 {v(fq)}, {v(nb)}
    v_add_u32_dpp {v(pf)}, {v(pf)}, {v(pf)} row_shr:2 row_mask:0xf bank_mask:0xf bound_ctrl:0
    s_nop 1
    v_cvt_f32_u32_dpp {v(cn)}, {v(pf)} quad_perm:[3,3,3,3] row_mask:0xf bank_mask:0xf
    v_cvt_f32_u32 {v(pf)}, {v(pf)}
    v_rcp_f32 {v(cn)}, {v(cn)}
    v_mul_f32 {v(pf)}, s{sT1}, {v(pf)}
    v_fma_f32 {v(cn)}, {v(pf)}, {v(cn)}, 0.5
    v_cvt_u32_f32 {v(cn)}, {v(cn)}
    v_add_u32 {v(cn)}, {v(cn)}, {v(vT5)}
    v_cmp_ge_u32 vcc, s{sJ}, {v(cn)}
    s_nop 0
    v_mov_b32_dpp {v(cb)}, {v(cn)} row_shr:1 row_mask:0xf bank_mask:0xf bound_ctrl:0
    s_and_b32 s{sB}, vcc_lo, 7
    v_sub_u32 {v(n_)}, {v(cn)}, {v(cb)}
    v_sub_u32 {v(k_)}, s{sJ}, {v(cb)}
    v_cvt_f32_u32 {v(x0)}, {v(n_)}
    v_rcp_f32 {v(x0)}, {v(x0)}
    v_add_u32 {v(pf)}, 1, {v(k_)}
    v_mul_f32 {v(fq)}, {v(fq)}, {v(x0)}
    v_cvt_f32_u32 {v(x0)}, {v(k_)}
    v_cvt_f32_u32 {v(x1)}, {v(pf)}
    v_cmp_eq_u32 vcc, {v(pf)}, {v(n_)}
    v_mul_f32 {v(x0)}, {v(x0)}, {v(fq)}
    v_mul_f32 {v(x1)}, {v(x1)}, {v(fq)}
    v_cvt_u32_f32 {v(x0)}, {v(x0)}
    v_cvt_u32_f32 {v(x1)}, {v(x1)}
    s_bcnt1_i32_b32 s{sB}, s{sB}
    v_cndmask_b32 {v(x1)}, {v(x1)}, {v(nb)}, vcc
    v_readlane_b32 s{sX0}, {v(x0)}, s{sB}
    v_readlane_b32 s{sREM}, {v(cl)}, s{sB}
    v_readlane_b32 s{sX1}, {v(x1)}, s{sB}
    v_readlane_b32 s{sCB}, {v(cb)}, s{sB}
    v_readlane_b32 s{sNB}, {v(n_)}, s{sB}
    s_cmp_eq_u32 s{sI}, 8
    s_cbranch_scc1 L_svc2
    s_xor_b32 s{sT0}, s{sX0}, s{sI}
    s_and_b32 s{sT0}, s{sT0}, 1
    s_add_u32 s{sX0}, s{sX0}, s{sT0}
    s_andn2_b32 s{sT0}, s{sI}, 1
    s_add_u32 s{sX0}, s{sX0}, s{sT0}
    s_sub_i32 s{sNU}, s{sX1}, s{sX0}
    s_lshr_b32 s{sX0}, s{sX0}, 1
    s_lshl_b32 s{sT0}, s{sB}, 8
    s_add_u32 s{sT0}, s{sT0}, s{sX0}
    s_lshl_b32 s{sT0}, s{sT0}, 2
    s_add_u32 s{sT0}, s{sT0}, {TBL}
    v_lshl_add_u32 {v(vT0)}, {v(vL)}, 4, s{sT0}
    s_waitcnt vmcnt(0)
    s_barrier
    ds_read_b32 {v(vSO)}, {v(vT0)}
    s_add_i32 s{sNU}, s{sNU}, 7
    s_ashr_i32 s{sNU}, s{sNU}, 3
    s_lshl_b32 s{sX0}, s{sX0}, 4
    s_sub_i32 s{sREM}, s{sREM}, s{sX0}
    s_lshl_b32 s{sQO}, s{sB}, 13
    s_lshl_b32 s{sT0}, s{sH256}, 2
    s_add_u32 s{sQO}, s{sQO}, s{sT0}
    v_and_b32 {v(vT1)}, 3, v0
    v_lshlrev_b32 {v(vT3)}, 4, {v(vT4q)}
    v_lshl_add_u32 {v(vT3)}, {v(vT1)}, 8, {v(vT3)}
    v_add_u32 {v(vT3)}, s{sQO}, {v(vT3)}
    s_mov_b32 m0, s{sKM}
    s_cmp_lt_i32 s{sNU}, 1
    s_cbranch_scc1 L_issued
    s_waitcnt lgkmcnt(0)
    v_lshlrev_b32 {v(vSO)}, 15, {v(vSO)}
    s_nop 0
    v_readlane_b32 s{sSO}, {v(vSO)}, 0
    v_readlane_b32 s{sT1}, {v(vSO)}, 1
    s_nop 3
    """)
    stamp()
    if a.prio: g("s_setprio 3")
    def dma(srd, offs, so):
        for e in range(4):
            io = f" offset:{e*1024}" if e else ""
            g(f"buffer_load_dwordx4 v{offs+e}, s[{srd}:{srd+3}], s{so} offen{io}{kvnt} lds")
    dma(8, KD, sSO)
    for jj in range(4):
        g(f"global_load_dwordx4 {vr(Q+4*jj)}, {v(vT3)}, s[4:5]" + (f" offset:{64*jj}" if jj else "") + snt)
    g(f"s_mov_b32 m0, s{sVM}")
    g(f"s_nop 0")
    dma(12, VD, sSO)
    g(f"""
    s_cmp_lt_i32 s{sNU}, 2
    s_cbranch_scc1 L_issued
    s_add_u32 s{sT0}, s{sKM}, 0x1000
    s_mov_b32 m0, s{sT0}
    s_add_u32 s{sT0}, s{sVM}, 0x1000
    """)
    dma(8, KD, sT1)
    g(f"s_mov_b32 m0, s{sT0}")
    g(f"s_nop 0")
    dma(12, VD, sT1)
    g("L_issued:")
    if a.prio: g("s_setprio 0")
    stamp()
    g(f"""
    v_lshrrev_b32 {v(vT0)}, 2, {v(vT2)}
    v_lshl_add_u32 {v(vT0)}, {v(vT4q)}, 2, {v(vT0)}
    v_and_b32 {v(vT3)}, 7, {v(vT0)}
    v_lshlrev_b32 {v(vT3)}, 5, {v(vT3)}
    v_lshl_add_u32 {v(vT3)}, {v(vT0)}, 8, {v(vT3)}
    v_lshl_add_u32 {v(vT3)}, {v(vT1)}, 3, {v(vT3)}
    v_add_u32 v{VR}, s{sVM}, {v(vT3)}
    """)
    for i in range(1, 8):
        g(f"v_xor_b32 v{VR+i}, {i<<5}, v{VR}")
    g(f"""
    v_bfe_u32 {v(vT0)}, v0, 2, 2
    v_lshlrev_b32 {v(vOUT)}, 8, {v(vT1)}
    v_lshl_add_u32 {v(vOUT)}, {v(vT0)}, 6, {v(vOUT)}
    v_lshl_add_u32 {v(vOUT)}, {v(vT4q)}, 3, {v(vOUT)}
    s_bfe_u32 s{sT0}, s{sI}, 0x10002
    s_lshl_b32 s{sT0}, s{sT0}, 5
    s_add_u32 s{sQO}, s{sQO}, s{sT0}
    s_and_b32 s{sT0}, s{sI}, 2
    s_lshl_b32 s{sT0}, s{sT0}, 1
    s_add_u32 s{sQO}, s{sQO}, s{sT0}
    v_add_u32 {v(vOUT)}, s{sQO}, {v(vOUT)}
    v_lshlrev_b32 {v(vT4q)}, 2, {v(vT4q)}
    v_lshl_add_u32 v{vSW}, {v(vL)}, 4, s{sKM}
    s_and_b32 s{sT0}, s{sI}, 1
    s_lshl_b32 s{sT0}, s{sT0}, 14
    s_lshr_b32 s{sT1}, s{sI}, 1
    s_lshl_b32 s{sT1}, s{sT1}, 10
    s_add_u32 s{sT0}, s{sT0}, s{sT1}
    v_lshl_add_u32 v{vSR}, {v(vL)}, 4, s{sT0}
    v_mov_b32 {v(vNEG)}, 0x{NEG:08x}
    s_mov_b32 s{sC}, 0x{f32bits(C):08x}
    v_mov_b32 {v(vM)}, {v(vNEG)}
    v_mul_f32 {v(vMC)}, s{sC}, {v(vNEG)}
    v_mov_b32 v{ONE}, 0x3f803f80
    v_mov_b32 v{ONE+1}, 0x3f803f80
    """)
    for i in range(8): g(f"v_mov_b32 v{ACC+i}, 0")
    for i in range(4): g(f"v_mov_b32 v{LA+i}, 0")
    for i in range(8): g(f"v_mov_b32 v{PA+i}, 0")
    g(f"""
    s_lshl_b32 s{sT0}, s{sHP}, 6
    s_add_u32 s{sT0}, s{sT0}, s{sCB}
    s_lshl_b32 s{sT0}, s{sT0}, 13
    s_add_u32 s4, s24, s{sT0}
    s_addc_u32 s5, s25, 0
    s_lshl_b32 s6, s{sNB}, 13
    s_mov_b32 s7, 0x20000
    s_sub_u32 s{sCB}, s{sJ}, s{sCB}
    s_mov_b32 s{sK0}, 0
    s_branch L_sib
L_sibback:
    v_mov_b32 {v(vTK)}, {FLG}
    s_mov_b32 s{sNXT}, 2
    s_cmp_lt_i32 s{sNU}, 1
    s_cbranch_scc1 L_done
L_loop:
    s_waitcnt vmcnt(12)
    s_cmp_gt_i32 s{sNU}, 1
    s_cbranch_scc1 L_kready
    s_waitcnt vmcnt(4)
L_kready:
    """)
    for jj in range(4):
        g(f"ds_read_b128 {vr(KF+4*jj)}, v{KR+jj}")
    g(f"v_readlane_b32 s{sSO}, {v(vSO)}, s{sNXT}")
    g(f"s_mov_b32 m0, s{sKM}")
    for jj in range(4):
        g(f"s_waitcnt lgkmcnt({3-jj})")
        g(f"v_mfma_f32_16x16x32_bf16 {vr(S)}, {vr(KF+4*jj)}, {vr(Q+4*jj)}, " + ("0" if jj == 0 else vr(S)))
    g(f"""
    s_cmp_lt_i32 s{sNU}, 3
    s_cbranch_scc1 L_nok
    """)
    dma(8, KD, sSO)
    g("L_nok:")
    for jj in range(4):
        g(f"v_xor_b32 v{KR+jj}, 0x1000, v{KR+jj}")
    g(f"""
    s_xor_b32 s{sKM}, s{sKM}, 0x1000
    s_mov_b32 m0, s{sVM}
    s_nop 1
    s_cmp_ge_i32 s{sREM}, 16
    s_cbranch_scc1 L_nomask
    v_subrev_u32 {v(vT0)}, s{sREM}, {v(vT4q)}
    """)
    for e in range(4):
        g(f"v_cmp_gt_i32_e64 s[{sM+2*e}:{sM+2*e+1}], {-e}, {v(vT0)}")
    for e in range(4):
        g(f"v_cndmask_b32_e64 v{S+e}, {v(vNEG)}, v{S+e}, s[{sM+2*e}:{sM+2*e+1}]")
    g(f"""
L_nomask:
    v_max3_f32 {v(vM)}, v{S}, v{S+1}, {v(vM)}
    v_max3_f32 {v(vM)}, v{S+2}, v{S+3}, {v(vM)}
    v_mov_b32 {v(vT0)}, {v(vM)}
    s_nop 1
    v_permlane16_swap_b32 {v(vM)}, {v(vT0)}
    v_max_f32 {v(vM)}, {v(vM)}, {v(vT0)}
    v_mov_b32 {v(vT0)}, {v(vM)}
    s_nop 1
    v_permlane32_swap_b32 {v(vM)}, {v(vT0)}
    v_max_f32 {v(vM)}, {v(vM)}, {v(vT0)}
    v_mul_f32 {v(vT0)}, s{sC}, {v(vM)}
    v_sub_f32 {v(vAL)}, {v(vMC)}, {v(vT0)}
    """)
    for e in range(4):
        g(f"v_fma_f32 v{S+e}, v{S+e}, s{sC}, -{v(vT0)}")
    g(f"v_exp_f32 {v(vAL)}, {v(vAL)}")
    for e in range(4):
        g(f"v_exp_f32 v{S+e}, v{S+e}")
    g(f"""
    v_mov_b32 {v(vMC)}, {v(vT0)}
    v_cvt_pk_bf16_f32 v{PK}, v{S}, v{S+1}
    v_cvt_pk_bf16_f32 v{PK+1}, v{S+2}, v{S+3}
    v_mul_f32 v{LA}, {v(vAL)}, v{LA}
    """)
    for i in range(8):
        g(f"v_mul_f32 v{ACC+i}, {v(vAL)}, v{ACC+i}")
    g(f"v_mfma_f32_16x16x16_bf16 {vr(LA)}, v[{ONE}:{ONE+1}], v[{PK}:{PK+1}], {vr(LA)}")
    for aa in range(4):
        for x in range(2):
            g(f"v_mov_b32_dpp v{PA+2*aa+x}, v{PK+x} quad_perm:[0,1,2,3] row_mask:0xf bank_mask:0x{1<<aa:x}")
    g(f"""
    s_waitcnt vmcnt(12)
    s_cmp_gt_i32 s{sNU}, 2
    s_cbranch_scc1 L_vready
    s_waitcnt vmcnt(8)
    s_cmp_gt_i32 s{sNU}, 1
    s_cbranch_scc1 L_vready
    s_waitcnt vmcnt(0)
L_vready:
    """)
    for i in range(8):
        g(f"ds_read_b64_tr_b16 v[{VF+2*i}:{VF+2*i+1}], v{VR+i}")
    for i in range(8):
        aa, uu = i >> 1, i & 1
        g(f"s_waitcnt lgkmcnt({7-i})")
        g(f"v_mfma_f32_16x16x16_bf16 {vr(ACC+4*uu)}, v[{VF+2*i}:{VF+2*i+1}], v[{PA+2*aa}:{PA+2*aa+1}], {vr(ACC+4*uu)}")
    g(f"""
    s_cmp_lt_i32 s{sNU}, 2
    s_cbranch_scc1 L_last
    s_cmp_lt_i32 s{sNU}, 3
    s_cbranch_scc1 L_nov
    """)
    dma(12, VD, sSO)
    g("L_nov:")
    for i in range(8):
        g(f"v_xor_b32 v{VR+i}, 0x1000, v{VR+i}")
    g(f"""
    s_xor_b32 s{sVM}, s{sVM}, 0x1000
    s_sub_i32 s{sNU}, s{sNU}, 1
    s_sub_i32 s{sREM}, s{sREM}, 64
    s_add_u32 s{sNXT}, s{sNXT}, 1
    s_branch L_loop
L_last:
    s_nop 3
L_done:
    """)
    stamp()
    g(f"""
    v_mov_b32 v{ML}, v{LA}
    v_mov_b32 v{ML+1}, {v(vMC)}
    ds_read_b32 {v(vT2)}, {v(vTK)}
    v_add_u32 {v(vT0)}, 0x800, v{vSW}
    ds_write2_b64 v{vSW}, v[{ACC}:{ACC+1}], v[{ML}:{ML+1}] offset0:0 offset1:1
    ds_write2_b64 v{vSW}, v[{ACC+2}:{ACC+3}], v[{ML}:{ML+1}] offset0:128 offset1:129
    ds_write2_b64 {v(vT0)}, v[{ACC+4}:{ACC+5}], v[{ML}:{ML+1}] offset0:0 offset1:1
    ds_write2_b64 {v(vT0)}, v[{ACC+6}:{ACC+7}], v[{ML}:{ML+1}] offset0:128 offset1:129
    v_add_u32 {v(vT1)}, 0x10000, v{vSR}
    s_waitcnt lgkmcnt(4)
    v_readfirstlane_b32 s{sFLD}, {v(vT2)}
    """)
    def polls():
        for k in range(CH):
            g(f"buffer_load_dwordx4 {vr(E+4+4*k)}, {v(vWS)}, s[4:7], s{sSIB+k} offen sc1")
    if a.early:
        g(f"""
        s_cmp_lg_u32 s{sFLD}, 1
        s_cbranch_scc1 L_nopoll
        """)
        polls()
        g("L_nopoll:")
    X = KF
    g(f"""
    s_waitcnt lgkmcnt(0)
    s_barrier
    ds_read_b32 {v(vT2)}, {v(vTK)}
    ds_read_b128 {vr(X)}, v{vSR}
    ds_read_b128 {vr(X+4)}, v{vSR} offset:32768
    ds_read_b128 {vr(X+8)}, {v(vT1)}
    ds_read_b128 {vr(X+12)}, {v(vT1)} offset:32768
    s_mov_b32 s{sT0}, 0x4e000000
    v_mov_b32 {v(vT1)}, 0xce000000
    s_waitcnt lgkmcnt(0)
    """)
    stamp()
    g(f"""
    v_readfirstlane_b32 s{sX0}, {v(vT2)}
    v_max3_f32 {v(vT0)}, v{X+3}, v{X+7}, v{X+11}
    v_max_f32 {v(vT0)}, {v(vT0)}, v{X+15}
    v_ceil_f32 {v(vT0)}, {v(vT0)}
    v_med3_f32 {v(vT0)}, {v(vT0)}, {v(vT1)}, s{sT0}
    v_sub_f32 v{X+3}, v{X+3}, {v(vT0)}
    v_sub_f32 v{X+7}, v{X+7}, {v(vT0)}
    v_sub_f32 v{X+11}, v{X+11}, {v(vT0)}
    v_sub_f32 v{X+15}, v{X+15}, {v(vT0)}
    v_exp_f32 v{X+3}, v{X+3}
    v_exp_f32 v{X+7}, v{X+7}
    v_exp_f32 v{X+11}, v{X+11}
    v_exp_f32 v{X+15}, v{X+15}
    v_cvt_i32_f32 v{E+3}, {v(vT0)}
    v_pk_mul_f32 v[{E}:{E+1}], v[{X}:{X+1}], v[{X+2}:{X+3}] op_sel:[0,1] op_sel_hi:[1,1]
    v_mul_f32 v{E+2}, v{X+2}, v{X+3}
    v_add_u32 v{E+3}, 0x40000000, v{E+3}
    """)
    for k in range(1, 4):
        g(f"v_pk_fma_f32 v[{E}:{E+1}], v[{X+4*k}:{X+4*k+1}], v[{X+4*k+2}:{X+4*k+3}], v[{E}:{E+1}] op_sel:[0,1,0] op_sel_hi:[1,1,1]")
        g(f"v_fmac_f32 v{E+2}, v{X+4*k+2}, v{X+4*k+3}")
    g(f"""
    s_cmp_eq_u32 s{sX0}, 1
    s_cbranch_scc1 L_consumer
    buffer_store_dwordx4 {vr(E)}, {v(vWS)}, s[24:27], s{sOWN} offen sc1
    s_branch L_fin
L_svc1:
    v_lshlrev_b32 {v(vWS)}, 4, {v(vL)}
    s_add_u32 s{sT0}, s{sOWN}, 0x1000
    v_mov_b32 {v(vT2)}, {FLG}
    v_mov_b32 {v(vT4)}, 0
    buffer_store_dwordx4 {vr(E)}, {v(vWS)}, s[24:27], s{sOWN} offen {a.clrpol}
    buffer_store_dwordx4 {vr(E)}, {v(vWS)}, s[24:27], s{sOWN} offen offset:1024 {a.clrpol}
    buffer_store_dwordx4 {vr(E)}, {v(vWS)}, s[24:27], s{sOWN} offen offset:2048 {a.clrpol}
    buffer_store_dwordx4 {vr(E)}, {v(vWS)}, s[24:27], s{sOWN} offen offset:3072 {a.clrpol}
    buffer_store_dwordx4 {vr(E)}, {v(vWS)}, s[24:27], s{sT0} offen {a.clrpol}
    buffer_store_dwordx4 {vr(E)}, {v(vWS)}, s[24:27], s{sT0} offen offset:1024 {a.clrpol}
    buffer_store_dwordx4 {vr(E)}, {v(vWS)}, s[24:27], s{sT0} offen offset:2048 {a.clrpol}
    buffer_store_dwordx4 {vr(E)}, {v(vWS)}, s[24:27], s{sT0} offen offset:3072 {a.clrpol}
    ds_write_b32 {v(vT2)}, {v(vT4)}
    s_waitcnt lgkmcnt(0)
    s_barrier
    s_branch L_svc1back
L_svc2:
    s_lshl_b32 s{sT0}, s{sHP}, 2
    s_add_u32 s{sT0}, s{sT0}, s{sB}
    s_lshl_b32 s{sT0}, s{sT0}, 4
    v_mov_b32 {v(vT0)}, s{sT0}
    v_mov_b32 {v(vT1)}, 1
    s_mov_b64 exec, 1
    s_waitcnt vmcnt(0)
    global_atomic_add {v(vT1)}, {v(vT0)}, {v(vT1)}, s[22:23] sc0 sc1
    s_waitcnt vmcnt(0)
    v_readfirstlane_b32 s{sT0}, {v(vT1)}
    s_add_u32 s{sT0}, s{sT0}, 1
    s_cmp_eq_u32 s{sT0}, s{sNB}
    s_cselect_b32 s{sFLD}, 1, 2
    v_mov_b32 {v(vT1)}, s{sFLD}
    ds_write_b32 {v(vT2)}, {v(vT1)}
    s_waitcnt lgkmcnt(0)
    s_barrier
    s_branch L_fin
L_sib:
    v_add_u32 {v(vT0)}, s{sK0}, {v(vL)}
    v_cmp_le_u32 vcc, s{sCB}, {v(vT0)}
    s_nop 1
    v_addc_co_u32 {v(vT0)}, vcc, 0, {v(vT0)}, vcc
    v_lshlrev_b32 {v(vT0)}, 13, {v(vT0)}
    s_nop 0
    """)
    for k in range(CH):
        g(f"v_readlane_b32 s{sSIB+k}, {v(vT0)}, {k}")
    g(f"""
    s_cmp_eq_u32 s{sK0}, 0
    s_cbranch_scc1 L_sibback
    s_nop 2
    s_branch L_poll
L_consumer:
    s_mov_b32 s{sSPIN}, 0x10000
    s_mov_b32 s{sT1}, 3
    """)
    if a.early:
        g(f"""
        s_cmp_eq_u32 s{sFLD}, 1
        s_cbranch_scc1 L_check
        """)
    g("L_poll:")
    polls()
    g("L_check:")
    g("s_waitcnt vmcnt(0)")
    ns = [E + 3 + 4 * k for k in range(CH + 1)]
    g(f"v_max3_u32 {v(vT0)}, v{ns[0]}, v{ns[1]}, v{ns[2]}")
    i = 3
    while i < len(ns):
        if i + 1 < len(ns):
            g(f"v_max3_u32 {v(vT0)}, {v(vT0)}, v{ns[i]}, v{ns[i+1]}"); i += 2
        else:
            g(f"v_max_u32 {v(vT0)}, {v(vT0)}, v{ns[i]}"); i += 1
    g(f"""
    v_cmp_eq_u32 vcc, -1, {v(vT0)}
    s_cbranch_vccz L_got
    s_sub_u32 s{sSPIN}, s{sSPIN}, 1
    s_cbranch_scc0 L_poll
L_got:
    """)
    for k in range(CH + 1):
        g(f"v_sub_u32 v{ns[k]}, v{ns[k]}, {v(vT0)}" if k else f"v_sub_u32 v{X+3}, v{ns[0]}, {v(vT0)}")
    for k in range(CH + 1):
        g(f"v_ldexp_f32 v{ns[k]}, 1.0, v{ns[k]}" if k else f"v_ldexp_f32 v{X+3}, 1.0, v{X+3}")
    g(f"""
    v_mul_f32 v{X}, v{E}, v{X+3}
    v_mul_f32 v{X+1}, v{E+1}, v{X+3}
    v_mul_f32 v{X+2}, v{E+2}, v{X+3}
    """)
    for k in range(1, CH + 1):
        b = E + 4 * k
        g(f"v_fmac_f32 v{X+2}, v{b+2}, v{b+3}")
        g(f"v_pk_fma_f32 v[{X}:{X+1}], v[{b}:{b+1}], v[{b+2}:{b+3}], v[{X}:{X+1}] op_sel:[0,1,0] op_sel_hi:[1,1,1]")
    g(f"""
    v_rcp_f32 v{X+3}, v{X+2}
    v_add_f32 {v(vT1)}, v{X}, v{X+1}
    v_cmp_u_f32 vcc, {v(vT1)}, v{X+2}
    s_cbranch_vccz L_clean
    s_sub_u32 s{sT1}, s{sT1}, 1
    s_cbranch_scc0 L_poll
L_clean:
    s_add_u32 s{sK0}, s{sK0}, {CH}
    s_add_u32 s{sT0}, s{sK0}, 1
    s_cmp_ge_u32 s{sT0}, s{sNB}
    s_cbranch_scc1 L_out
    v_mov_b32 v{E}, v{X}
    v_mov_b32 v{E+1}, v{X+1}
    v_mov_b32 v{E+2}, v{X+2}
    v_mov_b32 v{E+3}, {v(vT0)}
    s_branch L_sib
L_out:
    v_mul_f32 v{X}, v{X}, v{X+3}
    v_mul_f32 v{X+1}, v{X+1}, v{X+3}
    v_cvt_pk_bf16_f32 v{X}, v{X}, v{X+1}
    global_store_dword {v(vOUT)}, v{X}, s[20:21]
L_fin:
    """)
    if a.dbg:
        stamp()
        n = nst[0]
        g(f"""
        s_waitcnt lgkmcnt(0)
        s_cmp_eq_u32 s{sI}, 8
        s_cbranch_scc1 L_end
        s_mov_b64 exec, 1
        v_mov_b32 v14, 0
        s_not_b32 s6, s{sST}
        v_mov_b32 v15, s6
        global_atomic_umax v14, v15, s[22:23] offset:4 sc1
        """)
        offs = [8, 12, 20, 24, 28, 36, 40, 44]
        for k in range(n):
            g(f"v_mov_b32 v15, s{sST+2*k}")
            g(f"global_atomic_umax v14, v15, s[22:23] offset:{offs[k]} sc1")
    elif a.stamps:
        stamp()
        n = nst[0]
        g(f"""
        s_waitcnt lgkmcnt(0)
        s_lshl_b32 s6, s2, 4
        s_add_u32 s6, s6, s{sI}
        s_lshl_b32 s6, s6, 7
        s_add_u32 s6, s6, 0x1000000
        v_mov_b32 v14, s6
        s_getreg_b32 s6, hwreg(HW_REG_XCC_ID)
        s_mov_b64 exec, 1
        """)
        for k in range(n):
            g(f"v_mov_b32 v15, s{sST+2*k}")
            g(f"global_store_dword v14, v15, s[24:25] offset:{4*k}")
        g(f"""
        v_mov_b32 v15, s6
        global_store_dword v14, v15, s[24:25] offset:120
        v_mov_b32 v15, s{sFLD}
        global_store_dword v14, v15, s[24:25] offset:124
        """)
    g("L_end:")
    g("s_endpgm")
    acc = (NV + 3) // 4 * 4
    out = HDR + f"; @launch grid=(256,1,1) block=(576,1,1) lds={LDS}\n"
    out += f""".amdgcn_target "amdgcn-amd-amdhsa--gfx950"
.text
.globl {NAME}_kernel
.p2align 8
.type {NAME}_kernel,@function
{NAME}_kernel:
""" + g.text() + f""".section .rodata,"a"
.p2align 6
.amdhsa_kernel {NAME}_kernel
  .amdhsa_next_free_vgpr {NV}
  .amdhsa_next_free_sgpr 102
  .amdhsa_accum_offset {acc}
  .amdhsa_group_segment_fixed_size 0
  .amdhsa_kernarg_size 64
  .amdhsa_user_sgpr_count 2
  .amdhsa_user_sgpr_kernarg_segment_ptr 1
  .amdhsa_system_sgpr_workgroup_id_x 1
.end_amdhsa_kernel
"""
    return out

if __name__ == "__main__":
    p = argparse.ArgumentParser()
    p.add_argument("--map", type=int, default=0)
    p.add_argument("--stamps", type=int, default=0)
    p.add_argument("--ch", type=int, default=20)
    p.add_argument("--early", type=int, default=1)
    p.add_argument("--noclear", type=int, default=0)
    p.add_argument("--noswz", type=int, default=0)
    p.add_argument("--clrpol", default="sc1")
    p.add_argument("--prio", type=int, default=0)
    p.add_argument("--nt", type=int, default=1)
    p.add_argument("--dbg", type=int, default=0)
    p.add_argument("--snt", type=int, default=0)
    p.add_argument("-o", default="-")
    a = p.parse_args()
    t = gen(a)
    if a.o == "-": sys.stdout.write(t)
    else: open(a.o, "w").write(t)
```

```python
import sys, argparse, math, struct
from gen import NAME, HDR, f32bits, G

def gen(a):
    g = G()
    CH = a.ch
    KVSIZE = 1028 * 32768
    C = (128 ** -0.5) * math.log2(math.e)
    TBL = 131072
    LDS = TBL + 5376
    EPOFF = 0x600000
    snt = " nt" if a.snt else ""
    kvnt = " nt" if a.nt else ""
    sI, sJ, sHP, sH256 = 28, 29, 30, 31
    sB, sCB, sNB, sREM, sNU, sNXT, sKM, sVM, sSO, sC, sT0, sT1, sOWN, sK0, sCONS, sSPIN, sX0, sX1, sQO, sTAG = range(32, 52)
    sM = 52
    sSIB = 60
    sEP, sTAGN, sTAGH, sEPO = 80, 81, 82, 83
    sMK, sPO, sOO, sFIRST, sXC, sLOC, sDO = 60, 68, 72, 73, 74, 75, 76
    sXD = 52
    sREG = 77
    sST = 84
    nst = [0]
    def stamp():
        if a.stamps:
            k = nst[0]; nst[0] += 1
            assert sST + 2 * k + 1 <= 101
            g(f"s_memrealtime s[{sST+2*k}:{sST+2*k+1}]")
    vL, vT0, vT1, vT2, vT3, vT4, vT5, vSO, vWS, vOUT, vTK, vM, vMC, vAL, vNEG, vT4q, vSW, vSR = range(1, 19)
    ACC, LA, ML, KF = 20, 28, 32, 36
    KD, VD, KR, VR, Q, PA, PK, ONE, S, VF = 52, 56, 60, 64, 72, 88, 96, 98, 100, 104
    E = 120
    G0 = 136
    vPA = 19
    NV = G0 + 4
    def v(i): return f"v{i}"
    def vr(b, n=4): return f"v[{b}:{b+n-1}]"
    stamp()
    g(f"""
    s_load_dwordx4 s[16:19], s[0:1], 24
    s_load_dwordx2 s[8:9], s[0:1], 8
    s_load_dwordx2 s[12:13], s[0:1], 16
    s_load_dwordx2 s[4:5], s[0:1], 0
    s_load_dwordx2 s[24:25], s[0:1], 56
    s_load_dwordx2 s[20:21], s[0:1], 40
    s_cmp_ge_u32 s2, 256
    s_cbranch_scc1 L_end
    v_readfirstlane_b32 s3, v0
    v_and_b32 {v(vL)}, 63, v0
    v_and_b32 {v(vT0)}, 3, v0
    v_lshlrev_b32 {v(vT0)}, 2, {v(vT0)}
    v_lshlrev_b32 {v(vWS)}, 4, v0
    v_and_b32 {v(vT1)}, 0xfff, {v(vWS)}
    s_lshr_b32 s{sI}, s3, 6
    s_lshl_b32 s3, s3, 4
    s_and_b32 s3, s3, 0xfff
    s_add_u32 s3, s3, {TBL}
    s_mov_b32 m0, s3
    s_mov_b32 s10, 0x{KVSIZE:x}
    s_mov_b32 s11, 0x20000
    s_mov_b32 s14, 0x{KVSIZE:x}
    s_mov_b32 s15, 0x20000
    s_mov_b32 s26, 0x400000
    s_mov_b32 s27, 0x20000
    """)
    if a.map == 0:
        g(f"""
        s_and_b32 s{sHP}, s2, 3
        s_lshl_b32 s{sJ}, s2, 3
        s_and_b32 s{sJ}, s{sJ}, 32
        s_lshr_b32 s{sT0}, s2, 3
        s_add_u32 s{sJ}, s{sJ}, s{sT0}
        """)
    else:
        g(f"""
        s_lshr_b32 s{sHP}, s2, 6
        s_and_b32 s{sJ}, s2, 63
        """)
    lanec = f"""
    s_and_b32 s{sT0}, s{sI}, 1
    s_lshl_b32 s{sH256}, s{sHP}, 1
    s_add_u32 s{sH256}, s{sH256}, s{sT0}
    s_lshl_b32 s{sH256}, s{sH256}, 8
    s_lshl_b32 s{sKM}, s{sI}, 14
    s_add_u32 s{sVM}, s{sKM}, 0x2000
    v_lshrrev_b32 {v(vT4q)}, 4, {v(vL)}
    v_and_b32 {v(vT2)}, 15, v0
    v_xor_b32 {v(vT3)}, {v(vT2)}, {v(vT4q)}
    v_lshlrev_b32 {v(vT3)}, 4, {v(vT3)}
    v_lshl_add_u32 v{KR}, {v(vT2)}, 8, {v(vT3)}
    v_add_u32 v{KR}, s{sKM}, v{KR}
    v_lshl_add_u32 v{KD}, {v(vT4q)}, 11, {v(vT3)}
    v_add_u32 v{KD}, s{sH256}, v{KD}
    v_lshlrev_b32 {v(vT3)}, 1, {v(vT4q)}
    v_xor_b32 {v(vT3)}, {v(vT2)}, {v(vT3)}
    v_lshlrev_b32 {v(vT3)}, 4, {v(vT3)}
    v_lshl_add_u32 v{VD}, {v(vT4q)}, 11, {v(vT3)}
    v_add_u32 v{VD}, s{sH256}, v{VD}
    """
    for e in range(1, 4):
        lanec += f"""
        v_xor_b32 v{KD+e}, {e<<6}, v{KD}
        v_add_u32 v{KD+e}, {e*7168}, v{KD+e}
        """
    lanec += f"""
    v_xor_b32 v{VD+1}, 0x80, v{VD}
    v_add_u32 v{VD+2}, {2*7168}, v{VD}
    v_add_u32 v{VD+3}, {3*7168}, v{VD+1}
    v_add_u32 v{VD+1}, 7168, v{VD+1}
    v_add_u32 {v(vT5)}, 1, {v(vL)}
    s_mov_b32 s{sT1}, 0x42700000
    """
    if a.early_const: g(lanec)
    g("s_waitcnt lgkmcnt(0)")
    stamp()
    if a.scl:
        g(f"""
        s_load_dwordx4 s[{sM}:{sM+3}], s[18:19], 0
        global_load_lds_dwordx4 {v(vT1)}, s[16:17]{snt}
        """)
    else:
        g(f"""
        global_load_dword {v(vT0)}, {v(vT0)}, s[18:19]{snt}
        global_load_lds_dwordx4 {v(vT1)}, s[16:17]{snt}
        """)
    if not a.early_const: g(lanec)
    if a.scl:
        g("s_waitcnt lgkmcnt(0)")
        stamp()
        g(f"""
        v_mov_b32 {v(vT0)}, s{sM}
        v_writelane_b32 {v(vT0)}, s{sM+3}, 1
        v_writelane_b32 {v(vT0)}, s{sM+1}, 2
        v_writelane_b32 {v(vT0)}, s{sM+2}, 3
        """)
    else:
        g("s_waitcnt vmcnt(1)")
        stamp()
    cl, nb, pf, cn, cb, x0, x1 = vT0, vT1, vT3, vSO, vTK, vM, vMC
    fq, n_, k_ = vAL, vNEG, vOUT
    g(f"""
    v_add_u32 {v(nb)}, -1, {v(cl)}
    v_ashrrev_i32 {v(nb)}, 4, {v(nb)}
    v_min_u32 {v(nb)}, 0xff, {v(nb)}
    v_add_u32 {v(nb)}, 1, {v(nb)}
    s_nop 1
    v_add_u32_dpp {v(pf)}, {v(nb)}, {v(nb)} row_shr:1 row_mask:0xf bank_mask:0xf bound_ctrl:0
    v_lshlrev_b32 {v(nb)}, 1, {v(nb)}
    v_cvt_f32_u32 {v(fq)}, {v(nb)}
    v_add_u32_dpp {v(pf)}, {v(pf)}, {v(pf)} row_shr:2 row_mask:0xf bank_mask:0xf bound_ctrl:0
    s_nop 1
    v_cvt_f32_u32_dpp {v(cn)}, {v(pf)} quad_perm:[3,3,3,3] row_mask:0xf bank_mask:0xf
    v_cvt_f32_u32 {v(pf)}, {v(pf)}
    v_rcp_f32 {v(cn)}, {v(cn)}
    v_mul_f32 {v(pf)}, s{sT1}, {v(pf)}
    v_fma_f32 {v(cn)}, {v(pf)}, {v(cn)}, 0.5
    v_cvt_u32_f32 {v(cn)}, {v(cn)}
    v_add_u32 {v(cn)}, {v(cn)}, {v(vT5)}
    v_cmp_ge_u32 vcc, s{sJ}, {v(cn)}
    s_nop 0
    v_mov_b32_dpp {v(cb)}, {v(cn)} row_shr:1 row_mask:0xf bank_mask:0xf bound_ctrl:0
    s_and_b32 s{sB}, vcc_lo, 7
    v_sub_u32 {v(n_)}, {v(cn)}, {v(cb)}
    v_sub_u32 {v(k_)}, s{sJ}, {v(cb)}
    v_cvt_f32_u32 {v(x0)}, {v(n_)}
    v_rcp_f32 {v(x0)}, {v(x0)}
    v_add_u32 {v(pf)}, 1, {v(k_)}
    v_mul_f32 {v(fq)}, {v(fq)}, {v(x0)}
    v_cvt_f32_u32 {v(x0)}, {v(k_)}
    v_cvt_f32_u32 {v(x1)}, {v(pf)}
    v_cmp_eq_u32 vcc, {v(pf)}, {v(n_)}
    v_mul_f32 {v(x0)}, {v(x0)}, {v(fq)}
    v_mul_f32 {v(x1)}, {v(x1)}, {v(fq)}
    v_cvt_u32_f32 {v(x0)}, {v(x0)}
    v_cvt_u32_f32 {v(x1)}, {v(x1)}
    s_bcnt1_i32_b32 s{sB}, s{sB}
    v_cndmask_b32 {v(x1)}, {v(x1)}, {v(nb)}, vcc
    v_readlane_b32 s{sX0}, {v(x0)}, s{sB}
    v_readlane_b32 s{sREM}, {v(cl)}, s{sB}
    v_readlane_b32 s{sX1}, {v(x1)}, s{sB}
    v_readlane_b32 s{sCB}, {v(cb)}, s{sB}
    v_readlane_b32 s{sNB}, {v(n_)}, s{sB}
    s_lshl_b32 s{sB}, s{sB}, 2
    s_lshr_b32 s{sB}, 0x2130, s{sB}
    s_and_b32 s{sB}, s{sB}, 3
    s_xor_b32 s{sT0}, s{sX0}, s{sI}
    s_and_b32 s{sT0}, s{sT0}, 1
    s_add_u32 s{sX0}, s{sX0}, s{sT0}
    s_andn2_b32 s{sT0}, s{sI}, 1
    s_add_u32 s{sX0}, s{sX0}, s{sT0}
    s_sub_i32 s{sNU}, s{sX1}, s{sX0}
    s_lshr_b32 s{sX0}, s{sX0}, 1
    s_lshl_b32 s{sT0}, s{sB}, 8
    s_add_u32 s{sT0}, s{sT0}, s{sX0}
    s_lshl_b32 s{sT0}, s{sT0}, 2
    s_add_u32 s{sT0}, s{sT0}, {TBL}
    v_lshl_add_u32 {v(vT0)}, {v(vL)}, 4, s{sT0}
    """)
    if a.fine: stamp()
    g(f"""
    s_waitcnt vmcnt(0)
    s_barrier
    ds_read_b32 {v(vSO)}, {v(vT0)}
    s_add_i32 s{sNU}, s{sNU}, 7
    s_ashr_i32 s{sNU}, s{sNU}, 3
    s_cmp_gt_i32 s{sREM}, 0
    s_cselect_b32 s{sX1}, 0xce800000, 0
    s_lshl_b32 s{sX0}, s{sX0}, 4
    s_sub_i32 s{sREM}, s{sREM}, s{sX0}
    s_lshl_b32 s{sQO}, s{sB}, 13
    s_lshl_b32 s{sT0}, s{sH256}, 2
    s_add_u32 s{sQO}, s{sQO}, s{sT0}
    v_and_b32 {v(vT1)}, 3, v0
    v_lshlrev_b32 {v(vT3)}, 4, {v(vT4q)}
    v_lshl_add_u32 {v(vT3)}, {v(vT1)}, 8, {v(vT3)}
    v_add_u32 {v(vT3)}, s{sQO}, {v(vT3)}
    s_mov_b32 m0, s{sKM}
    s_cmp_lt_i32 s{sNU}, 1
    s_cbranch_scc1 L_issued
    s_waitcnt lgkmcnt(0)
    v_lshlrev_b32 {v(vSO)}, 15, {v(vSO)}
    s_nop 0
    v_readlane_b32 s{sSO}, {v(vSO)}, 0
    v_readlane_b32 s{sT1}, {v(vSO)}, 1
    s_nop 3
    """)
    stamp()
    if a.prio: g("s_setprio 3")
    def dma(srd, offs, so):
        for e in range(4):
            io = f" offset:{e*1024}" if e else ""
            g(f"buffer_load_dwordx4 v{offs+e}, s[{srd}:{srd+3}], s{so} offen{io}{kvnt} lds")
    dma(8, KD, sSO)
    for jj in range(4):
        g(f"global_load_dwordx4 {vr(Q+4*jj)}, {v(vT3)}, s[4:5]" + (f" offset:{64*jj}" if jj else "") + snt)
    g(f"s_mov_b32 m0, s{sVM}")
    g(f"s_nop 0")
    dma(12, VD, sSO)
    if a.prio == 2: g("s_setprio 2")
    g(f"""
    s_cmp_lt_i32 s{sNU}, 2
    s_cbranch_scc1 L_issued
    s_add_u32 s{sT0}, s{sKM}, 0x1000
    s_mov_b32 m0, s{sT0}
    s_add_u32 s{sT0}, s{sVM}, 0x1000
    """)
    dma(8, KD, sT1)
    g(f"s_mov_b32 m0, s{sT0}")
    g(f"s_nop 0")
    dma(12, VD, sT1)
    g("L_issued:")
    if a.prio: g("s_setprio 0")
    stamp()
    g(f"""
    s_lshl_b32 s{sEPO}, s{sHP}, 2
    s_add_u32 s{sEPO}, s{sEPO}, s{sB}
    s_lshl_b32 s{sEPO}, s{sEPO}, 7
    s_add_u32 s{sEPO}, s{sEPO}, {EPOFF + 12}
    s_load_dword s{sEP}, s[24:25], s{sEPO}
    v_lshrrev_b32 {v(vT0)}, 2, {v(vT2)}
    v_lshl_add_u32 {v(vT0)}, {v(vT4q)}, 2, {v(vT0)}
    v_and_b32 {v(vT3)}, 7, {v(vT0)}
    v_lshlrev_b32 {v(vT3)}, 5, {v(vT3)}
    v_lshl_add_u32 {v(vT3)}, {v(vT0)}, 8, {v(vT3)}
    v_lshl_add_u32 {v(vT3)}, {v(vT1)}, 3, {v(vT3)}
    v_add_u32 v{VR}, s{sVM}, {v(vT3)}
    """)
    for i in range(1, 8):
        g(f"v_xor_b32 v{VR+i}, {i<<5}, v{VR}")
    for e in range(1, 4):
        g(f"v_xor_b32 v{KR+e}, {e<<6}, v{KR}")
    g(f"""
    v_lshlrev_b32 {v(vT4q)}, 2, {v(vT4q)}
    v_lshl_add_u32 v{vSW}, {v(vL)}, 4, s{sKM}
    s_and_b32 s{sT0}, s{sI}, 1
    s_lshl_b32 s{sT0}, s{sT0}, 14
    s_lshr_b32 s{sT1}, s{sI}, 1
    s_lshl_b32 s{sT1}, s{sT1}, 10
    s_add_u32 s{sT0}, s{sT0}, s{sT1}
    v_lshl_add_u32 v{vSR}, {v(vL)}, 4, s{sT0}
    v_mov_b32 {v(vNEG)}, s{sX1}
    s_mov_b32 s{sC}, 0x{f32bits(C):08x}
    v_mov_b32 {v(vM)}, 0xce800000
    v_mul_f32 {v(vMC)}, s{sC}, {v(vM)}
    v_mov_b32 v{ONE}, 0x3f803f80
    v_mov_b32 v{ONE+1}, 0x3f803f80
    """)
    for i in range(8): g(f"v_mov_b32 v{ACC+i}, 0")
    for i in range(4): g(f"v_mov_b32 v{LA+i}, 0")
    for i in range(8): g(f"v_mov_b32 v{PA+i}, 0")
    g(f"""
    s_lshl_b32 s{sT0}, s{sHP}, 6
    s_add_u32 s{sOWN}, s{sT0}, s{sJ}
    s_lshl_b32 s{sOWN}, s{sOWN}, 13
    s_getreg_b32 s{sXC}, hwreg(HW_REG_XCC_ID, 0, 3)
    s_lshl_b32 s{sXC}, s{sXC}, 18
    s_add_u32 s{sT0}, s{sT0}, s{sCB}
    s_lshl_b32 s{sT0}, s{sT0}, 13
    s_add_u32 s4, s24, s{sT0}
    s_addc_u32 s5, s25, 0
    s_mov_b32 s6, 0x400000
    s_mov_b32 s7, 0x20000
    s_sub_u32 s{sCB}, s{sJ}, s{sCB}
    s_and_b32 s{sCB}, s{sCB}, 15
    s_mov_b32 s{sREG}, 0
    s_mov_b32 s{sNXT}, 2
    v_lshrrev_b32 {v(vT0)}, 2, {v(vL)}
    v_lshlrev_b32 v{vPA}, 4, {v(vT1)}
    v_lshl_add_u32 v{vPA}, {v(vT0)}, 13, v{vPA}
    v_cmp_gt_u32_e64 s[{sMK}:{sMK+1}], s{sNB}, {v(vT0)}
    v_add_u32 {v(vT0)}, 16, {v(vT0)}
    v_cmp_gt_u32_e64 s[{sMK+2}:{sMK+3}], s{sNB}, {v(vT0)}
    v_add_u32 {v(vT0)}, 16, {v(vT0)}
    v_cmp_gt_u32_e64 s[{sMK+4}:{sMK+5}], s{sNB}, {v(vT0)}
    v_add_u32 {v(vT0)}, 16, {v(vT0)}
    v_cmp_gt_u32_e64 s[{sMK+6}:{sMK+7}], s{sNB}, {v(vT0)}
    v_lshrrev_b32 {v(vOUT)}, 4, {v(vL)}
    v_and_b32 {v(vOUT)}, 2, {v(vOUT)}
    v_lshl_add_u32 {v(vOUT)}, {v(vT1)}, 8, {v(vOUT)}
    s_lshl_b32 s{sQO}, s{sB}, 13
    s_lshl_b32 s{sT0}, s{sHP}, 11
    s_add_u32 s{sQO}, s{sQO}, s{sT0}
    s_waitcnt lgkmcnt(0)
    s_add_u32 s{sEP}, s{sEP}, 0x9e3c0000
    s_and_b32 s{sTAG}, s{sEP}, 0xffe00000
    s_or_b32 s{sTAG}, s{sTAG}, s{sXC}
    s_and_b32 s{sXC}, s{sEP}, 0xfffc0000
    s_xor_b32 s{sXC}, s{sXC}, s{sTAG}
    s_or_b32 s{sTAGN}, s{sTAG}, 0x20000
    s_or_b32 s{sTAGH}, s{sTAG}, 0x3ffff
    """)
    for r in range(4):
        g(f"""
        v_mov_b32 v{E+4*r}, 0
        v_mov_b32 v{E+4*r+1}, 0
        v_mov_b32 v{E+4*r+2}, 0
        v_mov_b32 v{E+4*r+3}, s{sTAG}
        """)
    task = f"""
    s_lshl_b32 s{sT0}, s{sCB}, 3
    s_add_u32 s{sT0}, s{sT0}, s{sI}
    s_lshl_b32 s{sPO}, s{sT0}, 6
    s_add_u32 s{sPO}, s{sPO}, s{sREG}
    s_add_u32 s{sPO+1}, s{sPO}, 0x20000
    s_add_u32 s{sPO+2}, s{sPO}, 0x40000
    s_add_u32 s{sPO+3}, s{sPO}, 0x60000
    s_and_b32 s{sOO}, s{sT0}, 3
    s_lshl_b32 s{sOO}, s{sOO}, 6
    s_and_b32 s{sT1}, s{sT0}, 12
    s_lshl_b32 s{sT1}, s{sT1}, 1
    s_add_u32 s{sOO}, s{sOO}, s{sT1}
    s_and_b32 s{sT1}, s{sT0}, 16
    s_lshl_b32 s{sT1}, s{sT1}, 6
    s_add_u32 s{sOO}, s{sOO}, s{sT1}
    s_and_b32 s{sT1}, s{sT0}, 32
    s_lshr_b32 s{sT1}, s{sT1}, 3
    s_add_u32 s{sOO}, s{sOO}, s{sT1}
    s_and_b32 s{sT1}, s{sT0}, 64
    s_lshr_b32 s{sT1}, s{sT1}, 1
    s_add_u32 s{sOO}, s{sOO}, s{sT1}
    s_add_u32 s{sOO}, s{sOO}, s{sQO}
    """
    g(f"s_mov_b32 s{sFIRST}, 0")
    g("s_branch L_task")
    g(f"""
L_sibback:
    """)
    if a.warm:
        g(f"""
        s_mov_b64 exec, s[{sMK}:{sMK+1}]
        buffer_load_dwordx4 {vr(E)}, v{vPA}, s[4:7], s{sPO} offen sc1
        s_mov_b64 exec, s[{sMK+2}:{sMK+3}]
        s_cbranch_execz L_nowarm
        buffer_load_dwordx4 {vr(E+4)}, v{vPA}, s[4:7], s{sPO+1} offen sc1
L_nowarm:
        s_mov_b64 exec, -1
        """)
    g(f"""
    s_cmp_lt_i32 s{sNU}, 1
    s_cbranch_scc1 L_done
L_loop:
    s_waitcnt vmcnt(12)
    s_cmp_gt_i32 s{sNU}, 1
    s_cbranch_scc1 L_kready
    """)
    g(f"""
    s_waitcnt vmcnt(4)
L_kready:
    """)
    for jj in range(4):
        g(f"ds_read_b128 {vr(KF+4*jj)}, v{KR+jj}")
    g(f"v_readlane_b32 s{sSO}, {v(vSO)}, s{sNXT}")
    g(f"s_mov_b32 m0, s{sKM}")
    for jj in range(4):
        g(f"s_waitcnt lgkmcnt({3-jj})")
        g(f"v_mfma_f32_16x16x32_bf16 {vr(S)}, {vr(KF+4*jj)}, {vr(Q+4*jj)}, " + ("0" if jj == 0 else vr(S)))
    g(f"""
    s_cmp_lt_i32 s{sNU}, 3
    s_cbranch_scc1 L_nok
    """)
    dma(8, KD, sSO)
    g("L_nok:")
    for jj in range(4):
        g(f"v_xor_b32 v{KR+jj}, 0x1000, v{KR+jj}")
    g(f"""
    s_xor_b32 s{sKM}, s{sKM}, 0x1000
    s_mov_b32 m0, s{sVM}
    s_nop 1
    s_cmp_ge_i32 s{sREM}, 16
    s_cbranch_scc1 L_nomask
    v_subrev_u32 {v(vT0)}, s{sREM}, {v(vT4q)}
    """)
    for e in range(4):
        g(f"v_cmp_gt_i32_e64 s[{sM+2*e}:{sM+2*e+1}], {-e}, {v(vT0)}")
    for e in range(4):
        g(f"v_cndmask_b32_e64 v{S+e}, {v(vNEG)}, v{S+e}, s[{sM+2*e}:{sM+2*e+1}]")
    g(f"""
L_nomask:
    v_max3_f32 {v(vM)}, v{S}, v{S+1}, {v(vM)}
    v_max3_f32 {v(vM)}, v{S+2}, v{S+3}, {v(vM)}
    v_mov_b32 {v(vT0)}, {v(vM)}
    s_nop 1
    v_permlane16_swap_b32 {v(vM)}, {v(vT0)}
    v_max_f32 {v(vM)}, {v(vM)}, {v(vT0)}
    v_mov_b32 {v(vT0)}, {v(vM)}
    s_nop 1
    v_permlane32_swap_b32 {v(vM)}, {v(vT0)}
    v_max_f32 {v(vM)}, {v(vM)}, {v(vT0)}
    v_mul_f32 {v(vT0)}, s{sC}, {v(vM)}
    v_sub_f32 {v(vAL)}, {v(vMC)}, {v(vT0)}
    """)
    for e in range(4):
        g(f"v_fma_f32 v{S+e}, v{S+e}, s{sC}, -{v(vT0)}")
    g(f"v_exp_f32 {v(vAL)}, {v(vAL)}")
    for e in range(4):
        g(f"v_exp_f32 v{S+e}, v{S+e}")
    g(f"""
    v_mov_b32 {v(vMC)}, {v(vT0)}
    v_cvt_pk_bf16_f32 v{PK}, v{S}, v{S+1}
    v_cvt_pk_bf16_f32 v{PK+1}, v{S+2}, v{S+3}
    v_mul_f32 v{LA}, {v(vAL)}, v{LA}
    """)
    for i in range(8):
        g(f"v_mul_f32 v{ACC+i}, {v(vAL)}, v{ACC+i}")
    g(f"v_mfma_f32_16x16x16_bf16 {vr(LA)}, v[{ONE}:{ONE+1}], v[{PK}:{PK+1}], {vr(LA)}")
    for aa in range(4):
        for x in range(2):
            g(f"v_mov_b32_dpp v{PA+2*aa+x}, v{PK+x} quad_perm:[0,1,2,3] row_mask:0xf bank_mask:0x{1<<aa:x}")
    g(f"""
    s_waitcnt vmcnt(12)
    s_cmp_gt_i32 s{sNU}, 2
    s_cbranch_scc1 L_vready
    s_waitcnt vmcnt(8)
    s_cmp_gt_i32 s{sNU}, 1
    s_cbranch_scc1 L_vready
    s_waitcnt vmcnt(0)
L_vready:
    """)
    for i in range(8):
        g(f"ds_read_b64_tr_b16 v[{VF+2*i}:{VF+2*i+1}], v{VR+i}")
    for i in range(8):
        aa, uu = i >> 1, i & 1
        g(f"s_waitcnt lgkmcnt({7-i})")
        g(f"v_mfma_f32_16x16x16_bf16 {vr(ACC+4*uu)}, v[{VF+2*i}:{VF+2*i+1}], v[{PA+2*aa}:{PA+2*aa+1}], {vr(ACC+4*uu)}")
    g(f"""
    s_cmp_lt_i32 s{sNU}, 2
    s_cbranch_scc1 L_last
    s_cmp_lt_i32 s{sNU}, 3
    s_cbranch_scc1 L_nov
    """)
    dma(12, VD, sSO)
    g("L_nov:")
    for i in range(8):
        g(f"v_xor_b32 v{VR+i}, 0x1000, v{VR+i}")
    g(f"""
    s_xor_b32 s{sVM}, s{sVM}, 0x1000
    s_sub_i32 s{sNU}, s{sNU}, 1
    s_sub_i32 s{sREM}, s{sREM}, 64
    s_add_u32 s{sNXT}, s{sNXT}, 1
    s_branch L_loop
L_last:
    s_nop 3
L_done:
    """)
    stamp()
    g(f"""
    v_mov_b32 v{ML}, v{LA}
    v_mov_b32 v{ML+1}, {v(vMC)}
    v_add_u32 {v(vT0)}, 0x800, v{vSW}
    v_add_u32 {v(vT1)}, 0x10000, v{vSR}
    ds_write2_b64 v{vSW}, v[{ACC}:{ACC+1}], v[{ML}:{ML+1}] offset0:0 offset1:1
    ds_write2_b64 v{vSW}, v[{ACC+2}:{ACC+3}], v[{ML}:{ML+1}] offset0:128 offset1:129
    ds_write2_b64 {v(vT0)}, v[{ACC+4}:{ACC+5}], v[{ML}:{ML+1}] offset0:0 offset1:1
    ds_write2_b64 {v(vT0)}, v[{ACC+6}:{ACC+7}], v[{ML}:{ML+1}] offset0:128 offset1:129
    """)
    X = KF
    g(f"""
    s_waitcnt lgkmcnt(0)
    s_barrier
    ds_read_b128 {vr(X)}, v{vSR}
    ds_read_b128 {vr(X+4)}, v{vSR} offset:32768
    ds_read_b128 {vr(X+8)}, {v(vT1)}
    ds_read_b128 {vr(X+12)}, {v(vT1)} offset:32768
    """)
    g(f"""
    s_mov_b32 s{sT0}, 0x47ffff80
    v_mov_b32 {v(vT1)}, 0xc7ffff80
    s_mov_b32 s{sSPIN}, 0x10000
    s_mov_b32 s{sK0}, 3
    s_mov_b32 s{sLOC}, {a.thr}
    s_waitcnt lgkmcnt(0)
    """)
    stamp()
    g(f"""
    v_max3_f32 {v(vT0)}, v{X+3}, v{X+7}, v{X+11}
    v_max_f32 {v(vT0)}, {v(vT0)}, v{X+15}
    v_ceil_f32 {v(vT0)}, {v(vT0)}
    v_med3_f32 {v(vT0)}, {v(vT0)}, {v(vT1)}, s{sT0}
    v_sub_f32 v{X+3}, v{X+3}, {v(vT0)}
    v_sub_f32 v{X+7}, v{X+7}, {v(vT0)}
    v_sub_f32 v{X+11}, v{X+11}, {v(vT0)}
    v_sub_f32 v{X+15}, v{X+15}, {v(vT0)}
    v_exp_f32 v{X+3}, v{X+3}
    v_exp_f32 v{X+7}, v{X+7}
    v_exp_f32 v{X+11}, v{X+11}
    v_exp_f32 v{X+15}, v{X+15}
    v_cvt_i32_f32 v{G0+3}, {v(vT0)}
    v_pk_mul_f32 v[{G0}:{G0+1}], v[{X}:{X+1}], v[{X+2}:{X+3}] op_sel:[0,1] op_sel_hi:[1,1]
    v_mul_f32 v{G0+2}, v{X+2}, v{X+3}
    v_add_u32 v{G0+3}, s{sTAGN}, v{G0+3}
    """)
    for k in range(1, 4):
        g(f"v_pk_fma_f32 v[{G0}:{G0+1}], v[{X+4*k}:{X+4*k+1}], v[{X+4*k+2}:{X+4*k+3}], v[{G0}:{G0+1}] op_sel:[0,1,0] op_sel_hi:[1,1,1]")
        g(f"v_fmac_f32 v{G0+2}, v{X+4*k+2}, v{X+4*k+3}")
    g(f"""
    buffer_store_dwordx4 {vr(G0)}, {v(vWS)}, s[24:27], s{sOWN} offen
L_poll:
    """)
    for r in range(4):
        g(f"""
        s_mov_b64 exec, s[{sMK+2*r}:{sMK+2*r+1}]
        """ + (f"s_cbranch_execz L_pe" if r else "") + f"""
        buffer_load_dwordx4 {vr(E+4*r)}, v{vPA}, s[4:7], s{sPO+r} offen sc1
        """)
    n0, n1, n2, n3 = E + 3, E + 7, E + 11, E + 15
    W = X + 8
    g(f"""
L_pe:
    s_mov_b64 exec, -1
    s_waitcnt vmcnt(0)
    v_max3_u32 {v(vT0)}, v{n0}, v{n1}, v{n2}
    v_min3_u32 {v(vT2)}, v{n0}, v{n1}, v{n2}
    v_max_u32 {v(vT0)}, {v(vT0)}, v{n3}
    v_min_u32 {v(vT2)}, {v(vT2)}, v{n3}
    v_cmp_lt_u32 vcc, s{sTAGH}, {v(vT0)}
    v_cmp_gt_u32_e64 s[{sM}:{sM+1}], s{sTAG}, {v(vT2)}
    v_max_u32_dpp {v(vT0)}, {v(vT0)}, {v(vT0)} row_ror:4 row_mask:0xf bank_mask:0xf
    s_or_b64 vcc, vcc, s[{sM}:{sM+1}]
    s_cbranch_vccnz L_retry
L_got:
    {"s_memrealtime s[%d:%d]" % (sST+2*nst[0]+2, sST+2*nst[0]+3) if a.stamps else ""}
    v_max_u32_dpp {v(vT0)}, {v(vT0)}, {v(vT0)} row_ror:8 row_mask:0xf bank_mask:0xf
    v_mov_b32 {v(vT1)}, {v(vT0)}
    s_nop 1
    v_permlane16_swap_b32 {v(vT0)}, {v(vT1)}
    v_max_u32 {v(vT0)}, {v(vT0)}, {v(vT1)}
    v_mov_b32 {v(vT1)}, {v(vT0)}
    s_nop 1
    v_permlane32_swap_b32 {v(vT0)}, {v(vT1)}
    v_max_u32 {v(vT0)}, {v(vT0)}, {v(vT1)}
    v_sub_u32 v{W}, v{n0}, {v(vT0)}
    v_sub_u32 v{W+1}, v{n1}, {v(vT0)}
    v_sub_u32 v{W+2}, v{n2}, {v(vT0)}
    v_sub_u32 v{W+3}, v{n3}, {v(vT0)}
    v_ldexp_f32 v{W}, 1.0, v{W}
    v_ldexp_f32 v{W+1}, 1.0, v{W+1}
    v_ldexp_f32 v{W+2}, 1.0, v{W+2}
    v_ldexp_f32 v{W+3}, 1.0, v{W+3}
    v_mul_f32 v{X+2}, v{E+2}, v{W}
    v_pk_mul_f32 v[{X}:{X+1}], v[{E}:{E+1}], v[{W}:{W+1}] op_sel:[0,0] op_sel_hi:[1,0]
    v_fmac_f32 v{X+2}, v{E+6}, v{W+1}
    v_pk_fma_f32 v[{X}:{X+1}], v[{E+4}:{E+5}], v[{W}:{W+1}], v[{X}:{X+1}] op_sel:[0,1,0] op_sel_hi:[1,1,1]
    v_fmac_f32 v{X+2}, v{E+10}, v{W+2}
    v_pk_fma_f32 v[{X}:{X+1}], v[{E+8}:{E+9}], v[{W+2}:{W+3}], v[{X}:{X+1}] op_sel:[0,0,0] op_sel_hi:[1,0,1]
    v_fmac_f32 v{X+2}, v{E+14}, v{W+3}
    v_pk_fma_f32 v[{X}:{X+1}], v[{E+12}:{E+13}], v[{W+2}:{W+3}], v[{X}:{X+1}] op_sel:[0,1,0] op_sel_hi:[1,1,1]
    v_mov_b32 v{X+3}, v{X+2}
    v_add_u32 {v(vT2)}, s{sOO}, {v(vOUT)}
    s_nop 0
    v_permlane32_swap_b32 v{X}, v{X+1}
    v_permlane32_swap_b32 v{X+2}, v{X+3}
    v_add_f32 v{X}, v{X}, v{X+1}
    v_add_f32 v{X+2}, v{X+2}, v{X+3}
    s_nop 1
    v_permlane16_swap_b32 v{X}, v{X+2}
    v_add_f32 v{X}, v{X}, v{X+2}
    s_nop 1
    v_add_f32_dpp v{X}, v{X}, v{X} row_ror:4 row_mask:0xf bank_mask:0xf
    s_nop 1
    v_add_f32_dpp v{X}, v{X}, v{X} row_ror:8 row_mask:0xf bank_mask:0xf
    v_rcp_f32 v{X+1}, v{X}
    v_cmp_u_f32 vcc, v{X}, v{X}
    v_mov_b32 v{X+2}, v{X+1}
    s_cbranch_vccz L_clean
    s_sub_u32 s{sK0}, s{sK0}, 1
    s_cbranch_scc0 L_poll
L_clean:
    s_nop 0
    v_permlane16_swap_b32 v{X+1}, v{X}
    v_mul_f32 v{X+1}, v{X+1}, v{X+2}
    s_mov_b32 exec_lo, 0x000f0000
    s_mov_b32 exec_hi, 0x000f0000
    v_cvt_pk_bf16_f32 v{X+1}, v{X+1}, v{X+1}
    global_store_short {v(vT2)}, v{X+1}, s[20:21]
    s_mov_b64 exec, -1
    s_cmp_lg_u32 s{sPO}, s{sREG}
    s_cbranch_scc1 L_noep
    v_mov_b32 {v(vT0)}, s{sEPO}
    v_mov_b32 {v(vT1)}, s{sEP}
    s_mov_b64 exec, 1
    global_store_dword {v(vT0)}, {v(vT1)}, s[24:25]
    s_mov_b64 exec, -1
L_noep:
    s_add_u32 s{sCB}, s{sCB}, s{sNB}
    s_cmp_ge_u32 s{sCB}, 16
    s_cbranch_scc1 L_fin
L_task:
    """)
    g(task)
    g(f"""
    s_cmp_eq_u32 s{sFIRST}, 0
    s_mov_b32 s{sFIRST}, 1
    s_cbranch_scc1 L_sibback
    s_branch L_poll
L_retry:
    s_sub_u32 s{sSPIN}, s{sSPIN}, 1
    s_cbranch_scc1 L_got
    s_sub_i32 s{sLOC}, s{sLOC}, 1
    s_cmp_gt_i32 s{sLOC}, 0
    s_cbranch_scc1 L_poll
    s_cmp_lt_i32 s{sLOC}, 0
    s_cbranch_scc1 L_tog
    v_xor_b32 v{G0+3}, s{sXC}, v{G0+3}
    s_add_u32 s{sOWN}, s{sOWN}, 0x200000
    buffer_store_dwordx4 {vr(G0)}, {v(vWS)}, s[24:27], s{sOWN} offen sc1
L_tog:
    s_mov_b32 s{sLOC}, -1
    s_xor_b32 s{sREG}, s{sREG}, 0x200000
    s_xor_b32 s{sPO}, s{sPO}, 0x200000
    s_xor_b32 s{sPO+1}, s{sPO+1}, 0x200000
    s_xor_b32 s{sPO+2}, s{sPO+2}, 0x200000
    s_xor_b32 s{sPO+3}, s{sPO+3}, 0x200000
    s_xor_b32 s{sTAG}, s{sTAG}, s{sXC}
    s_xor_b32 s{sTAGH}, s{sTAGH}, s{sXC}
    v_mov_b32 v{E+3}, s{sTAG}
    v_mov_b32 v{E+7}, s{sTAG}
    v_mov_b32 v{E+11}, s{sTAG}
    v_mov_b32 v{E+15}, s{sTAG}
    s_branch L_poll
L_fin:
    """)
    if a.stamps:
        stamp()
        n = nst[0] + 1
        g(f"""
        s_waitcnt lgkmcnt(0)
        s_lshl_b32 s6, s2, 4
        s_add_u32 s6, s6, s{sI}
        s_lshl_b32 s6, s6, 7
        s_add_u32 s6, s6, 0x1000000
        v_mov_b32 v14, s6
        s_getreg_b32 s6, hwreg(HW_REG_XCC_ID)
        s_mov_b64 exec, 1
        """)
        for k in range(n):
            g(f"v_mov_b32 v15, s{sST+2*k}")
            g(f"global_store_dword v14, v15, s[24:25] offset:{4*k}")
        g(f"""
        v_mov_b32 v15, s6
        global_store_dword v14, v15, s[24:25] offset:120
        s_sub_u32 s6, 0x10000, s{sSPIN}
        s_cmp_lt_i32 s{sLOC}, 0
        s_cselect_b32 s7, 1000, 0
        s_add_u32 s6, s6, s7
        v_mov_b32 v15, s6
        global_store_dword v14, v15, s[24:25] offset:124
        """)
    g("L_end:")
    g("s_endpgm")
    acc = (NV + 3) // 4 * 4
    out = HDR + f"; @launch grid=(256,1,1) block=(512,1,1) lds={LDS}\n"
    out += f""".amdgcn_target "amdgcn-amd-amdhsa--gfx950"
.text
.globl {NAME}_kernel
.p2align 8
.type {NAME}_kernel,@function
{NAME}_kernel:
""" + g.text() + f""".section .rodata,"a"
.p2align 6
.amdhsa_kernel {NAME}_kernel
  .amdhsa_next_free_vgpr {NV}
  .amdhsa_next_free_sgpr 102
  .amdhsa_accum_offset {acc}
  .amdhsa_group_segment_fixed_size 0
  .amdhsa_kernarg_size 64
  .amdhsa_user_sgpr_count 2
  .amdhsa_user_sgpr_kernarg_segment_ptr 1
  .amdhsa_system_sgpr_workgroup_id_x 1
.end_amdhsa_kernel
"""
    return out

if __name__ == "__main__":
    p = argparse.ArgumentParser()
    for k, d in dict(map=0, stamps=0, ch=20, snt=0, nt=1, prio=1, scl=1, early_const=1, fine=0, warm=1, thr=16).items():
        p.add_argument("--" + k, type=int, default=d)
    p.add_argument("-o", default="-")
    a = p.parse_args()
    t = gen(a)
    if a.o == "-": sys.stdout.write(t)
    else: open(a.o, "w").write(t)
```

```python
import sys, argparse, math, struct
from gen import NAME, HDR, f32bits, G

def gen(a):
    g = G()
    CH = a.ch
    KVSIZE = 1028 * 32768
    C = (128 ** -0.5) * math.log2(math.e)
    TBL = 131072
    LDS = TBL + 5376
    EPOFF = 0x600000
    snt = " nt" if a.snt else ""
    kvnt = " nt" if a.nt else ""
    sI, sJ, sHP, sH256 = 28, 29, 30, 31
    sB, sCB, sNB, sREM, sNU, sNXT, sKM, sVM, sSO, sC, sT0, sT1, sOWN, sK0, sCONS, sSPIN, sX0, sX1, sQO, sTAG = range(32, 52)
    sM = 52
    sSIB = 60
    sEP, sTAGN, sTAGH, sEPO = 80, 81, 82, 83
    sMK, sPO, sOO, sFIRST, sXC, sLOC, sDO = 60, 68, 72, 73, 74, 75, 76
    sXD = 52
    sREG = 77
    sST = 84
    nst = [0]
    def stamp():
        if a.stamps:
            k = nst[0]; nst[0] += 1
            assert sST + 2 * k + 1 <= 101
            g(f"s_memrealtime s[{sST+2*k}:{sST+2*k+1}]")
    vL, vT0, vT1, vT2, vT3, vT4, vT5, vSO, vWS, vOUT, vTK, vM, vMC, vAL, vNEG, vT4q, vSW, vSR = range(1, 19)
    ACC, LA, ML, KF = 20, 28, 32, 36
    KD, VD, KR, VR, Q, PA, PK, ONE, S, VF = 52, 56, 60, 64, 72, 88, 96, 98, 100, 104
    E = 120
    G0 = 136
    vPA = 19
    NV = G0 + 4
    def v(i): return f"v{i}"
    def vr(b, n=4): return f"v[{b}:{b+n-1}]"
    stamp()
    g(f"""
    s_load_dwordx4 s[16:19], s[0:1], 24
    s_load_dwordx2 s[8:9], s[0:1], 8
    s_load_dwordx2 s[12:13], s[0:1], 16
    s_load_dwordx2 s[4:5], s[0:1], 0
    s_load_dwordx2 s[24:25], s[0:1], 56
    s_load_dwordx2 s[20:21], s[0:1], 40
    s_cmp_ge_u32 s2, 256
    s_cbranch_scc1 L_end
    v_readfirstlane_b32 s3, v0
    v_and_b32 {v(vL)}, 63, v0
    v_and_b32 {v(vT0)}, 3, v0
    v_lshlrev_b32 {v(vT0)}, 2, {v(vT0)}
    v_lshlrev_b32 {v(vWS)}, 4, v0
    v_and_b32 {v(vT1)}, 0xfff, {v(vWS)}
    s_lshr_b32 s{sI}, s3, 6
    s_lshl_b32 s3, s3, 4
    s_and_b32 s3, s3, 0xfff
    s_add_u32 s3, s3, {TBL}
    s_mov_b32 m0, s3
    s_mov_b32 s10, 0x{KVSIZE:x}
    s_mov_b32 s11, 0x20000
    s_mov_b32 s14, 0x{KVSIZE:x}
    s_mov_b32 s15, 0x20000
    s_mov_b32 s26, 0x400000
    s_mov_b32 s27, 0x20000
    """)
    if a.map == 0:
        g(f"""
        s_and_b32 s{sHP}, s2, 3
        s_lshl_b32 s{sJ}, s2, 3
        s_and_b32 s{sJ}, s{sJ}, 32
        s_lshr_b32 s{sT0}, s2, 3
        s_add_u32 s{sJ}, s{sJ}, s{sT0}
        """)
    else:
        g(f"""
        s_lshr_b32 s{sHP}, s2, 6
        s_and_b32 s{sJ}, s2, 63
        """)
    lanec = f"""
    s_and_b32 s{sT0}, s{sI}, 1
    s_lshl_b32 s{sH256}, s{sHP}, 1
    s_add_u32 s{sH256}, s{sH256}, s{sT0}
    s_lshl_b32 s{sH256}, s{sH256}, 8
    s_lshl_b32 s{sKM}, s{sI}, 14
    s_add_u32 s{sVM}, s{sKM}, 0x2000
    v_lshrrev_b32 {v(vT4q)}, 4, {v(vL)}
    v_and_b32 {v(vT2)}, 15, v0
    v_xor_b32 {v(vT3)}, {v(vT2)}, {v(vT4q)}
    v_lshlrev_b32 {v(vT3)}, 4, {v(vT3)}
    v_lshl_add_u32 v{KR}, {v(vT2)}, 8, {v(vT3)}
    v_add_u32 v{KR}, s{sKM}, v{KR}
    v_lshl_add_u32 v{KD}, {v(vT4q)}, 11, {v(vT3)}
    v_add_u32 v{KD}, s{sH256}, v{KD}
    v_lshlrev_b32 {v(vT3)}, 1, {v(vT4q)}
    v_xor_b32 {v(vT3)}, {v(vT2)}, {v(vT3)}
    v_lshlrev_b32 {v(vT3)}, 4, {v(vT3)}
    v_lshl_add_u32 v{VD}, {v(vT4q)}, 11, {v(vT3)}
    v_add_u32 v{VD}, s{sH256}, v{VD}
    """
    for e in range(1, 4):
        lanec += f"""
        v_xor_b32 v{KD+e}, {e<<6}, v{KD}
        v_add_u32 v{KD+e}, {e*7168}, v{KD+e}
        """
    lanec += f"""
    v_xor_b32 v{VD+1}, 0x80, v{VD}
    v_add_u32 v{VD+2}, {2*7168}, v{VD}
    v_add_u32 v{VD+3}, {3*7168}, v{VD+1}
    v_add_u32 v{VD+1}, 7168, v{VD+1}
    v_add_u32 {v(vT5)}, 1, {v(vL)}
    s_mov_b32 s{sT1}, 0x42700000
    """
    if a.early_const: g(lanec)
    g("s_waitcnt lgkmcnt(0)")
    stamp()
    if a.scl:
        g(f"""
        s_load_dwordx4 s[{sM}:{sM+3}], s[18:19], 0
        global_load_lds_dwordx4 {v(vT1)}, s[16:17]{snt}
        """)
    else:
        g(f"""
        global_load_dword {v(vT0)}, {v(vT0)}, s[18:19]{snt}
        global_load_lds_dwordx4 {v(vT1)}, s[16:17]{snt}
        """)
    if not a.early_const: g(lanec)
    if a.scl:
        g("s_waitcnt lgkmcnt(0)")
        stamp()
        g(f"""
        v_mov_b32 {v(vT0)}, s{sM}
        v_writelane_b32 {v(vT0)}, s{sM+3}, 1
        v_writelane_b32 {v(vT0)}, s{sM+1}, 2
        v_writelane_b32 {v(vT0)}, s{sM+2}, 3
        """)
    else:
        g("s_waitcnt vmcnt(1)")
        stamp()
    cl, nb, pf, cn, cb, x0, x1 = vT0, vT1, vT3, vSO, vTK, vM, vMC
    fq, n_, k_ = vAL, vNEG, vOUT
    g(f"""
    v_add_u32 {v(nb)}, -1, {v(cl)}
    v_ashrrev_i32 {v(nb)}, 4, {v(nb)}
    v_min_u32 {v(nb)}, 0xff, {v(nb)}
    v_add_u32 {v(nb)}, 1, {v(nb)}
    s_nop 1
    v_add_u32_dpp {v(pf)}, {v(nb)}, {v(nb)} row_shr:1 row_mask:0xf bank_mask:0xf bound_ctrl:0
    v_lshlrev_b32 {v(nb)}, 1, {v(nb)}
    v_cvt_f32_u32 {v(fq)}, {v(nb)}
    v_add_u32_dpp {v(pf)}, {v(pf)}, {v(pf)} row_shr:2 row_mask:0xf bank_mask:0xf bound_ctrl:0
    s_nop 1
    v_cvt_f32_u32_dpp {v(cn)}, {v(pf)} quad_perm:[3,3,3,3] row_mask:0xf bank_mask:0xf
    v_cvt_f32_u32 {v(pf)}, {v(pf)}
    v_rcp_f32 {v(cn)}, {v(cn)}
    v_mul_f32 {v(pf)}, s{sT1}, {v(pf)}
    v_fma_f32 {v(cn)}, {v(pf)}, {v(cn)}, 0.5
    v_cvt_u32_f32 {v(cn)}, {v(cn)}
    v_add_u32 {v(cn)}, {v(cn)}, {v(vT5)}
    v_cmp_ge_u32 vcc, s{sJ}, {v(cn)}
    s_nop 0
    v_mov_b32_dpp {v(cb)}, {v(cn)} row_shr:1 row_mask:0xf bank_mask:0xf bound_ctrl:0
    s_and_b32 s{sB}, vcc_lo, 7
    v_sub_u32 {v(n_)}, {v(cn)}, {v(cb)}
    v_sub_u32 {v(k_)}, s{sJ}, {v(cb)}
    v_cvt_f32_u32 {v(x0)}, {v(n_)}
    v_rcp_f32 {v(x0)}, {v(x0)}
    v_add_u32 {v(pf)}, 1, {v(k_)}
    v_mul_f32 {v(fq)}, {v(fq)}, {v(x0)}
    v_cvt_f32_u32 {v(x0)}, {v(k_)}
    v_cvt_f32_u32 {v(x1)}, {v(pf)}
    v_cmp_eq_u32 vcc, {v(pf)}, {v(n_)}
    v_mul_f32 {v(x0)}, {v(x0)}, {v(fq)}
    v_mul_f32 {v(x1)}, {v(x1)}, {v(fq)}
    v_cvt_u32_f32 {v(x0)}, {v(x0)}
    v_cvt_u32_f32 {v(x1)}, {v(x1)}
    s_bcnt1_i32_b32 s{sB}, s{sB}
    v_cndmask_b32 {v(x1)}, {v(x1)}, {v(nb)}, vcc
    v_readlane_b32 s{sX0}, {v(x0)}, s{sB}
    v_readlane_b32 s{sREM}, {v(cl)}, s{sB}
    v_readlane_b32 s{sX1}, {v(x1)}, s{sB}
    v_readlane_b32 s{sCB}, {v(cb)}, s{sB}
    v_readlane_b32 s{sNB}, {v(n_)}, s{sB}
    s_lshl_b32 s{sB}, s{sB}, 2
    s_lshr_b32 s{sB}, 0x2130, s{sB}
    s_and_b32 s{sB}, s{sB}, 3
    s_xor_b32 s{sT0}, s{sX0}, s{sI}
    s_and_b32 s{sT0}, s{sT0}, 1
    s_add_u32 s{sX0}, s{sX0}, s{sT0}
    s_andn2_b32 s{sT0}, s{sI}, 1
    s_add_u32 s{sX0}, s{sX0}, s{sT0}
    s_sub_i32 s{sNU}, s{sX1}, s{sX0}
    s_lshr_b32 s{sX0}, s{sX0}, 1
    s_lshl_b32 s{sT0}, s{sB}, 8
    s_add_u32 s{sT0}, s{sT0}, s{sX0}
    s_lshl_b32 s{sT0}, s{sT0}, 2
    s_add_u32 s{sT0}, s{sT0}, {TBL}
    v_lshl_add_u32 {v(vT0)}, {v(vL)}, 4, s{sT0}
    """)
    if a.fine: stamp()
    g(f"""
    s_waitcnt vmcnt(0)
    s_barrier
    ds_read_b32 {v(vSO)}, {v(vT0)}
    s_add_i32 s{sNU}, s{sNU}, 7
    s_ashr_i32 s{sNU}, s{sNU}, 3
    s_cmp_gt_i32 s{sREM}, 0
    s_cselect_b32 s{sX1}, 0xce800000, 0
    s_lshl_b32 s{sX0}, s{sX0}, 4
    s_sub_i32 s{sREM}, s{sREM}, s{sX0}
    s_lshl_b32 s{sQO}, s{sB}, 13
    s_lshl_b32 s{sT0}, s{sH256}, 2
    s_add_u32 s{sQO}, s{sQO}, s{sT0}
    v_and_b32 {v(vT1)}, 3, v0
    v_lshlrev_b32 {v(vT3)}, 4, {v(vT4q)}
    v_lshl_add_u32 {v(vT3)}, {v(vT1)}, 8, {v(vT3)}
    v_add_u32 {v(vT3)}, s{sQO}, {v(vT3)}
    s_mov_b32 m0, s{sKM}
    s_cmp_lt_i32 s{sNU}, 1
    s_cbranch_scc1 L_issued
    s_waitcnt lgkmcnt(0)
    v_lshlrev_b32 {v(vSO)}, 15, {v(vSO)}
    s_nop 0
    v_readlane_b32 s{sSO}, {v(vSO)}, 0
    v_readlane_b32 s{sT1}, {v(vSO)}, 1
    s_nop 3
    """)
    stamp()
    if a.prio: g("s_setprio 3")
    def dma(srd, offs, so):
        for e in range(4):
            io = f" offset:{e*1024}" if e else ""
            g(f"buffer_load_dwordx4 v{offs+e}, s[{srd}:{srd+3}], s{so} offen{io}{kvnt} lds")
    dma(8, KD, sSO)
    for jj in range(4):
        g(f"global_load_dwordx4 {vr(Q+4*jj)}, {v(vT3)}, s[4:5]" + (f" offset:{64*jj}" if jj else "") + snt)
    g(f"s_mov_b32 m0, s{sVM}")
    g(f"s_nop 0")
    dma(12, VD, sSO)
    if a.prio == 2: g("s_setprio 2")
    g(f"""
    s_cmp_lt_i32 s{sNU}, 2
    s_cbranch_scc1 L_issued
    s_add_u32 s{sT0}, s{sKM}, 0x1000
    s_mov_b32 m0, s{sT0}
    s_add_u32 s{sT0}, s{sVM}, 0x1000
    """)
    dma(8, KD, sT1)
    g(f"s_mov_b32 m0, s{sT0}")
    g(f"s_nop 0")
    dma(12, VD, sT1)
    g("L_issued:")
    if a.prio: g("s_setprio 0")
    stamp()
    g(f"""
    s_lshl_b32 s{sEPO}, s{sHP}, 2
    s_add_u32 s{sEPO}, s{sEPO}, s{sB}
    s_lshl_b32 s{sEPO}, s{sEPO}, 7
    s_add_u32 s{sEPO}, s{sEPO}, {EPOFF + 12}
    s_load_dword s{sEP}, s[24:25], s{sEPO}
    v_lshrrev_b32 {v(vT0)}, 2, {v(vT2)}
    v_lshl_add_u32 {v(vT0)}, {v(vT4q)}, 2, {v(vT0)}
    v_and_b32 {v(vT3)}, 7, {v(vT0)}
    v_lshlrev_b32 {v(vT3)}, 5, {v(vT3)}
    v_lshl_add_u32 {v(vT3)}, {v(vT0)}, 8, {v(vT3)}
    v_lshl_add_u32 {v(vT3)}, {v(vT1)}, 3, {v(vT3)}
    v_add_u32 v{VR}, s{sVM}, {v(vT3)}
    """)
    for i in range(1, 8):
        g(f"v_xor_b32 v{VR+i}, {i<<5}, v{VR}")
    for e in range(1, 4):
        g(f"v_xor_b32 v{KR+e}, {e<<6}, v{KR}")
    g(f"""
    v_lshlrev_b32 {v(vT4q)}, 2, {v(vT4q)}
    v_lshl_add_u32 v{vSW}, {v(vL)}, 4, s{sKM}
    s_and_b32 s{sT0}, s{sI}, 1
    s_lshl_b32 s{sT0}, s{sT0}, 14
    s_lshr_b32 s{sT1}, s{sI}, 1
    s_lshl_b32 s{sT1}, s{sT1}, 10
    s_add_u32 s{sT0}, s{sT0}, s{sT1}
    v_lshl_add_u32 v{vSR}, {v(vL)}, 4, s{sT0}
    v_mov_b32 {v(vNEG)}, s{sX1}
    s_mov_b32 s{sC}, 0x{f32bits(C):08x}
    v_mov_b32 {v(vM)}, 0xce800000
    v_mul_f32 {v(vMC)}, s{sC}, {v(vM)}
    v_mov_b32 v{ONE}, 0x3f803f80
    v_mov_b32 v{ONE+1}, 0x3f803f80
    """)
    for i in range(8): g(f"v_mov_b32 v{ACC+i}, 0")
    for i in range(4): g(f"v_mov_b32 v{LA+i}, 0")
    for i in range(8): g(f"v_mov_b32 v{PA+i}, 0")
    g(f"""
    s_lshl_b32 s{sT0}, s{sHP}, 6
    s_add_u32 s{sOWN}, s{sT0}, s{sJ}
    s_lshl_b32 s{sOWN}, s{sOWN}, 13
    s_getreg_b32 s{sXC}, hwreg(HW_REG_XCC_ID, 0, 3)
    s_lshl_b32 s{sXC}, s{sXC}, 18
    s_add_u32 s{sT0}, s{sT0}, s{sCB}
    s_lshl_b32 s{sT0}, s{sT0}, 13
    s_add_u32 s4, s24, s{sT0}
    s_addc_u32 s5, s25, 0
    s_mov_b32 s6, 0x400000
    s_mov_b32 s7, 0x20000
    s_sub_u32 s{sCB}, s{sJ}, s{sCB}
    s_and_b32 s{sCB}, s{sCB}, 15
    s_mov_b32 s{sREG}, 0
    s_mov_b32 s{sNXT}, 2
    v_lshrrev_b32 {v(vT0)}, 2, {v(vL)}
    v_lshlrev_b32 v{vPA}, 4, {v(vT1)}
    v_lshl_add_u32 v{vPA}, {v(vT0)}, 13, v{vPA}
    v_cmp_gt_u32_e64 s[{sMK}:{sMK+1}], s{sNB}, {v(vT0)}
    v_add_u32 {v(vT0)}, 16, {v(vT0)}
    v_cmp_gt_u32_e64 s[{sMK+2}:{sMK+3}], s{sNB}, {v(vT0)}
    v_add_u32 {v(vT0)}, 16, {v(vT0)}
    v_cmp_gt_u32_e64 s[{sMK+4}:{sMK+5}], s{sNB}, {v(vT0)}
    v_add_u32 {v(vT0)}, 16, {v(vT0)}
    v_cmp_gt_u32_e64 s[{sMK+6}:{sMK+7}], s{sNB}, {v(vT0)}
    v_lshrrev_b32 {v(vOUT)}, 4, {v(vL)}
    v_and_b32 {v(vOUT)}, 2, {v(vOUT)}
    v_lshl_add_u32 {v(vOUT)}, {v(vT1)}, 8, {v(vOUT)}
    s_lshl_b32 s{sQO}, s{sB}, 13
    s_lshl_b32 s{sT0}, s{sHP}, 11
    s_add_u32 s{sQO}, s{sQO}, s{sT0}
    s_waitcnt lgkmcnt(0)
    s_add_u32 s{sEP}, s{sEP}, 0x9e3c0000
    s_and_b32 s{sTAG}, s{sEP}, 0xffe00000
    s_or_b32 s{sTAG}, s{sTAG}, s{sXC}
    s_and_b32 s{sXC}, s{sEP}, 0xfffc0000
    s_xor_b32 s{sXC}, s{sXC}, s{sTAG}
    s_or_b32 s{sTAGN}, s{sTAG}, 0x20000
    s_or_b32 s{sTAGH}, s{sTAG}, 0x3ffff
    """)
    for r in range(4):
        g(f"""
        v_mov_b32 v{E+4*r}, 0
        v_mov_b32 v{E+4*r+1}, 0
        v_mov_b32 v{E+4*r+2}, 0
        v_mov_b32 v{E+4*r+3}, s{sTAG}
        """)
    task = f"""
    s_lshl_b32 s{sT0}, s{sCB}, 3
    s_add_u32 s{sT0}, s{sT0}, s{sI}
    s_lshl_b32 s{sPO}, s{sT0}, 6
    s_add_u32 s{sPO}, s{sPO}, s{sREG}
    s_add_u32 s{sPO+1}, s{sPO}, 0x20000
    s_add_u32 s{sPO+2}, s{sPO}, 0x40000
    s_add_u32 s{sPO+3}, s{sPO}, 0x60000
    s_and_b32 s{sOO}, s{sT0}, 3
    s_lshl_b32 s{sOO}, s{sOO}, 6
    s_and_b32 s{sT1}, s{sT0}, 12
    s_lshl_b32 s{sT1}, s{sT1}, 1
    s_add_u32 s{sOO}, s{sOO}, s{sT1}
    s_and_b32 s{sT1}, s{sT0}, 16
    s_lshl_b32 s{sT1}, s{sT1}, 6
    s_add_u32 s{sOO}, s{sOO}, s{sT1}
    s_and_b32 s{sT1}, s{sT0}, 32
    s_lshr_b32 s{sT1}, s{sT1}, 3
    s_add_u32 s{sOO}, s{sOO}, s{sT1}
    s_and_b32 s{sT1}, s{sT0}, 64
    s_lshr_b32 s{sT1}, s{sT1}, 1
    s_add_u32 s{sOO}, s{sOO}, s{sT1}
    s_add_u32 s{sOO}, s{sOO}, s{sQO}
    """
    g(f"s_mov_b32 s{sFIRST}, 0")
    g("s_branch L_task")
    g(f"""
L_sibback:
    """)
    if a.warm:
        g(f"""
        s_mov_b64 exec, s[{sMK}:{sMK+1}]
        buffer_load_dwordx4 {vr(E)}, v{vPA}, s[4:7], s{sPO} offen sc1
        s_mov_b64 exec, s[{sMK+2}:{sMK+3}]
        s_cbranch_execz L_nowarm
        buffer_load_dwordx4 {vr(E+4)}, v{vPA}, s[4:7], s{sPO+1} offen sc1
L_nowarm:
        s_mov_b64 exec, -1
        """)
    g(f"""
    s_cmp_lt_i32 s{sNU}, 1
    s_cbranch_scc1 L_done
L_loop:
    s_waitcnt vmcnt(12)
    s_cmp_gt_i32 s{sNU}, 1
    s_cbranch_scc1 L_kready
    """)
    g(f"""
    s_waitcnt vmcnt(4)
L_kready:
    """)
    for jj in range(4):
        g(f"ds_read_b128 {vr(KF+4*jj)}, v{KR+jj}")
    g(f"v_readlane_b32 s{sSO}, {v(vSO)}, s{sNXT}")
    g(f"s_mov_b32 m0, s{sKM}")
    for jj in range(4):
        g(f"s_waitcnt lgkmcnt({3-jj})")
        g(f"v_mfma_f32_16x16x32_bf16 {vr(S)}, {vr(KF+4*jj)}, {vr(Q+4*jj)}, " + ("0" if jj == 0 else vr(S)))
    g(f"""
    s_cmp_lt_i32 s{sNU}, 3
    s_cbranch_scc1 L_nok
    """)
    dma(8, KD, sSO)
    g("L_nok:")
    for jj in range(4):
        g(f"v_xor_b32 v{KR+jj}, 0x1000, v{KR+jj}")
    g(f"""
    s_xor_b32 s{sKM}, s{sKM}, 0x1000
    s_mov_b32 m0, s{sVM}
    s_nop 1
    s_cmp_ge_i32 s{sREM}, 16
    s_cbranch_scc1 L_nomask
    v_subrev_u32 {v(vT0)}, s{sREM}, {v(vT4q)}
    """)
    for e in range(4):
        g(f"v_cmp_gt_i32_e64 s[{sM+2*e}:{sM+2*e+1}], {-e}, {v(vT0)}")
    for e in range(4):
        g(f"v_cndmask_b32_e64 v{S+e}, {v(vNEG)}, v{S+e}, s[{sM+2*e}:{sM+2*e+1}]")
    g(f"""
L_nomask:
    v_max3_f32 {v(vM)}, v{S}, v{S+1}, {v(vM)}
    v_max3_f32 {v(vM)}, v{S+2}, v{S+3}, {v(vM)}
    v_mov_b32 {v(vT0)}, {v(vM)}
    s_nop 1
    v_permlane16_swap_b32 {v(vM)}, {v(vT0)}
    v_max_f32 {v(vM)}, {v(vM)}, {v(vT0)}
    v_mov_b32 {v(vT0)}, {v(vM)}
    s_nop 1
    v_permlane32_swap_b32 {v(vM)}, {v(vT0)}
    v_max_f32 {v(vM)}, {v(vM)}, {v(vT0)}
    v_mul_f32 {v(vT0)}, s{sC}, {v(vM)}
    v_sub_f32 {v(vAL)}, {v(vMC)}, {v(vT0)}
    """)
    for e in range(4):
        g(f"v_fma_f32 v{S+e}, v{S+e}, s{sC}, -{v(vT0)}")
    g(f"v_exp_f32 {v(vAL)}, {v(vAL)}")
    for e in range(4):
        g(f"v_exp_f32 v{S+e}, v{S+e}")
    g(f"""
    v_mov_b32 {v(vMC)}, {v(vT0)}
    v_cvt_pk_bf16_f32 v{PK}, v{S}, v{S+1}
    v_cvt_pk_bf16_f32 v{PK+1}, v{S+2}, v{S+3}
    v_mul_f32 v{LA}, {v(vAL)}, v{LA}
    """)
    for i in range(8):
        g(f"v_mul_f32 v{ACC+i}, {v(vAL)}, v{ACC+i}")
    g(f"v_mfma_f32_16x16x16_bf16 {vr(LA)}, v[{ONE}:{ONE+1}], v[{PK}:{PK+1}], {vr(LA)}")
    for aa in range(4):
        for x in range(2):
            g(f"v_mov_b32_dpp v{PA+2*aa+x}, v{PK+x} quad_perm:[0,1,2,3] row_mask:0xf bank_mask:0x{1<<aa:x}")
    g(f"""
    s_waitcnt vmcnt(12)
    s_cmp_gt_i32 s{sNU}, 2
    s_cbranch_scc1 L_vready
    s_waitcnt vmcnt(8)
    s_cmp_gt_i32 s{sNU}, 1
    s_cbranch_scc1 L_vready
    s_waitcnt vmcnt(0)
L_vready:
    """)
    for i in range(8):
        g(f"ds_read_b64_tr_b16 v[{VF+2*i}:{VF+2*i+1}], v{VR+i}")
    for i in range(8):
        aa, uu = i >> 1, i & 1
        g(f"s_waitcnt lgkmcnt({7-i})")
        g(f"v_mfma_f32_16x16x16_bf16 {vr(ACC+4*uu)}, v[{VF+2*i}:{VF+2*i+1}], v[{PA+2*aa}:{PA+2*aa+1}], {vr(ACC+4*uu)}")
    g(f"""
    s_cmp_lt_i32 s{sNU}, 2
    s_cbranch_scc1 L_last
    s_cmp_lt_i32 s{sNU}, 3
    s_cbranch_scc1 L_nov
    """)
    dma(12, VD, sSO)
    g("L_nov:")
    for i in range(8):
        g(f"v_xor_b32 v{VR+i}, 0x1000, v{VR+i}")
    g(f"""
    s_xor_b32 s{sVM}, s{sVM}, 0x1000
    s_sub_i32 s{sNU}, s{sNU}, 1
    s_sub_i32 s{sREM}, s{sREM}, 64
    s_add_u32 s{sNXT}, s{sNXT}, 1
    s_branch L_loop
L_last:
    s_nop 3
L_done:
    """)
    stamp()
    g(f"""
    v_mov_b32 v{ML}, v{LA}
    v_mov_b32 v{ML+1}, {v(vMC)}
    v_add_u32 {v(vT0)}, 0x800, v{vSW}
    v_add_u32 {v(vT1)}, 0x10000, v{vSR}
    ds_write2_b64 v{vSW}, v[{ACC}:{ACC+1}], v[{ML}:{ML+1}] offset0:0 offset1:1
    ds_write2_b64 v{vSW}, v[{ACC+2}:{ACC+3}], v[{ML}:{ML+1}] offset0:128 offset1:129
    ds_write2_b64 {v(vT0)}, v[{ACC+4}:{ACC+5}], v[{ML}:{ML+1}] offset0:0 offset1:1
    ds_write2_b64 {v(vT0)}, v[{ACC+6}:{ACC+7}], v[{ML}:{ML+1}] offset0:128 offset1:129
    """)
    X = KF
    g(f"""
    s_waitcnt lgkmcnt(0)
    s_barrier
    ds_read_b128 {vr(X)}, v{vSR}
    ds_read_b128 {vr(X+4)}, v{vSR} offset:32768
    ds_read_b128 {vr(X+8)}, {v(vT1)}
    ds_read_b128 {vr(X+12)}, {v(vT1)} offset:32768
    """)
    g(f"""
    s_mov_b32 s{sT0}, 0x47ffff80
    v_mov_b32 {v(vT1)}, 0xc7ffff80
    s_mov_b32 s{sSPIN}, 0x10000
    s_mov_b32 s{sK0}, 3
    s_mov_b32 s{sLOC}, {a.thr}
    s_waitcnt lgkmcnt(0)
    """)
    stamp()
    g(f"""
    v_max3_f32 {v(vT0)}, v{X+3}, v{X+7}, v{X+11}
    v_max_f32 {v(vT0)}, {v(vT0)}, v{X+15}
    v_ceil_f32 {v(vT0)}, {v(vT0)}
    v_med3_f32 {v(vT0)}, {v(vT0)}, {v(vT1)}, s{sT0}
    v_sub_f32 v{X+3}, v{X+3}, {v(vT0)}
    v_sub_f32 v{X+7}, v{X+7}, {v(vT0)}
    v_sub_f32 v{X+11}, v{X+11}, {v(vT0)}
    v_sub_f32 v{X+15}, v{X+15}, {v(vT0)}
    v_exp_f32 v{X+3}, v{X+3}
    v_exp_f32 v{X+7}, v{X+7}
    v_exp_f32 v{X+11}, v{X+11}
    v_exp_f32 v{X+15}, v{X+15}
    v_cvt_i32_f32 v{G0+3}, {v(vT0)}
    v_pk_mul_f32 v[{G0}:{G0+1}], v[{X}:{X+1}], v[{X+2}:{X+3}] op_sel:[0,1] op_sel_hi:[1,1]
    v_mul_f32 v{G0+2}, v{X+2}, v{X+3}
    v_add_u32 v{G0+3}, s{sTAGN}, v{G0+3}
    """)
    for k in range(1, 4):
        g(f"v_pk_fma_f32 v[{G0}:{G0+1}], v[{X+4*k}:{X+4*k+1}], v[{X+4*k+2}:{X+4*k+3}], v[{G0}:{G0+1}] op_sel:[0,1,0] op_sel_hi:[1,1,1]")
        g(f"v_fmac_f32 v{G0+2}, v{X+4*k+2}, v{X+4*k+3}")
    g(f"""
    buffer_store_dwordx4 {vr(G0)}, {v(vWS)}, s[24:27], s{sOWN} offen
L_poll:
    """)
    for r in range(4):
        g(f"""
        s_mov_b64 exec, s[{sMK+2*r}:{sMK+2*r+1}]
        """ + (f"s_cbranch_execz L_pe" if r else "") + f"""
        buffer_load_dwordx4 {vr(E+4*r)}, v{vPA}, s[4:7], s{sPO+r} offen sc1
        """)
    n0, n1, n2, n3 = E + 3, E + 7, E + 11, E + 15
    W = X + 8
    g(f"""
L_pe:
    s_mov_b64 exec, -1
    s_waitcnt vmcnt(0)
    v_max3_u32 {v(vT0)}, v{n0}, v{n1}, v{n2}
    v_min3_u32 {v(vT2)}, v{n0}, v{n1}, v{n2}
    v_max_u32 {v(vT0)}, {v(vT0)}, v{n3}
    v_min_u32 {v(vT2)}, {v(vT2)}, v{n3}
    v_cmp_lt_u32 vcc, s{sTAGH}, {v(vT0)}
    v_cmp_gt_u32_e64 s[{sM}:{sM+1}], s{sTAG}, {v(vT2)}
    v_max_u32_dpp {v(vT0)}, {v(vT0)}, {v(vT0)} row_ror:4 row_mask:0xf bank_mask:0xf
    s_or_b64 vcc, vcc, s[{sM}:{sM+1}]
    s_cbranch_vccnz L_retry
L_got:
    {"s_memrealtime s[%d:%d]" % (sST+2*nst[0]+2, sST+2*nst[0]+3) if a.stamps else ""}
    v_max_u32_dpp {v(vT0)}, {v(vT0)}, {v(vT0)} row_ror:8 row_mask:0xf bank_mask:0xf
    v_mov_b32 {v(vT1)}, {v(vT0)}
    s_nop 1
    v_permlane16_swap_b32 {v(vT0)}, {v(vT1)}
    v_max_u32 {v(vT0)}, {v(vT0)}, {v(vT1)}
    v_mov_b32 {v(vT1)}, {v(vT0)}
    s_nop 1
    v_permlane32_swap_b32 {v(vT0)}, {v(vT1)}
    v_max_u32 {v(vT0)}, {v(vT0)}, {v(vT1)}
    v_sub_u32 v{W}, v{n0}, {v(vT0)}
    v_sub_u32 v{W+1}, v{n1}, {v(vT0)}
    v_sub_u32 v{W+2}, v{n2}, {v(vT0)}
    v_sub_u32 v{W+3}, v{n3}, {v(vT0)}
    v_ldexp_f32 v{W}, 1.0, v{W}
    v_ldexp_f32 v{W+1}, 1.0, v{W+1}
    v_ldexp_f32 v{W+2}, 1.0, v{W+2}
    v_ldexp_f32 v{W+3}, 1.0, v{W+3}
    v_mul_f32 v{X+2}, v{E+2}, v{W}
    v_pk_mul_f32 v[{X}:{X+1}], v[{E}:{E+1}], v[{W}:{W+1}] op_sel:[0,0] op_sel_hi:[1,0]
    v_fmac_f32 v{X+2}, v{E+6}, v{W+1}
    v_pk_fma_f32 v[{X}:{X+1}], v[{E+4}:{E+5}], v[{W}:{W+1}], v[{X}:{X+1}] op_sel:[0,1,0] op_sel_hi:[1,1,1]
    v_fmac_f32 v{X+2}, v{E+10}, v{W+2}
    v_pk_fma_f32 v[{X}:{X+1}], v[{E+8}:{E+9}], v[{W+2}:{W+3}], v[{X}:{X+1}] op_sel:[0,0,0] op_sel_hi:[1,0,1]
    v_fmac_f32 v{X+2}, v{E+14}, v{W+3}
    v_pk_fma_f32 v[{X}:{X+1}], v[{E+12}:{E+13}], v[{W+2}:{W+3}], v[{X}:{X+1}] op_sel:[0,1,0] op_sel_hi:[1,1,1]
    v_mov_b32 v{X+3}, v{X+2}
    v_add_u32 {v(vT2)}, s{sOO}, {v(vOUT)}
    s_nop 0
    v_permlane32_swap_b32 v{X}, v{X+1}
    v_permlane32_swap_b32 v{X+2}, v{X+3}
    v_add_f32 v{X}, v{X}, v{X+1}
    v_add_f32 v{X+2}, v{X+2}, v{X+3}
    s_nop 1
    v_permlane16_swap_b32 v{X}, v{X+2}
    v_add_f32 v{X}, v{X}, v{X+2}
    s_nop 1
    v_add_f32_dpp v{X}, v{X}, v{X} row_ror:4 row_mask:0xf bank_mask:0xf
    s_nop 1
    v_add_f32_dpp v{X}, v{X}, v{X} row_ror:8 row_mask:0xf bank_mask:0xf
    v_rcp_f32 v{X+1}, v{X}
    v_cmp_u_f32 vcc, v{X}, v{X}
    v_mov_b32 v{X+2}, v{X+1}
    s_cbranch_vccz L_clean
    s_sub_u32 s{sK0}, s{sK0}, 1
    s_cbranch_scc0 L_poll
L_clean:
    s_nop 0
    v_permlane16_swap_b32 v{X+1}, v{X}
    v_mul_f32 v{X+1}, v{X+1}, v{X+2}
    s_mov_b32 exec_lo, 0x000f0000
    s_mov_b32 exec_hi, 0x000f0000
    v_cvt_pk_bf16_f32 v{X+1}, v{X+1}, v{X+1}
    global_store_short {v(vT2)}, v{X+1}, s[20:21]
    s_mov_b64 exec, -1
    s_cmp_lg_u32 s{sPO}, s{sREG}
    s_cbranch_scc1 L_noep
    v_mov_b32 {v(vT0)}, s{sEPO}
    v_mov_b32 {v(vT1)}, s{sEP}
    s_mov_b64 exec, 1
    global_store_dword {v(vT0)}, {v(vT1)}, s[24:25]
    s_mov_b64 exec, -1
L_noep:
    s_add_u32 s{sCB}, s{sCB}, s{sNB}
    s_cmp_ge_u32 s{sCB}, 16
    s_cbranch_scc1 L_fin
L_task:
    """)
    g(task)
    g(f"""
    s_cmp_eq_u32 s{sFIRST}, 0
    s_mov_b32 s{sFIRST}, 1
    s_cbranch_scc1 L_sibback
    s_branch L_poll
L_retry:
    s_sub_u32 s{sSPIN}, s{sSPIN}, 1
    s_cbranch_scc1 L_got
    s_sub_i32 s{sLOC}, s{sLOC}, 1
    s_cmp_gt_i32 s{sLOC}, 0
    s_cbranch_scc1 L_poll
    s_cmp_lt_i32 s{sLOC}, 0
    s_cbranch_scc1 L_tog
    v_xor_b32 v{G0+3}, s{sXC}, v{G0+3}
    s_add_u32 s{sOWN}, s{sOWN}, 0x200000
    buffer_store_dwordx4 {vr(G0)}, {v(vWS)}, s[24:27], s{sOWN} offen sc1
L_tog:
    s_mov_b32 s{sLOC}, -1
    s_xor_b32 s{sREG}, s{sREG}, 0x200000
    s_xor_b32 s{sPO}, s{sPO}, 0x200000
    s_xor_b32 s{sPO+1}, s{sPO+1}, 0x200000
    s_xor_b32 s{sPO+2}, s{sPO+2}, 0x200000
    s_xor_b32 s{sPO+3}, s{sPO+3}, 0x200000
    s_xor_b32 s{sTAG}, s{sTAG}, s{sXC}
    s_xor_b32 s{sTAGH}, s{sTAGH}, s{sXC}
    v_mov_b32 v{E+3}, s{sTAG}
    v_mov_b32 v{E+7}, s{sTAG}
    v_mov_b32 v{E+11}, s{sTAG}
    v_mov_b32 v{E+15}, s{sTAG}
    s_branch L_poll
L_fin:
    """)
    if a.amp:
        stamp()
        ia, ib = a.amp // 10, a.amp % 10
        g(f"""
        s_waitcnt lgkmcnt(0)
        s_cmp_lg_u32 s2, {a.ampwg}
        s_cbranch_scc1 L_end
        s_cmp_lg_u32 s{sI}, 0
        s_cbranch_scc1 L_end
        s_sub_u32 s6, s{sST+2*ib}, s{sST+2*ia}
        s_mul_i32 s6, s6, 10
        s_min_u32 s6, s6, 50000
        s_add_u32 s6, s6, s{sST+14}
L_spin:
        s_memrealtime s[2:3]
        s_waitcnt lgkmcnt(0)
        s_sub_u32 s7, s2, s6
        s_cmp_lt_i32 s7, 0
        s_cbranch_scc1 L_spin
        """)
    elif a.stamps:
        stamp()
        n = nst[0] + 1
        g(f"""
        s_waitcnt lgkmcnt(0)
        s_lshl_b32 s6, s2, 4
        s_add_u32 s6, s6, s{sI}
        s_lshl_b32 s6, s6, 7
        s_add_u32 s6, s6, 0x1000000
        v_mov_b32 v14, s6
        s_getreg_b32 s6, hwreg(HW_REG_XCC_ID)
        s_mov_b64 exec, 1
        """)
        for k in range(n):
            g(f"v_mov_b32 v15, s{sST+2*k}")
            g(f"global_store_dword v14, v15, s[24:25] offset:{4*k}")
        g(f"""
        v_mov_b32 v15, s6
        global_store_dword v14, v15, s[24:25] offset:120
        s_sub_u32 s6, 0x10000, s{sSPIN}
        s_cmp_lt_i32 s{sLOC}, 0
        s_cselect_b32 s7, 1000, 0
        s_add_u32 s6, s6, s7
        v_mov_b32 v15, s6
        global_store_dword v14, v15, s[24:25] offset:124
        """)
    g("L_end:")
    g("s_endpgm")
    acc = (NV + 3) // 4 * 4
    out = HDR + f"; @launch grid=(256,1,1) block=(512,1,1) lds={LDS}\n"
    out += f""".amdgcn_target "amdgcn-amd-amdhsa--gfx950"
.text
.globl {NAME}_kernel
.p2align 8
.type {NAME}_kernel,@function
{NAME}_kernel:
""" + g.text() + f""".section .rodata,"a"
.p2align 6
.amdhsa_kernel {NAME}_kernel
  .amdhsa_next_free_vgpr {NV}
  .amdhsa_next_free_sgpr 102
  .amdhsa_accum_offset {acc}
  .amdhsa_group_segment_fixed_size 0
  .amdhsa_kernarg_size 64
  .amdhsa_user_sgpr_count 2
  .amdhsa_user_sgpr_kernarg_segment_ptr 1
  .amdhsa_system_sgpr_workgroup_id_x 1
.end_amdhsa_kernel
"""
    return out

if __name__ == "__main__":
    p = argparse.ArgumentParser()
    for k, d in dict(map=0, stamps=0, ch=20, snt=0, nt=1, prio=1, scl=1, early_const=1, fine=0, warm=1, thr=16, amp=0, ampwg=0).items():
        p.add_argument("--" + k, type=int, default=d)
    p.add_argument("-o", default="-")
    a = p.parse_args()
    if a.amp: a.stamps = 1
    t = gen(a)
    if a.o == "-": sys.stdout.write(t)
    else: open(a.o, "w").write(t)
```

```python
import sys, argparse, math, struct
from gen import NAME, HDR, f32bits, G

def gen(a):
    g = G()
    CH = a.ch
    KVSIZE = 1028 * 32768
    C = (128 ** -0.5) * math.log2(math.e)
    TBL = 131072
    LDS = TBL + 5376
    EPOFF = 0x600000
    snt = " nt" if a.snt else ""
    kvnt = ["", " nt", " sc1 nt", " sc0 sc1 nt", " sc0 nt"][a.nt]
    sI, sJ, sHP, sH256 = 28, 29, 30, 31
    sB, sCB, sNB, sREM, sNU, sNXT, sKM, sVM, sSO, sC, sT0, sT1, sOWN, sK0, sCONS, sSPIN, sX0, sX1, sQO, sTAG = range(32, 52)
    sM = 52
    sSIB = 60
    sEP, sTAGN, sTAGH, sEPO = 80, 81, 82, 83
    sMK, sPO, sOO, sFIRST, sXC, sLOC, sDO = 60, 68, 72, 73, 74, 75, 76
    sXD = 52
    sREG = 77
    sST = 84
    nst = [0]
    def stamp():
        if a.stamps:
            k = nst[0]; nst[0] += 1
            assert sST + 2 * k + 1 <= 101
            g(f"s_memrealtime s[{sST+2*k}:{sST+2*k+1}]")
    vL, vT0, vT1, vT2, vT3, vT4, vT5, vSO, vWS, vOUT, vTK, vM, vMC, vAL, vNEG, vT4q, vSW, vSR = range(1, 19)
    ACC, LA, ML, KF = 20, 28, 32, 36
    KD, VD, KR, VR, Q, PA, PK, ONE, S, VF = 52, 56, 60, 64, 72, 88, 96, 98, 100, 104
    E = 120
    G0 = 136
    vPA = 19
    JK = G0 + 4
    NV = JK + 4
    def v(i): return f"v{i}"
    def vr(b, n=4): return f"v[{b}:{b+n-1}]"
    stamp()
    g(f"""
    s_load_dwordx4 s[16:19], s[0:1], 24
    s_load_dwordx2 s[8:9], s[0:1], 8
    s_load_dwordx2 s[12:13], s[0:1], 16
    s_load_dwordx2 s[4:5], s[0:1], 0
    s_load_dwordx2 s[24:25], s[0:1], 56
    s_load_dwordx2 s[20:21], s[0:1], 40
    s_cmp_ge_u32 s2, 256
    s_cbranch_scc1 L_end
    v_readfirstlane_b32 s3, v0
    """)
    if a.pf:
        g("""
        s_cmpk_eq_u32 s3, 320
        s_cbranch_scc1 L_pad0
        s_cmpk_eq_u32 s3, 384
        s_cbranch_scc1 L_pad1
        s_cmpk_eq_u32 s3, 448
        s_cbranch_scc1 L_pad2
L_pfback:
        """)
    g(f"""
    v_and_b32 {v(vL)}, 63, v0
    v_and_b32 {v(vT0)}, 3, v0
    v_lshlrev_b32 {v(vT0)}, 2, {v(vT0)}
    v_lshlrev_b32 {v(vWS)}, 4, v0
    v_and_b32 {v(vT1)}, 0xfff, {v(vWS)}
    s_lshr_b32 s{sI}, s3, 6
    s_lshl_b32 s3, s3, 4
    s_and_b32 s3, s3, 0xfff
    s_add_u32 s3, s3, {TBL}
    s_mov_b32 m0, s3
    s_mov_b32 s10, 0x{KVSIZE:x}
    s_mov_b32 s11, 0x20000
    s_mov_b32 s14, 0x{KVSIZE:x}
    s_mov_b32 s15, 0x20000
    s_mov_b32 s26, 0x400000
    s_mov_b32 s27, 0x20000
    """)
    if a.map == 0:
        g(f"""
        s_and_b32 s{sHP}, s2, 3
        s_lshl_b32 s{sJ}, s2, 3
        s_and_b32 s{sJ}, s{sJ}, 32
        s_lshr_b32 s{sT0}, s2, 3
        s_add_u32 s{sJ}, s{sJ}, s{sT0}
        """)
    else:
        g(f"""
        s_lshr_b32 s{sHP}, s2, 6
        s_and_b32 s{sJ}, s2, 63
        """)
    lanec = f"""
    s_and_b32 s{sT0}, s{sI}, 1
    s_lshl_b32 s{sH256}, s{sHP}, 1
    s_add_u32 s{sH256}, s{sH256}, s{sT0}
    s_lshl_b32 s{sH256}, s{sH256}, 8
    s_lshl_b32 s{sKM}, s{sI}, 14
    s_add_u32 s{sVM}, s{sKM}, 0x2000
    v_lshrrev_b32 {v(vT4q)}, 4, {v(vL)}
    v_and_b32 {v(vT2)}, 15, v0
    v_xor_b32 {v(vT3)}, {v(vT2)}, {v(vT4q)}
    v_lshlrev_b32 {v(vT3)}, 4, {v(vT3)}
    v_lshl_add_u32 v{KR}, {v(vT2)}, 8, {v(vT3)}
    v_add_u32 v{KR}, s{sKM}, v{KR}
    v_lshl_add_u32 v{KD}, {v(vT4q)}, 11, {v(vT3)}
    v_add_u32 v{KD}, s{sH256}, v{KD}
    v_lshlrev_b32 {v(vT3)}, 1, {v(vT4q)}
    v_xor_b32 {v(vT3)}, {v(vT2)}, {v(vT3)}
    v_lshlrev_b32 {v(vT3)}, 4, {v(vT3)}
    v_lshl_add_u32 v{VD}, {v(vT4q)}, 11, {v(vT3)}
    v_add_u32 v{VD}, s{sH256}, v{VD}
    """
    for e in range(1, 4):
        lanec += f"""
        v_xor_b32 v{KD+e}, {e<<6}, v{KD}
        v_add_u32 v{KD+e}, {e*7168}, v{KD+e}
        """
    lanec += f"""
    v_xor_b32 v{VD+1}, 0x80, v{VD}
    v_add_u32 v{VD+2}, {2*7168}, v{VD}
    v_add_u32 v{VD+3}, {3*7168}, v{VD+1}
    v_add_u32 v{VD+1}, 7168, v{VD+1}
    v_add_u32 {v(vT5)}, 1, {v(vL)}
    s_mov_b32 s{sT1}, 0x42700000
    """
    shadow = f"""
    v_and_b32 {v(vT4)}, 3, v0
    v_lshrrev_b32 {v(vT0)}, 2, {v(vT2)}
    v_lshl_add_u32 {v(vT0)}, {v(vT4q)}, 2, {v(vT0)}
    v_and_b32 {v(vT3)}, 7, {v(vT0)}
    v_lshlrev_b32 {v(vT3)}, 5, {v(vT3)}
    v_lshl_add_u32 {v(vT3)}, {v(vT0)}, 8, {v(vT3)}
    v_lshl_add_u32 {v(vT3)}, {v(vT4)}, 3, {v(vT3)}
    v_add_u32 v{VR}, s{sVM}, {v(vT3)}
    """ + "".join(f"v_mov_b32 v{ACC+i}, 0\n" for i in range(8 if a.lw != 3 else 4))
    if a.early_const: g(lanec)
    g("s_waitcnt lgkmcnt(0)")
    stamp()
    if a.scl:
        g(f"""
        s_load_dwordx4 s[{sM}:{sM+3}], s[18:19], 0
        s_cmp_ge_u32 s{sI}, 4
        s_cbranch_scc1 L_notbl
        global_load_lds_dwordx4 {v(vT1)}, s[16:17]{snt}
L_notbl:
        """)
        if a.lw == 3:
            g(f"""
            s_lshl_b32 s{sOWN}, s{sHP}, 6
            s_add_u32 s{sOWN}, s{sOWN}, s{sJ}
            s_lshl_b32 s{sOWN}, s{sOWN}, 13
            buffer_load_dwordx4 {vr(JK)}, {v(vWS)}, s[24:27], s{sOWN} offen sc1
            """)
        g(shadow)
        if a.pf:
            g(f"""
            s_branch L_math
            .fill ({NAME}_kernel + 0x200 - .) / 4, 4, 0xbf800000
L_pad0:
            s_branch L_pfback
L_math:
            """)
    else:
        g(f"""
        global_load_dword {v(vT0)}, {v(vT0)}, s[18:19]{snt}
        global_load_lds_dwordx4 {v(vT1)}, s[16:17]{snt}
        """)
    if not a.early_const: g(lanec)
    if a.scl:
        g("s_waitcnt lgkmcnt(0)")
        stamp()
        g(f"""
        v_mov_b32 {v(vT0)}, s{sM}
        v_writelane_b32 {v(vT0)}, s{sM+3}, 1
        v_writelane_b32 {v(vT0)}, s{sM+1}, 2
        v_writelane_b32 {v(vT0)}, s{sM+2}, 3
        """)
    else:
        g("s_waitcnt vmcnt(1)")
        stamp()
    cl, nb, pf, cn, cb, x0, x1 = vT0, vT1, vT3, vSO, vTK, vM, vMC
    fq, n_, k_ = vAL, vNEG, vOUT
    g(f"""
    v_add_u32 {v(nb)}, -1, {v(cl)}
    v_ashrrev_i32 {v(nb)}, 4, {v(nb)}
    v_min_u32 {v(nb)}, 0xff, {v(nb)}
    v_add_u32 {v(nb)}, 1, {v(nb)}
    s_nop 1
    v_add_u32_dpp {v(pf)}, {v(nb)}, {v(nb)} row_shr:1 row_mask:0xf bank_mask:0xf bound_ctrl:0
    v_lshlrev_b32 {v(nb)}, 1, {v(nb)}
    v_cvt_f32_u32 {v(fq)}, {v(nb)}
    v_add_u32_dpp {v(pf)}, {v(pf)}, {v(pf)} row_shr:2 row_mask:0xf bank_mask:0xf bound_ctrl:0
    s_nop 1
    v_cvt_f32_u32_dpp {v(cn)}, {v(pf)} quad_perm:[3,3,3,3] row_mask:0xf bank_mask:0xf
    v_cvt_f32_u32 {v(pf)}, {v(pf)}
    v_rcp_f32 {v(cn)}, {v(cn)}
    v_mul_f32 {v(pf)}, s{sT1}, {v(pf)}
    v_fma_f32 {v(cn)}, {v(pf)}, {v(cn)}, 0.5
    v_cvt_u32_f32 {v(cn)}, {v(cn)}
    v_add_u32 {v(cn)}, {v(cn)}, {v(vT5)}
    v_cmp_ge_u32 vcc, s{sJ}, {v(cn)}
    s_nop 0
    v_mov_b32_dpp {v(cb)}, {v(cn)} row_shr:1 row_mask:0xf bank_mask:0xf bound_ctrl:0
    s_and_b32 s{sB}, vcc_lo, 7
    v_sub_u32 {v(n_)}, {v(cn)}, {v(cb)}
    v_sub_u32 {v(k_)}, s{sJ}, {v(cb)}
    v_cvt_f32_u32 {v(x0)}, {v(n_)}
    v_rcp_f32 {v(x0)}, {v(x0)}
    v_add_u32 {v(pf)}, 1, {v(k_)}
    v_mul_f32 {v(fq)}, {v(fq)}, {v(x0)}
    v_cvt_f32_u32 {v(x0)}, {v(k_)}
    v_cvt_f32_u32 {v(x1)}, {v(pf)}
    v_cmp_eq_u32 vcc, {v(pf)}, {v(n_)}
    v_mul_f32 {v(x0)}, {v(x0)}, {v(fq)}
    v_mul_f32 {v(x1)}, {v(x1)}, {v(fq)}
    v_cvt_u32_f32 {v(x0)}, {v(x0)}
    v_cvt_u32_f32 {v(x1)}, {v(x1)}
    s_bcnt1_i32_b32 s{sB}, s{sB}
    v_cndmask_b32 {v(x1)}, {v(x1)}, {v(nb)}, vcc
    v_readlane_b32 s{sX0}, {v(x0)}, s{sB}
    v_readlane_b32 s{sREM}, {v(cl)}, s{sB}
    v_readlane_b32 s{sX1}, {v(x1)}, s{sB}
    v_readlane_b32 s{sCB}, {v(cb)}, s{sB}
    v_readlane_b32 s{sNB}, {v(n_)}, s{sB}
    s_lshl_b32 s{sB}, s{sB}, 2
    s_lshr_b32 s{sB}, 0x2130, s{sB}
    s_and_b32 s{sB}, s{sB}, 3
    s_xor_b32 s{sT0}, s{sX0}, s{sI}
    s_and_b32 s{sT0}, s{sT0}, 1
    s_add_u32 s{sX0}, s{sX0}, s{sT0}
    s_andn2_b32 s{sT0}, s{sI}, 1
    s_add_u32 s{sX0}, s{sX0}, s{sT0}
    s_sub_i32 s{sNU}, s{sX1}, s{sX0}
    s_lshr_b32 s{sX0}, s{sX0}, 1
    s_lshl_b32 s{sT0}, s{sB}, 8
    s_add_u32 s{sT0}, s{sT0}, s{sX0}
    s_lshl_b32 s{sT0}, s{sT0}, 2
    s_add_u32 s{sT0}, s{sT0}, {TBL}
    v_lshl_add_u32 {v(vT0)}, {v(vL)}, 4, s{sT0}
    """)
    if a.fine: stamp()
    g(f"""
    s_waitcnt vmcnt({1 if a.lw == 3 else 0})
    s_barrier
    ds_read_b32 {v(vSO)}, {v(vT0)}
    s_add_i32 s{sNU}, s{sNU}, 7
    s_ashr_i32 s{sNU}, s{sNU}, 3
    s_cmp_gt_i32 s{sREM}, 0
    s_cselect_b32 s{sX1}, 0xce800000, 0
    s_lshl_b32 s{sX0}, s{sX0}, 4
    s_sub_i32 s{sREM}, s{sREM}, s{sX0}
    s_lshl_b32 s{sQO}, s{sB}, 13
    s_lshl_b32 s{sT0}, s{sH256}, 2
    s_add_u32 s{sQO}, s{sQO}, s{sT0}
    v_and_b32 {v(vT1)}, 3, v0
    v_lshlrev_b32 {v(vT3)}, 4, {v(vT4q)}
    v_lshl_add_u32 {v(vT3)}, {v(vT1)}, 8, {v(vT3)}
    v_add_u32 {v(vT3)}, s{sQO}, {v(vT3)}
    s_mov_b32 m0, s{sKM}
    s_cmp_lt_i32 s{sNU}, 1
    s_cbranch_scc1 L_issued
    s_waitcnt lgkmcnt(0)
    v_lshlrev_b32 {v(vSO)}, 15, {v(vSO)}
    s_nop 0
    v_readlane_b32 s{sSO}, {v(vSO)}, 0
    v_readlane_b32 s{sT1}, {v(vSO)}, 1
    s_nop 3
    """)
    stamp()
    if a.prio: g("s_setprio 3")
    def dma(srd, offs, so):
        for e in range(4):
            io = f" offset:{e*1024}" if e else ""
            g(f"buffer_load_dwordx4 v{offs+e}, s[{srd}:{srd+3}], s{so} offen{io}{kvnt} lds")
    dma(8, KD, sSO)
    for jj in range(4):
        g(f"global_load_dwordx4 {vr(Q+4*jj)}, {v(vT3)}, s[4:5]" + (f" offset:{64*jj}" if jj else "") + snt)
    g(f"s_mov_b32 m0, s{sVM}")
    g(f"s_nop 0")
    dma(12, VD, sSO)
    if a.prio == 2: g("s_setprio 2")
    g(f"""
    s_cmp_lt_i32 s{sNU}, 2
    s_cbranch_scc1 L_issued
    s_add_u32 s{sT0}, s{sKM}, 0x1000
    s_mov_b32 m0, s{sT0}
    s_add_u32 s{sT0}, s{sVM}, 0x1000
    """)
    dma(8, KD, sT1)
    g(f"s_mov_b32 m0, s{sT0}")
    g(f"s_nop 0")
    dma(12, VD, sT1)
    g("L_issued:")
    if a.prio: g("s_setprio 0")
    stamp()
    g(f"""
    s_lshl_b32 s{sEPO}, s{sHP}, 2
    s_add_u32 s{sEPO}, s{sEPO}, s{sB}
    s_lshl_b32 s{sEPO}, s{sEPO}, 7
    s_add_u32 s{sEPO}, s{sEPO}, {EPOFF + 12}
    s_load_dword s{sEP}, s[24:25], s{sEPO}
    """)
    for i in range(1, 8):
        g(f"v_xor_b32 v{VR+i}, {i<<5}, v{VR}")
    for e in range(1, 4):
        g(f"v_xor_b32 v{KR+e}, {e<<6}, v{KR}")
    g(f"""
    v_lshlrev_b32 {v(vT4q)}, 2, {v(vT4q)}
    v_lshl_add_u32 v{vSW}, {v(vL)}, 4, s{sKM}
    s_and_b32 s{sT0}, s{sI}, 1
    s_lshl_b32 s{sT0}, s{sT0}, 14
    s_lshr_b32 s{sT1}, s{sI}, 1
    s_lshl_b32 s{sT1}, s{sT1}, 10
    s_add_u32 s{sT0}, s{sT0}, s{sT1}
    v_lshl_add_u32 v{vSR}, {v(vL)}, 4, s{sT0}
    v_mov_b32 {v(vNEG)}, s{sX1}
    s_mov_b32 s{sC}, 0x{f32bits(C):08x}
    v_mov_b32 {v(vM)}, 0xce800000
    v_mul_f32 {v(vMC)}, s{sC}, {v(vM)}
    v_mov_b32 v{ONE}, 0x3f803f80
    v_mov_b32 v{ONE+1}, 0x3f803f80
    """)
    if a.lw == 3:
        for i in range(4, 8): g(f"v_mov_b32 v{ACC+i}, 0")
    for i in range(4): g(f"v_mov_b32 v{LA+i}, 0")
    for i in range(8): g(f"v_mov_b32 v{PA+i}, 0")
    g(f"""
    s_lshl_b32 s{sT0}, s{sHP}, 6
    s_add_u32 s{sOWN}, s{sT0}, s{sJ}
    s_lshl_b32 s{sOWN}, s{sOWN}, 13
    s_getreg_b32 s{sXC}, hwreg(HW_REG_XCC_ID, 0, 3)
    s_lshl_b32 s{sXC}, s{sXC}, 18
    s_add_u32 s{sT0}, s{sT0}, s{sCB}
    s_lshl_b32 s{sT0}, s{sT0}, 13
    s_add_u32 s4, s24, s{sT0}
    s_addc_u32 s5, s25, 0
    s_mov_b32 s6, 0x400000
    s_mov_b32 s7, 0x20000
    s_sub_u32 s{sCB}, s{sJ}, s{sCB}
    s_and_b32 s{sCB}, s{sCB}, 15
    s_mov_b32 s{sREG}, 0
    s_mov_b32 s{sNXT}, 2
    v_lshrrev_b32 {v(vT0)}, 2, {v(vL)}
    v_lshlrev_b32 v{vPA}, 4, {v(vT1)}
    v_lshl_add_u32 v{vPA}, {v(vT0)}, 13, v{vPA}
    v_cmp_gt_u32_e64 s[{sMK}:{sMK+1}], s{sNB}, {v(vT0)}
    v_add_u32 {v(vT0)}, 16, {v(vT0)}
    v_cmp_gt_u32_e64 s[{sMK+2}:{sMK+3}], s{sNB}, {v(vT0)}
    v_add_u32 {v(vT0)}, 16, {v(vT0)}
    v_cmp_gt_u32_e64 s[{sMK+4}:{sMK+5}], s{sNB}, {v(vT0)}
    v_add_u32 {v(vT0)}, 16, {v(vT0)}
    v_cmp_gt_u32_e64 s[{sMK+6}:{sMK+7}], s{sNB}, {v(vT0)}
    v_lshrrev_b32 {v(vOUT)}, 4, {v(vL)}
    v_and_b32 {v(vOUT)}, 2, {v(vOUT)}
    v_lshl_add_u32 {v(vOUT)}, {v(vT1)}, 8, {v(vOUT)}
    s_lshl_b32 s{sQO}, s{sB}, 13
    s_lshl_b32 s{sT0}, s{sHP}, 11
    s_add_u32 s{sQO}, s{sQO}, s{sT0}
    s_waitcnt lgkmcnt(0)
    s_add_u32 s{sEP}, s{sEP}, 0x9e3c0000
    s_and_b32 s{sTAG}, s{sEP}, 0xffe00000
    s_or_b32 s{sTAG}, s{sTAG}, s{sXC}
    s_and_b32 s{sXC}, s{sEP}, 0xfffc0000
    s_xor_b32 s{sXC}, s{sXC}, s{sTAG}
    s_or_b32 s{sTAGN}, s{sTAG}, 0x20000
    s_or_b32 s{sTAGH}, s{sTAG}, 0x3ffff
    """)
    for r in range(4):
        g(f"""
        v_mov_b32 v{E+4*r}, 0
        v_mov_b32 v{E+4*r+1}, 0
        v_mov_b32 v{E+4*r+2}, 0
        v_mov_b32 v{E+4*r+3}, s{sTAG}
        """)
    task = f"""
    s_lshl_b32 s{sT0}, s{sCB}, 3
    s_add_u32 s{sT0}, s{sT0}, s{sI}
    s_lshl_b32 s{sPO}, s{sT0}, 6
    s_add_u32 s{sPO}, s{sPO}, s{sREG}
    s_add_u32 s{sPO+1}, s{sPO}, 0x20000
    s_add_u32 s{sPO+2}, s{sPO}, 0x40000
    s_add_u32 s{sPO+3}, s{sPO}, 0x60000
    s_and_b32 s{sOO}, s{sT0}, 3
    s_lshl_b32 s{sOO}, s{sOO}, 6
    s_and_b32 s{sT1}, s{sT0}, 12
    s_lshl_b32 s{sT1}, s{sT1}, 1
    s_add_u32 s{sOO}, s{sOO}, s{sT1}
    s_and_b32 s{sT1}, s{sT0}, 16
    s_lshl_b32 s{sT1}, s{sT1}, 6
    s_add_u32 s{sOO}, s{sOO}, s{sT1}
    s_and_b32 s{sT1}, s{sT0}, 32
    s_lshr_b32 s{sT1}, s{sT1}, 3
    s_add_u32 s{sOO}, s{sOO}, s{sT1}
    s_and_b32 s{sT1}, s{sT0}, 64
    s_lshr_b32 s{sT1}, s{sT1}, 1
    s_add_u32 s{sOO}, s{sOO}, s{sT1}
    s_add_u32 s{sOO}, s{sOO}, s{sQO}
    """
    g(f"s_mov_b32 s{sFIRST}, 0")
    g("s_branch L_task")
    if a.pf: g("L_pad1:\ns_branch L_pfback")
    g(f"""
L_sibback:
    """)
    if a.lw == 1:
        g(f"""
        s_cmp_lg_u32 s{sNU}, 1
        s_cbranch_scc1 L_nw1
        buffer_load_dwordx4 {vr(JK)}, {v(vWS)}, s[24:27], s{sOWN} offen sc1
L_nw1:
        """)
    if a.lw == 2:
        g(f"""
        buffer_load_dwordx4 {vr(JK)}, {v(vWS)}, s[24:27], s{sOWN} offen sc1
        """)
    if a.warm:
        g(f"""
        s_mov_b64 exec, s[{sMK}:{sMK+1}]
        buffer_load_dwordx4 {vr(E)}, v{vPA}, s[4:7], s{sPO} offen sc1
        s_mov_b64 exec, s[{sMK+2}:{sMK+3}]
        s_cbranch_execz L_nowarm
        buffer_load_dwordx4 {vr(E+4)}, v{vPA}, s[4:7], s{sPO+1} offen sc1
L_nowarm:
        s_mov_b64 exec, -1
        """)
    g(f"""
    s_cmp_lt_i32 s{sNU}, 1
    s_cbranch_scc1 L_done
L_loop:
    s_waitcnt vmcnt(12)
    s_cmp_gt_i32 s{sNU}, 1
    s_cbranch_scc1 L_kready
    """)
    g(f"""
    s_waitcnt vmcnt({5 if a.lw == 1 else 4})
L_kready:
    """)
    for jj in range(4):
        g(f"ds_read_b128 {vr(KF+4*jj)}, v{KR+jj}")
    g(f"v_readlane_b32 s{sSO}, {v(vSO)}, s{sNXT}")
    g(f"s_mov_b32 m0, s{sKM}")
    for jj in range(4):
        g(f"s_waitcnt lgkmcnt({3-jj})")
        g(f"v_mfma_f32_16x16x32_bf16 {vr(S)}, {vr(KF+4*jj)}, {vr(Q+4*jj)}, " + ("0" if jj == 0 else vr(S)))
    g(f"""
    s_cmp_lt_i32 s{sNU}, 3
    s_cbranch_scc1 L_nok
    """)
    dma(8, KD, sSO)
    g("L_nok:")
    for jj in range(4):
        g(f"v_xor_b32 v{KR+jj}, 0x1000, v{KR+jj}")
    g(f"""
    s_xor_b32 s{sKM}, s{sKM}, 0x1000
    s_mov_b32 m0, s{sVM}
    s_nop 1
    s_cmp_ge_i32 s{sREM}, 16
    s_cbranch_scc1 L_nomask
    v_subrev_u32 {v(vT0)}, s{sREM}, {v(vT4q)}
    """)
    for e in range(4):
        g(f"v_cmp_gt_i32_e64 s[{sM+2*e}:{sM+2*e+1}], {-e}, {v(vT0)}")
    for e in range(4):
        g(f"v_cndmask_b32_e64 v{S+e}, {v(vNEG)}, v{S+e}, s[{sM+2*e}:{sM+2*e+1}]")
    g(f"""
L_nomask:
    v_max3_f32 {v(vM)}, v{S}, v{S+1}, {v(vM)}
    v_max3_f32 {v(vM)}, v{S+2}, v{S+3}, {v(vM)}
    v_mov_b32 {v(vT0)}, {v(vM)}
    s_nop 1
    v_permlane16_swap_b32 {v(vM)}, {v(vT0)}
    v_max_f32 {v(vM)}, {v(vM)}, {v(vT0)}
    v_mov_b32 {v(vT0)}, {v(vM)}
    s_nop 1
    v_permlane32_swap_b32 {v(vM)}, {v(vT0)}
    v_max_f32 {v(vM)}, {v(vM)}, {v(vT0)}
    v_mul_f32 {v(vT0)}, s{sC}, {v(vM)}
    v_sub_f32 {v(vAL)}, {v(vMC)}, {v(vT0)}
    """)
    for e in range(4):
        g(f"v_fma_f32 v{S+e}, v{S+e}, s{sC}, -{v(vT0)}")
    g(f"v_exp_f32 {v(vAL)}, {v(vAL)}")
    for e in range(4):
        g(f"v_exp_f32 v{S+e}, v{S+e}")
    g(f"""
    v_mov_b32 {v(vMC)}, {v(vT0)}
    v_cvt_pk_bf16_f32 v{PK}, v{S}, v{S+1}
    v_cvt_pk_bf16_f32 v{PK+1}, v{S+2}, v{S+3}
    v_mul_f32 v{LA}, {v(vAL)}, v{LA}
    """)
    for i in range(8):
        g(f"v_mul_f32 v{ACC+i}, {v(vAL)}, v{ACC+i}")
    g(f"v_mfma_f32_16x16x16_bf16 {vr(LA)}, v[{ONE}:{ONE+1}], v[{PK}:{PK+1}], {vr(LA)}")
    for aa in range(4):
        for x in range(2):
            g(f"v_mov_b32_dpp v{PA+2*aa+x}, v{PK+x} quad_perm:[0,1,2,3] row_mask:0xf bank_mask:0x{1<<aa:x}")
    g(f"""
    s_waitcnt vmcnt(12)
    s_cmp_gt_i32 s{sNU}, 2
    s_cbranch_scc1 L_vready
    """)
    if a.lw == 1:
        g(f"""
        s_cmp_gt_i32 s{sNU}, 1
        s_cbranch_scc1 L_v8
        s_waitcnt vmcnt(1)
        s_branch L_vready
L_v8:
        buffer_load_dwordx4 {vr(JK)}, {v(vWS)}, s[24:27], s{sOWN} offen sc1
        s_waitcnt vmcnt(9)
        """)
    else:
        g(f"""
        s_waitcnt vmcnt(8)
        s_cmp_gt_i32 s{sNU}, 1
        s_cbranch_scc1 L_vready
        s_waitcnt vmcnt(0)
        """)
    g(f"""
L_vready:
    """)
    for i in range(8):
        g(f"ds_read_b64_tr_b16 v[{VF+2*i}:{VF+2*i+1}], v{VR+i}")
    for i in range(8):
        aa, uu = i >> 1, i & 1
        g(f"s_waitcnt lgkmcnt({7-i})")
        g(f"v_mfma_f32_16x16x16_bf16 {vr(ACC+4*uu)}, v[{VF+2*i}:{VF+2*i+1}], v[{PA+2*aa}:{PA+2*aa+1}], {vr(ACC+4*uu)}")
    g(f"""
    s_cmp_lt_i32 s{sNU}, 2
    s_cbranch_scc1 L_last
    s_cmp_lt_i32 s{sNU}, 3
    s_cbranch_scc1 L_nov
    """)
    dma(12, VD, sSO)
    g("L_nov:")
    for i in range(8):
        g(f"v_xor_b32 v{VR+i}, 0x1000, v{VR+i}")
    g(f"""
    s_xor_b32 s{sVM}, s{sVM}, 0x1000
    s_sub_i32 s{sNU}, s{sNU}, 1
    s_sub_i32 s{sREM}, s{sREM}, 64
    s_add_u32 s{sNXT}, s{sNXT}, 1
    s_branch L_loop
    {"L_pad2:" if a.pf else ""}
    {"s_branch L_pfback" if a.pf else ""}
L_last:
    s_nop 3
L_done:
    """)
    stamp()
    g(f"""
    v_mov_b32 v{ML}, v{LA}
    v_mov_b32 v{ML+1}, {v(vMC)}
    v_add_u32 {v(vT0)}, 0x800, v{vSW}
    v_add_u32 {v(vT1)}, 0x10000, v{vSR}
    ds_write2_b64 v{vSW}, v[{ACC}:{ACC+1}], v[{ML}:{ML+1}] offset0:0 offset1:1
    ds_write2_b64 v{vSW}, v[{ACC+2}:{ACC+3}], v[{ML}:{ML+1}] offset0:128 offset1:129
    ds_write2_b64 {v(vT0)}, v[{ACC+4}:{ACC+5}], v[{ML}:{ML+1}] offset0:0 offset1:1
    ds_write2_b64 {v(vT0)}, v[{ACC+6}:{ACC+7}], v[{ML}:{ML+1}] offset0:128 offset1:129
    """)
    X = KF
    g(f"""
    s_waitcnt lgkmcnt(0)
    s_barrier
    ds_read_b128 {vr(X)}, v{vSR}
    ds_read_b128 {vr(X+4)}, v{vSR} offset:32768
    ds_read_b128 {vr(X+8)}, {v(vT1)}
    ds_read_b128 {vr(X+12)}, {v(vT1)} offset:32768
    """)
    g(f"""
    s_mov_b32 s{sT0}, 0x47ffff80
    v_mov_b32 {v(vT1)}, 0xc7ffff80
    s_mov_b32 s{sSPIN}, 0x10000
    s_mov_b32 s{sK0}, 3
    s_mov_b32 s{sLOC}, {a.thr}
    s_waitcnt lgkmcnt(0)
    """)
    stamp()
    g(f"""
    v_max3_f32 {v(vT0)}, v{X+3}, v{X+7}, v{X+11}
    v_max_f32 {v(vT0)}, {v(vT0)}, v{X+15}
    v_ceil_f32 {v(vT0)}, {v(vT0)}
    v_med3_f32 {v(vT0)}, {v(vT0)}, {v(vT1)}, s{sT0}
    v_sub_f32 v{X+3}, v{X+3}, {v(vT0)}
    v_sub_f32 v{X+7}, v{X+7}, {v(vT0)}
    v_sub_f32 v{X+11}, v{X+11}, {v(vT0)}
    v_sub_f32 v{X+15}, v{X+15}, {v(vT0)}
    v_exp_f32 v{X+3}, v{X+3}
    v_exp_f32 v{X+7}, v{X+7}
    v_exp_f32 v{X+11}, v{X+11}
    v_exp_f32 v{X+15}, v{X+15}
    v_cvt_i32_f32 v{G0+3}, {v(vT0)}
    v_pk_mul_f32 v[{G0}:{G0+1}], v[{X}:{X+1}], v[{X+2}:{X+3}] op_sel:[0,1] op_sel_hi:[1,1]
    v_mul_f32 v{G0+2}, v{X+2}, v{X+3}
    v_add_u32 v{G0+3}, s{sTAGN}, v{G0+3}
    """)
    for k in range(1, 4):
        g(f"v_pk_fma_f32 v[{G0}:{G0+1}], v[{X+4*k}:{X+4*k+1}], v[{X+4*k+2}:{X+4*k+3}], v[{G0}:{G0+1}] op_sel:[0,1,0] op_sel_hi:[1,1,1]")
        g(f"v_fmac_f32 v{G0+2}, v{X+4*k+2}, v{X+4*k+3}")
    g(f"""
    buffer_store_dwordx4 {vr(G0)}, {v(vWS)}, s[24:27], s{sOWN} offen
L_poll:
    """)
    for r in range(4):
        g(f"""
        s_mov_b64 exec, s[{sMK+2*r}:{sMK+2*r+1}]
        """ + (f"s_cbranch_execz L_pe" if r else "") + f"""
        buffer_load_dwordx4 {vr(E+4*r)}, v{vPA}, s[4:7], s{sPO+r} offen sc1
        """)
    n0, n1, n2, n3 = E + 3, E + 7, E + 11, E + 15
    W = X + 8
    g(f"""
L_pe:
    s_mov_b64 exec, -1
    s_waitcnt vmcnt(0)
    v_max3_u32 {v(vT0)}, v{n0}, v{n1}, v{n2}
    v_min3_u32 {v(vT2)}, v{n0}, v{n1}, v{n2}
    v_max_u32 {v(vT0)}, {v(vT0)}, v{n3}
    v_min_u32 {v(vT2)}, {v(vT2)}, v{n3}
    v_cmp_lt_u32 vcc, s{sTAGH}, {v(vT0)}
    v_cmp_gt_u32_e64 s[{sM}:{sM+1}], s{sTAG}, {v(vT2)}
    v_max_u32_dpp {v(vT0)}, {v(vT0)}, {v(vT0)} row_ror:4 row_mask:0xf bank_mask:0xf
    s_or_b64 vcc, vcc, s[{sM}:{sM+1}]
    s_cbranch_vccnz L_retry
L_got:
    {"s_memrealtime s[%d:%d]" % (sST+2*nst[0]+2, sST+2*nst[0]+3) if a.stamps else ""}
    v_max_u32_dpp {v(vT0)}, {v(vT0)}, {v(vT0)} row_ror:8 row_mask:0xf bank_mask:0xf
    v_mov_b32 {v(vT1)}, {v(vT0)}
    s_nop 1
    v_permlane16_swap_b32 {v(vT0)}, {v(vT1)}
    v_max_u32 {v(vT0)}, {v(vT0)}, {v(vT1)}
    v_mov_b32 {v(vT1)}, {v(vT0)}
    s_nop 1
    v_permlane32_swap_b32 {v(vT0)}, {v(vT1)}
    v_max_u32 {v(vT0)}, {v(vT0)}, {v(vT1)}
    v_sub_u32 v{W}, v{n0}, {v(vT0)}
    v_sub_u32 v{W+1}, v{n1}, {v(vT0)}
    v_sub_u32 v{W+2}, v{n2}, {v(vT0)}
    v_sub_u32 v{W+3}, v{n3}, {v(vT0)}
    v_ldexp_f32 v{W}, 1.0, v{W}
    v_ldexp_f32 v{W+1}, 1.0, v{W+1}
    v_ldexp_f32 v{W+2}, 1.0, v{W+2}
    v_ldexp_f32 v{W+3}, 1.0, v{W+3}
    v_mul_f32 v{X+2}, v{E+2}, v{W}
    v_pk_mul_f32 v[{X}:{X+1}], v[{E}:{E+1}], v[{W}:{W+1}] op_sel:[0,0] op_sel_hi:[1,0]
    v_fmac_f32 v{X+2}, v{E+6}, v{W+1}
    v_pk_fma_f32 v[{X}:{X+1}], v[{E+4}:{E+5}], v[{W}:{W+1}], v[{X}:{X+1}] op_sel:[0,1,0] op_sel_hi:[1,1,1]
    v_fmac_f32 v{X+2}, v{E+10}, v{W+2}
    v_pk_fma_f32 v[{X}:{X+1}], v[{E+8}:{E+9}], v[{W+2}:{W+3}], v[{X}:{X+1}] op_sel:[0,0,0] op_sel_hi:[1,0,1]
    v_fmac_f32 v{X+2}, v{E+14}, v{W+3}
    v_pk_fma_f32 v[{X}:{X+1}], v[{E+12}:{E+13}], v[{W+2}:{W+3}], v[{X}:{X+1}] op_sel:[0,1,0] op_sel_hi:[1,1,1]
    v_mov_b32 v{X+3}, v{X+2}
    v_add_u32 {v(vT2)}, s{sOO}, {v(vOUT)}
    s_nop 0
    v_permlane32_swap_b32 v{X}, v{X+1}
    v_permlane32_swap_b32 v{X+2}, v{X+3}
    v_add_f32 v{X}, v{X}, v{X+1}
    v_add_f32 v{X+2}, v{X+2}, v{X+3}
    s_nop 1
    v_permlane16_swap_b32 v{X}, v{X+2}
    v_add_f32 v{X}, v{X}, v{X+2}
    s_nop 1
    v_add_f32_dpp v{X}, v{X}, v{X} row_ror:4 row_mask:0xf bank_mask:0xf
    s_nop 1
    v_add_f32_dpp v{X}, v{X}, v{X} row_ror:8 row_mask:0xf bank_mask:0xf
    v_rcp_f32 v{X+1}, v{X}
    v_cmp_u_f32 vcc, v{X}, v{X}
    v_mov_b32 v{X+2}, v{X+1}
    s_cbranch_vccz L_clean
    s_sub_u32 s{sK0}, s{sK0}, 1
    s_cbranch_scc0 L_poll
L_clean:
    s_nop 0
    v_permlane16_swap_b32 v{X+1}, v{X}
    v_mul_f32 v{X+1}, v{X+1}, v{X+2}
    s_mov_b32 exec_lo, 0x000f0000
    s_mov_b32 exec_hi, 0x000f0000
    v_cvt_pk_bf16_f32 v{X+1}, v{X+1}, v{X+1}
    global_store_short {v(vT2)}, v{X+1}, s[20:21]
    s_mov_b64 exec, -1
    s_cmp_lg_u32 s{sPO}, s{sREG}
    s_cbranch_scc1 L_noep
    v_mov_b32 {v(vT0)}, s{sEPO}
    v_mov_b32 {v(vT1)}, s{sEP}
    s_mov_b64 exec, 1
    global_store_dword {v(vT0)}, {v(vT1)}, s[24:25]
    s_mov_b64 exec, -1
L_noep:
    s_add_u32 s{sCB}, s{sCB}, s{sNB}
    s_cmp_ge_u32 s{sCB}, 16
    s_cbranch_scc1 L_fin
L_task:
    """)
    g(task)
    g(f"""
    s_cmp_eq_u32 s{sFIRST}, 0
    s_mov_b32 s{sFIRST}, 1
    s_cbranch_scc1 L_sibback
    s_branch L_poll
L_retry:
    s_sub_u32 s{sSPIN}, s{sSPIN}, 1
    s_cbranch_scc1 L_got
    s_sub_i32 s{sLOC}, s{sLOC}, 1
    s_cmp_gt_i32 s{sLOC}, 0
    s_cbranch_scc1 L_poll
    s_cmp_lt_i32 s{sLOC}, 0
    s_cbranch_scc1 L_tog
    v_xor_b32 v{G0+3}, s{sXC}, v{G0+3}
    s_add_u32 s{sOWN}, s{sOWN}, 0x200000
    buffer_store_dwordx4 {vr(G0)}, {v(vWS)}, s[24:27], s{sOWN} offen sc1
L_tog:
    s_mov_b32 s{sLOC}, -1
    s_xor_b32 s{sREG}, s{sREG}, 0x200000
    s_xor_b32 s{sPO}, s{sPO}, 0x200000
    s_xor_b32 s{sPO+1}, s{sPO+1}, 0x200000
    s_xor_b32 s{sPO+2}, s{sPO+2}, 0x200000
    s_xor_b32 s{sPO+3}, s{sPO+3}, 0x200000
    s_xor_b32 s{sTAG}, s{sTAG}, s{sXC}
    s_xor_b32 s{sTAGH}, s{sTAGH}, s{sXC}
    v_mov_b32 v{E+3}, s{sTAG}
    v_mov_b32 v{E+7}, s{sTAG}
    v_mov_b32 v{E+11}, s{sTAG}
    v_mov_b32 v{E+15}, s{sTAG}
    s_branch L_poll
L_fin:
    """)
    if a.amp:
        stamp()
        ia, ib = a.amp // 10, a.amp % 10
        g(f"""
        s_waitcnt lgkmcnt(0)
        s_cmp_lg_u32 s2, {a.ampwg}
        s_cbranch_scc1 L_end
        s_cmp_lg_u32 s{sI}, 0
        s_cbranch_scc1 L_end
        s_sub_u32 s6, s{sST+2*ib}, s{sST+2*ia}
        s_mul_i32 s6, s6, 10
        s_min_u32 s6, s6, 50000
        s_add_u32 s6, s6, s{sST+14}
L_spin:
        s_memrealtime s[2:3]
        s_waitcnt lgkmcnt(0)
        s_sub_u32 s7, s2, s6
        s_cmp_lt_i32 s7, 0
        s_cbranch_scc1 L_spin
        """)
    elif a.stamps:
        stamp()
        n = nst[0] + 1
        g(f"""
        s_waitcnt lgkmcnt(0)
        s_lshl_b32 s6, s2, 4
        s_add_u32 s6, s6, s{sI}
        s_lshl_b32 s6, s6, 7
        s_add_u32 s6, s6, 0x1000000
        v_mov_b32 v14, s6
        s_getreg_b32 s6, hwreg(HW_REG_XCC_ID)
        s_mov_b64 exec, 1
        """)
        for k in range(n):
            g(f"v_mov_b32 v15, s{sST+2*k}")
            g(f"global_store_dword v14, v15, s[24:25] offset:{4*k}")
        g(f"""
        v_mov_b32 v15, s6
        global_store_dword v14, v15, s[24:25] offset:120
        s_sub_u32 s6, 0x10000, s{sSPIN}
        s_cmp_lt_i32 s{sLOC}, 0
        s_cselect_b32 s7, 1000, 0
        s_add_u32 s6, s6, s7
        v_mov_b32 v15, s6
        global_store_dword v14, v15, s[24:25] offset:124
        """)
    g("L_end:")
    g("s_endpgm")
    acc = (NV + 3) // 4 * 4
    out = HDR + f"; @launch grid=(256,1,1) block=(512,1,1) lds={LDS}\n"
    out += f""".amdgcn_target "amdgcn-amd-amdhsa--gfx950"
.text
.globl {NAME}_kernel
.p2align 8
.type {NAME}_kernel,@function
{NAME}_kernel:
""" + g.text() + f""".section .rodata,"a"
.p2align 6
.amdhsa_kernel {NAME}_kernel
  .amdhsa_next_free_vgpr {NV}
  .amdhsa_next_free_sgpr 102
  .amdhsa_accum_offset {acc}
  .amdhsa_group_segment_fixed_size 0
  .amdhsa_kernarg_size 64
  .amdhsa_user_sgpr_count 2
  .amdhsa_user_sgpr_kernarg_segment_ptr 1
  .amdhsa_system_sgpr_workgroup_id_x 1
.end_amdhsa_kernel
"""
    return out

if __name__ == "__main__":
    p = argparse.ArgumentParser()
    for k, d in dict(map=0, stamps=0, ch=20, snt=0, nt=1, prio=1, scl=1, early_const=1, fine=0, warm=0, pf=1, lw=3, thr=16, amp=0, ampwg=0).items():
        p.add_argument("--" + k, type=int, default=d)
    p.add_argument("-o", default="-")
    a = p.parse_args()
    if a.amp: a.stamps = 1
    t = gen(a)
    if a.o == "-": sys.stdout.write(t)
    else: open(a.o, "w").write(t)
```

```python
import sys, argparse, math, struct
from gen import NAME, HDR, f32bits, G

def gen(a):
    g = G()
    CH = a.ch
    KVSIZE = 1028 * 32768
    C = (128 ** -0.5) * math.log2(math.e)
    TBL = 131072
    LDS = TBL + 5376
    EPOFF = 0x600000
    snt = " nt" if a.snt else ""
    kvnt = ["", " nt", " sc1 nt", " sc0 sc1 nt", " sc0 nt"][a.nt]
    sI, sJ, sHP, sH256 = 28, 29, 30, 31
    sB, sCB, sNB, sREM, sNU, sNXT, sKM, sVM, sSO, sC, sT0, sT1, sOWN, sK0, sCONS, sSPIN, sX0, sX1, sQO, sTAG = range(32, 52)
    sM = 52
    sSIB = 60
    sEP, sTAGN, sTAGH, sEPO = 80, 81, 82, 83
    sMK, sPO, sOO, sFIRST, sXC, sLOC, sDO = 60, 68, 72, 73, 74, 75, 76
    sXD = 52
    sREG = 77
    sST = 84
    nst = [0]
    def stamp():
        if a.stamps:
            k = nst[0]; nst[0] += 1
            assert sST + 2 * k + 1 <= 101
            g(f"s_memrealtime s[{sST+2*k}:{sST+2*k+1}]")
    vL, vT0, vT1, vT2, vT3, vT4, vT5, vSO, vWS, vOUT, vTK, vM, vMC, vAL, vNEG, vT4q, vSW, vSR = range(1, 19)
    ACC, LA, ML, KF = 20, 28, 32, 36
    KD, VD, KR, VR, Q, PA, PK, ONE, S, VF = 52, 56, 60, 64, 72, 88, 96, 98, 100, 104
    E = 120
    G0 = 136
    vPA = 19
    JK = G0 + 4
    NV = JK + 8
    def v(i): return f"v{i}"
    def vr(b, n=4): return f"v[{b}:{b+n-1}]"
    stamp()
    g(f"""
    s_load_dwordx4 s[16:19], s[0:1], 24
    s_load_dwordx2 s[8:9], s[0:1], 8
    s_load_dwordx2 s[12:13], s[0:1], 16
    s_load_dwordx2 s[4:5], s[0:1], 0
    s_load_dwordx2 s[24:25], s[0:1], 56
    s_load_dwordx2 s[20:21], s[0:1], 40
    s_cmp_ge_u32 s2, 256
    s_cbranch_scc1 L_end
    v_readfirstlane_b32 s3, v0
    """)
    if a.pf:
        g("""
        s_cmpk_eq_u32 s3, 320
        s_cbranch_scc1 L_pad0
        s_cmpk_eq_u32 s3, 384
        s_cbranch_scc1 L_pad1
        s_cmpk_eq_u32 s3, 448
        s_cbranch_scc1 L_pad2
L_pfback:
        """)
    g(f"""
    v_and_b32 {v(vL)}, 63, v0
    v_and_b32 {v(vT0)}, 3, v0
    v_lshlrev_b32 {v(vT0)}, 2, {v(vT0)}
    v_lshlrev_b32 {v(vWS)}, 4, v0
    v_and_b32 {v(vT1)}, 0xfff, {v(vWS)}
    s_lshr_b32 s{sI}, s3, 6
    s_lshl_b32 s3, s3, 4
    s_and_b32 s3, s3, 0xfff
    s_add_u32 s3, s3, {TBL}
    s_mov_b32 m0, s3
    s_mov_b32 s10, 0x{KVSIZE:x}
    s_mov_b32 s11, 0x20000
    s_mov_b32 s14, 0x{KVSIZE:x}
    s_mov_b32 s15, 0x20000
    s_mov_b32 s26, 0x400000
    s_mov_b32 s27, 0x20000
    """)
    if a.map == 0:
        g(f"""
        s_and_b32 s{sHP}, s2, 3
        s_lshl_b32 s{sJ}, s2, 3
        s_and_b32 s{sJ}, s{sJ}, 32
        s_lshr_b32 s{sT0}, s2, 3
        s_add_u32 s{sJ}, s{sJ}, s{sT0}
        """)
    else:
        g(f"""
        s_lshr_b32 s{sHP}, s2, 6
        s_and_b32 s{sJ}, s2, 63
        """)
    lanec = f"""
    s_and_b32 s{sT0}, s{sI}, 1
    s_lshl_b32 s{sH256}, s{sHP}, 1
    s_add_u32 s{sH256}, s{sH256}, s{sT0}
    s_lshl_b32 s{sH256}, s{sH256}, 8
    s_lshl_b32 s{sKM}, s{sI}, 14
    s_add_u32 s{sVM}, s{sKM}, 0x2000
    v_lshrrev_b32 {v(vT4q)}, 4, {v(vL)}
    v_and_b32 {v(vT2)}, 15, v0
    v_xor_b32 {v(vT3)}, {v(vT2)}, {v(vT4q)}
    v_lshlrev_b32 {v(vT3)}, 4, {v(vT3)}
    v_lshl_add_u32 v{KR}, {v(vT2)}, 8, {v(vT3)}
    v_add_u32 v{KR}, s{sKM}, v{KR}
    v_lshl_add_u32 v{KD}, {v(vT4q)}, 11, {v(vT3)}
    v_add_u32 v{KD}, s{sH256}, v{KD}
    v_lshlrev_b32 {v(vT3)}, 1, {v(vT4q)}
    v_xor_b32 {v(vT3)}, {v(vT2)}, {v(vT3)}
    v_lshlrev_b32 {v(vT3)}, 4, {v(vT3)}
    v_lshl_add_u32 v{VD}, {v(vT4q)}, 11, {v(vT3)}
    v_add_u32 v{VD}, s{sH256}, v{VD}
    """
    for e in range(1, 4):
        lanec += f"""
        v_xor_b32 v{KD+e}, {e<<6}, v{KD}
        v_add_u32 v{KD+e}, {e*7168}, v{KD+e}
        """
    lanec += f"""
    v_xor_b32 v{VD+1}, 0x80, v{VD}
    v_add_u32 v{VD+2}, {2*7168}, v{VD}
    v_add_u32 v{VD+3}, {3*7168}, v{VD+1}
    v_add_u32 v{VD+1}, 7168, v{VD+1}
    v_add_u32 {v(vT5)}, 1, {v(vL)}
    s_mov_b32 s{sT1}, 0x42700000
    """
    nsh = 8 if a.lw != 3 else (0 if (a.kvtouch or a.stamps) else 2 if a.otouch else 4)
    shadow = f"""
    v_and_b32 {v(vT4)}, 3, v0
    v_lshrrev_b32 {v(vT0)}, 2, {v(vT2)}
    v_lshl_add_u32 {v(vT0)}, {v(vT4q)}, 2, {v(vT0)}
    v_and_b32 {v(vT3)}, 7, {v(vT0)}
    v_lshlrev_b32 {v(vT3)}, 5, {v(vT3)}
    v_lshl_add_u32 {v(vT3)}, {v(vT0)}, 8, {v(vT3)}
    v_lshl_add_u32 {v(vT3)}, {v(vT4)}, 3, {v(vT3)}
    v_add_u32 v{VR}, s{sVM}, {v(vT3)}
    """ + "".join(f"v_mov_b32 v{ACC+i}, 0\n" for i in range(nsh))
    if a.early_const: g(lanec)
    g("s_waitcnt lgkmcnt(0)")
    stamp()
    if a.scl:
        g(f"""
        s_load_dwordx4 s[{sM}:{sM+3}], s[18:19], 0
        s_cmp_ge_u32 s{sI}, 4
        s_cbranch_scc1 L_notbl
        global_load_lds_dwordx4 {v(vT1)}, s[16:17]{snt}
L_notbl:
        """)
        if a.lw == 3:
            g(f"""
            s_lshl_b32 s{sOWN}, s{sHP}, 6
            s_add_u32 s{sOWN}, s{sOWN}, s{sJ}
            s_lshl_b32 s{sOWN}, s{sOWN}, 13
            buffer_load_dwordx4 {vr(JK)}, {v(vWS)}, s[24:27], s{sOWN} offen sc1
            """)
        if a.otouch:
            g(f"""
            global_load_dword v{JK+4}, {v(vWS)}, s[20:21]
            """)
        if a.kvtouch:
            g(f"""
            s_cmp_lg_u32 s{sI}, {a.kvtouch}
            s_cbranch_scc1 L_nkt
            v_lshlrev_b32 {v(vT4)}, 21, {v(vL)}
            buffer_load_dword v{JK+5}, {v(vT4)}, s[8:11], 0 offen nt
            buffer_load_dword v{JK+6}, {v(vT4)}, s[12:15], 0 offen nt
L_nkt:
            """)
        g(shadow)
        if a.pf:
            g(f"""
            s_branch L_math
            .fill ({NAME}_kernel + 0x200 - .) / 4, 4, 0xbf800000
L_pad0:
            s_branch L_pfback
L_math:
            """)
    else:
        g(f"""
        global_load_dword {v(vT0)}, {v(vT0)}, s[18:19]{snt}
        global_load_lds_dwordx4 {v(vT1)}, s[16:17]{snt}
        """)
    if not a.early_const: g(lanec)
    if a.scl:
        g("s_waitcnt lgkmcnt(0)")
        stamp()
        g(f"""
        v_mov_b32 {v(vT0)}, s{sM}
        v_writelane_b32 {v(vT0)}, s{sM+3}, 1
        v_writelane_b32 {v(vT0)}, s{sM+1}, 2
        v_writelane_b32 {v(vT0)}, s{sM+2}, 3
        """)
    else:
        g("s_waitcnt vmcnt(1)")
        stamp()
    cl, nb, pf, cn, cb, x0, x1 = vT0, vT1, vT3, vSO, vTK, vM, vMC
    fq, n_, k_ = vAL, vNEG, vOUT
    g(f"""
    v_add_u32 {v(nb)}, -1, {v(cl)}
    v_ashrrev_i32 {v(nb)}, 4, {v(nb)}
    v_min_u32 {v(nb)}, 0xff, {v(nb)}
    v_add_u32 {v(nb)}, 1, {v(nb)}
    s_nop 1
    v_add_u32_dpp {v(pf)}, {v(nb)}, {v(nb)} row_shr:1 row_mask:0xf bank_mask:0xf bound_ctrl:0
    v_lshlrev_b32 {v(nb)}, 1, {v(nb)}
    v_cvt_f32_u32 {v(fq)}, {v(nb)}
    v_add_u32_dpp {v(pf)}, {v(pf)}, {v(pf)} row_shr:2 row_mask:0xf bank_mask:0xf bound_ctrl:0
    s_nop 1
    v_cvt_f32_u32_dpp {v(cn)}, {v(pf)} quad_perm:[3,3,3,3] row_mask:0xf bank_mask:0xf
    v_cvt_f32_u32 {v(pf)}, {v(pf)}
    v_rcp_f32 {v(cn)}, {v(cn)}
    v_mul_f32 {v(pf)}, s{sT1}, {v(pf)}
    v_fma_f32 {v(cn)}, {v(pf)}, {v(cn)}, 0.5
    v_cvt_u32_f32 {v(cn)}, {v(cn)}
    v_add_u32 {v(cn)}, {v(cn)}, {v(vT5)}
    v_cmp_ge_u32 vcc, s{sJ}, {v(cn)}
    s_nop 0
    v_mov_b32_dpp {v(cb)}, {v(cn)} row_shr:1 row_mask:0xf bank_mask:0xf bound_ctrl:0
    s_and_b32 s{sB}, vcc_lo, 7
    v_sub_u32 {v(n_)}, {v(cn)}, {v(cb)}
    v_sub_u32 {v(k_)}, s{sJ}, {v(cb)}
    v_cvt_f32_u32 {v(x0)}, {v(n_)}
    v_rcp_f32 {v(x0)}, {v(x0)}
    v_add_u32 {v(pf)}, 1, {v(k_)}
    v_mul_f32 {v(fq)}, {v(fq)}, {v(x0)}
    v_cvt_f32_u32 {v(x0)}, {v(k_)}
    v_cvt_f32_u32 {v(x1)}, {v(pf)}
    v_cmp_eq_u32 vcc, {v(pf)}, {v(n_)}
    v_mul_f32 {v(x0)}, {v(x0)}, {v(fq)}
    v_mul_f32 {v(x1)}, {v(x1)}, {v(fq)}
    v_cvt_u32_f32 {v(x0)}, {v(x0)}
    v_cvt_u32_f32 {v(x1)}, {v(x1)}
    s_bcnt1_i32_b32 s{sB}, s{sB}
    v_cndmask_b32 {v(x1)}, {v(x1)}, {v(nb)}, vcc
    v_readlane_b32 s{sX0}, {v(x0)}, s{sB}
    v_readlane_b32 s{sREM}, {v(cl)}, s{sB}
    v_readlane_b32 s{sX1}, {v(x1)}, s{sB}
    v_readlane_b32 s{sCB}, {v(cb)}, s{sB}
    v_readlane_b32 s{sNB}, {v(n_)}, s{sB}
    s_lshl_b32 s{sB}, s{sB}, 2
    s_lshr_b32 s{sB}, 0x2130, s{sB}
    s_and_b32 s{sB}, s{sB}, 3
    s_xor_b32 s{sT0}, s{sX0}, s{sI}
    s_and_b32 s{sT0}, s{sT0}, 1
    s_add_u32 s{sX0}, s{sX0}, s{sT0}
    s_andn2_b32 s{sT0}, s{sI}, 1
    s_add_u32 s{sX0}, s{sX0}, s{sT0}
    s_sub_i32 s{sNU}, s{sX1}, s{sX0}
    s_lshr_b32 s{sX0}, s{sX0}, 1
    s_lshl_b32 s{sT0}, s{sB}, 8
    s_add_u32 s{sT0}, s{sT0}, s{sX0}
    s_lshl_b32 s{sT0}, s{sT0}, 2
    s_add_u32 s{sT0}, s{sT0}, {TBL}
    v_lshl_add_u32 {v(vT0)}, {v(vL)}, 4, s{sT0}
    """)
    if a.fine: stamp()
    g(f"""
    {"s_cmp_ge_u32 s%d, 4" % sI if a.kvtouch else ""}
    {"s_cbranch_scc1 L_ntw" if a.kvtouch else ""}
    s_waitcnt vmcnt({(1 if a.lw == 3 else 0) + (1 if a.otouch else 0)})
    {"L_ntw:" if a.kvtouch else ""}
    s_barrier
    ds_read_b32 {v(vSO)}, {v(vT0)}
    s_add_i32 s{sNU}, s{sNU}, 7
    s_ashr_i32 s{sNU}, s{sNU}, 3
    s_cmp_gt_i32 s{sREM}, 0
    s_cselect_b32 s{sX1}, 0xce800000, 0
    s_lshl_b32 s{sX0}, s{sX0}, 4
    s_sub_i32 s{sREM}, s{sREM}, s{sX0}
    s_lshl_b32 s{sQO}, s{sB}, 13
    s_lshl_b32 s{sT0}, s{sH256}, 2
    s_add_u32 s{sQO}, s{sQO}, s{sT0}
    v_and_b32 {v(vT1)}, 3, v0
    v_lshlrev_b32 {v(vT3)}, 4, {v(vT4q)}
    v_lshl_add_u32 {v(vT3)}, {v(vT1)}, 8, {v(vT3)}
    v_add_u32 {v(vT3)}, s{sQO}, {v(vT3)}
    s_mov_b32 m0, s{sKM}
    s_cmp_lt_i32 s{sNU}, 1
    s_cbranch_scc1 L_issued
    s_waitcnt lgkmcnt(0)
    v_lshlrev_b32 {v(vSO)}, 15, {v(vSO)}
    s_nop 0
    v_readlane_b32 s{sSO}, {v(vSO)}, 0
    v_readlane_b32 s{sT1}, {v(vSO)}, 1
    s_nop 3
    """)
    stamp()
    if a.prio: g("s_setprio 3")
    def dma(srd, offs, so):
        for e in range(4):
            io = f" offset:{e*1024}" if e else ""
            g(f"buffer_load_dwordx4 v{offs+e}, s[{srd}:{srd+3}], s{so} offen{io}{kvnt} lds")
    dma(8, KD, sSO)
    for jj in range(4):
        g(f"global_load_dwordx4 {vr(Q+4*jj)}, {v(vT3)}, s[4:5]" + (f" offset:{64*jj}" if jj else "") + snt)
    g(f"s_mov_b32 m0, s{sVM}")
    g(f"s_nop 0")
    dma(12, VD, sSO)
    if a.prio == 2: g("s_setprio 2")
    g(f"""
    s_cmp_lt_i32 s{sNU}, 2
    s_cbranch_scc1 L_issued
    s_add_u32 s{sT0}, s{sKM}, 0x1000
    s_mov_b32 m0, s{sT0}
    s_add_u32 s{sT0}, s{sVM}, 0x1000
    """)
    dma(8, KD, sT1)
    g(f"s_mov_b32 m0, s{sT0}")
    g(f"s_nop 0")
    dma(12, VD, sT1)
    g("L_issued:")
    if a.prio: g("s_setprio 0")
    stamp()
    g(f"""
    s_lshl_b32 s{sEPO}, s{sHP}, 2
    s_add_u32 s{sEPO}, s{sEPO}, s{sB}
    s_lshl_b32 s{sEPO}, s{sEPO}, 7
    s_add_u32 s{sEPO}, s{sEPO}, {EPOFF + 12}
    s_load_dword s{sEP}, s[24:25], s{sEPO}
    """)
    for i in range(1, 8):
        g(f"v_xor_b32 v{VR+i}, {i<<5}, v{VR}")
    for e in range(1, 4):
        g(f"v_xor_b32 v{KR+e}, {e<<6}, v{KR}")
    g(f"""
    v_lshlrev_b32 {v(vT4q)}, 2, {v(vT4q)}
    v_lshl_add_u32 v{vSW}, {v(vL)}, 4, s{sKM}
    s_and_b32 s{sT0}, s{sI}, 1
    s_lshl_b32 s{sT0}, s{sT0}, 14
    s_lshr_b32 s{sT1}, s{sI}, 1
    s_lshl_b32 s{sT1}, s{sT1}, 10
    s_add_u32 s{sT0}, s{sT0}, s{sT1}
    v_lshl_add_u32 v{vSR}, {v(vL)}, 4, s{sT0}
    v_mov_b32 {v(vNEG)}, s{sX1}
    s_mov_b32 s{sC}, 0x{f32bits(C):08x}
    v_mov_b32 {v(vM)}, 0xce800000
    v_mul_f32 {v(vMC)}, s{sC}, {v(vM)}
    v_mov_b32 v{ONE}, 0x3f803f80
    v_mov_b32 v{ONE+1}, 0x3f803f80
    """)
    for i in range(nsh, 8): g(f"v_mov_b32 v{ACC+i}, 0")
    for i in range(4): g(f"v_mov_b32 v{LA+i}, 0")
    for i in range(8): g(f"v_mov_b32 v{PA+i}, 0")
    g(f"""
    s_lshl_b32 s{sT0}, s{sHP}, 6
    s_add_u32 s{sOWN}, s{sT0}, s{sJ}
    s_lshl_b32 s{sOWN}, s{sOWN}, 13
    s_getreg_b32 s{sXC}, hwreg(HW_REG_XCC_ID, 0, 3)
    s_lshl_b32 s{sXC}, s{sXC}, 18
    s_add_u32 s{sT0}, s{sT0}, s{sCB}
    s_lshl_b32 s{sT0}, s{sT0}, 13
    s_add_u32 s4, s24, s{sT0}
    s_addc_u32 s5, s25, 0
    s_mov_b32 s6, 0x400000
    s_mov_b32 s7, 0x20000
    s_sub_u32 s{sCB}, s{sJ}, s{sCB}
    s_and_b32 s{sCB}, s{sCB}, 15
    s_mov_b32 s{sREG}, 0
    s_mov_b32 s{sNXT}, 2
    v_lshrrev_b32 {v(vT0)}, 2, {v(vL)}
    v_lshlrev_b32 v{vPA}, 4, {v(vT1)}
    v_lshl_add_u32 v{vPA}, {v(vT0)}, 13, v{vPA}
    v_cmp_gt_u32_e64 s[{sMK}:{sMK+1}], s{sNB}, {v(vT0)}
    v_add_u32 {v(vT0)}, 16, {v(vT0)}
    v_cmp_gt_u32_e64 s[{sMK+2}:{sMK+3}], s{sNB}, {v(vT0)}
    v_add_u32 {v(vT0)}, 16, {v(vT0)}
    v_cmp_gt_u32_e64 s[{sMK+4}:{sMK+5}], s{sNB}, {v(vT0)}
    v_add_u32 {v(vT0)}, 16, {v(vT0)}
    v_cmp_gt_u32_e64 s[{sMK+6}:{sMK+7}], s{sNB}, {v(vT0)}
    v_lshrrev_b32 {v(vOUT)}, 4, {v(vL)}
    v_and_b32 {v(vOUT)}, 2, {v(vOUT)}
    v_lshl_add_u32 {v(vOUT)}, {v(vT1)}, 8, {v(vOUT)}
    s_lshl_b32 s{sQO}, s{sB}, 13
    s_lshl_b32 s{sT0}, s{sHP}, 11
    s_add_u32 s{sQO}, s{sQO}, s{sT0}
    s_waitcnt lgkmcnt(0)
    s_add_u32 s{sEP}, s{sEP}, 0x9e3c0000
    s_and_b32 s{sTAG}, s{sEP}, 0xffe00000
    s_or_b32 s{sTAG}, s{sTAG}, s{sXC}
    s_and_b32 s{sXC}, s{sEP}, 0xfffc0000
    s_xor_b32 s{sXC}, s{sXC}, s{sTAG}
    s_or_b32 s{sTAGN}, s{sTAG}, 0x20000
    s_or_b32 s{sTAGH}, s{sTAG}, 0x3ffff
    """)
    for r in range(4):
        g(f"""
        v_mov_b32 v{E+4*r}, 0
        v_mov_b32 v{E+4*r+1}, 0
        v_mov_b32 v{E+4*r+2}, 0
        v_mov_b32 v{E+4*r+3}, s{sTAG}
        """)
    task = f"""
    s_lshl_b32 s{sT0}, s{sCB}, 3
    s_add_u32 s{sT0}, s{sT0}, s{sI}
    s_lshl_b32 s{sPO}, s{sT0}, 6
    s_add_u32 s{sPO}, s{sPO}, s{sREG}
    s_add_u32 s{sPO+1}, s{sPO}, 0x20000
    s_add_u32 s{sPO+2}, s{sPO}, 0x40000
    s_add_u32 s{sPO+3}, s{sPO}, 0x60000
    s_and_b32 s{sOO}, s{sT0}, 3
    s_lshl_b32 s{sOO}, s{sOO}, 6
    s_and_b32 s{sT1}, s{sT0}, 12
    s_lshl_b32 s{sT1}, s{sT1}, 1
    s_add_u32 s{sOO}, s{sOO}, s{sT1}
    s_and_b32 s{sT1}, s{sT0}, 16
    s_lshl_b32 s{sT1}, s{sT1}, 6
    s_add_u32 s{sOO}, s{sOO}, s{sT1}
    s_and_b32 s{sT1}, s{sT0}, 32
    s_lshr_b32 s{sT1}, s{sT1}, 3
    s_add_u32 s{sOO}, s{sOO}, s{sT1}
    s_and_b32 s{sT1}, s{sT0}, 64
    s_lshr_b32 s{sT1}, s{sT1}, 1
    s_add_u32 s{sOO}, s{sOO}, s{sT1}
    s_add_u32 s{sOO}, s{sOO}, s{sQO}
    """
    g(f"s_mov_b32 s{sFIRST}, 0")
    g("s_branch L_task")
    if a.pf: g("L_pad1:\ns_branch L_pfback")
    g(f"""
L_sibback:
    """)
    if a.lw == 1:
        g(f"""
        s_cmp_lg_u32 s{sNU}, 1
        s_cbranch_scc1 L_nw1
        buffer_load_dwordx4 {vr(JK)}, {v(vWS)}, s[24:27], s{sOWN} offen sc1
L_nw1:
        """)
    if a.lw == 2:
        g(f"""
        buffer_load_dwordx4 {vr(JK)}, {v(vWS)}, s[24:27], s{sOWN} offen sc1
        """)
    if a.warm:
        g(f"""
        s_mov_b64 exec, s[{sMK}:{sMK+1}]
        buffer_load_dwordx4 {vr(E)}, v{vPA}, s[4:7], s{sPO} offen sc1
        s_mov_b64 exec, s[{sMK+2}:{sMK+3}]
        s_cbranch_execz L_nowarm
        buffer_load_dwordx4 {vr(E+4)}, v{vPA}, s[4:7], s{sPO+1} offen sc1
L_nowarm:
        s_mov_b64 exec, -1
        """)
    g(f"""
    s_cmp_lt_i32 s{sNU}, 1
    s_cbranch_scc1 L_done
L_loop:
    s_waitcnt vmcnt(12)
    s_cmp_gt_i32 s{sNU}, 1
    s_cbranch_scc1 L_kready
    """)
    g(f"""
    s_waitcnt vmcnt({5 if a.lw == 1 else 4})
L_kready:
    """)
    if a.kst:
        g(f"""
        s_cmp_lg_u32 s{sNXT}, 2
        s_cbranch_scc1 L_nks
        s_memrealtime s[{sST+16}:{sST+17}]
        s_waitcnt lgkmcnt(0)
L_nks:
        """)
    for jj in range(4):
        g(f"ds_read_b128 {vr(KF+4*jj)}, v{KR+jj}")
    g(f"v_readlane_b32 s{sSO}, {v(vSO)}, s{sNXT}")
    g(f"s_mov_b32 m0, s{sKM}")
    for jj in range(4):
        g(f"s_waitcnt lgkmcnt({3-jj})")
        g(f"v_mfma_f32_16x16x32_bf16 {vr(S)}, {vr(KF+4*jj)}, {vr(Q+4*jj)}, " + ("0" if jj == 0 else vr(S)))
    g(f"""
    s_cmp_lt_i32 s{sNU}, 3
    s_cbranch_scc1 L_nok
    """)
    dma(8, KD, sSO)
    g("L_nok:")
    for jj in range(4):
        g(f"v_xor_b32 v{KR+jj}, 0x1000, v{KR+jj}")
    g(f"""
    s_xor_b32 s{sKM}, s{sKM}, 0x1000
    s_mov_b32 m0, s{sVM}
    s_nop 1
    s_cmp_ge_i32 s{sREM}, 16
    s_cbranch_scc1 L_nomask
    v_subrev_u32 {v(vT0)}, s{sREM}, {v(vT4q)}
    """)
    for e in range(4):
        g(f"v_cmp_gt_i32_e64 s[{sM+2*e}:{sM+2*e+1}], {-e}, {v(vT0)}")
    for e in range(4):
        g(f"v_cndmask_b32_e64 v{S+e}, {v(vNEG)}, v{S+e}, s[{sM+2*e}:{sM+2*e+1}]")
    g(f"""
L_nomask:
    v_max3_f32 {v(vM)}, v{S}, v{S+1}, {v(vM)}
    v_max3_f32 {v(vM)}, v{S+2}, v{S+3}, {v(vM)}
    v_mov_b32 {v(vT0)}, {v(vM)}
    s_nop 1
    v_permlane16_swap_b32 {v(vM)}, {v(vT0)}
    v_max_f32 {v(vM)}, {v(vM)}, {v(vT0)}
    v_mov_b32 {v(vT0)}, {v(vM)}
    s_nop 1
    v_permlane32_swap_b32 {v(vM)}, {v(vT0)}
    v_max_f32 {v(vM)}, {v(vM)}, {v(vT0)}
    v_mul_f32 {v(vT0)}, s{sC}, {v(vM)}
    v_sub_f32 {v(vAL)}, {v(vMC)}, {v(vT0)}
    """)
    for e in range(4):
        g(f"v_fma_f32 v{S+e}, v{S+e}, s{sC}, -{v(vT0)}")
    g(f"v_exp_f32 {v(vAL)}, {v(vAL)}")
    for e in range(4):
        g(f"v_exp_f32 v{S+e}, v{S+e}")
    g(f"""
    v_mov_b32 {v(vMC)}, {v(vT0)}
    v_cvt_pk_bf16_f32 v{PK}, v{S}, v{S+1}
    v_cvt_pk_bf16_f32 v{PK+1}, v{S+2}, v{S+3}
    v_mul_f32 v{LA}, {v(vAL)}, v{LA}
    """)
    for i in range(8):
        g(f"v_mul_f32 v{ACC+i}, {v(vAL)}, v{ACC+i}")
    g(f"v_mfma_f32_16x16x16_bf16 {vr(LA)}, v[{ONE}:{ONE+1}], v[{PK}:{PK+1}], {vr(LA)}")
    for aa in range(4):
        for x in range(2):
            g(f"v_mov_b32_dpp v{PA+2*aa+x}, v{PK+x} quad_perm:[0,1,2,3] row_mask:0xf bank_mask:0x{1<<aa:x}")
    g(f"""
    s_waitcnt vmcnt(12)
    s_cmp_gt_i32 s{sNU}, 2
    s_cbranch_scc1 L_vready
    """)
    if a.lw == 1:
        g(f"""
        s_cmp_gt_i32 s{sNU}, 1
        s_cbranch_scc1 L_v8
        s_waitcnt vmcnt(1)
        s_branch L_vready
L_v8:
        buffer_load_dwordx4 {vr(JK)}, {v(vWS)}, s[24:27], s{sOWN} offen sc1
        s_waitcnt vmcnt(9)
        """)
    else:
        g(f"""
        s_waitcnt vmcnt(8)
        s_cmp_gt_i32 s{sNU}, 1
        s_cbranch_scc1 L_vready
        s_waitcnt vmcnt(0)
        """)
    g(f"""
L_vready:
    """)
    for i in range(8):
        g(f"ds_read_b64_tr_b16 v[{VF+2*i}:{VF+2*i+1}], v{VR+i}")
    for i in range(8):
        aa, uu = i >> 1, i & 1
        g(f"s_waitcnt lgkmcnt({7-i})")
        g(f"v_mfma_f32_16x16x16_bf16 {vr(ACC+4*uu)}, v[{VF+2*i}:{VF+2*i+1}], v[{PA+2*aa}:{PA+2*aa+1}], {vr(ACC+4*uu)}")
    g(f"""
    s_cmp_lt_i32 s{sNU}, 2
    s_cbranch_scc1 L_last
    s_cmp_lt_i32 s{sNU}, 3
    s_cbranch_scc1 L_nov
    """)
    dma(12, VD, sSO)
    g("L_nov:")
    for i in range(8):
        g(f"v_xor_b32 v{VR+i}, 0x1000, v{VR+i}")
    g(f"""
    s_xor_b32 s{sVM}, s{sVM}, 0x1000
    s_sub_i32 s{sNU}, s{sNU}, 1
    s_sub_i32 s{sREM}, s{sREM}, 64
    s_add_u32 s{sNXT}, s{sNXT}, 1
    s_branch L_loop
    {"L_pad2:" if a.pf else ""}
    {"s_branch L_pfback" if a.pf else ""}
L_last:
    s_nop 3
L_done:
    """)
    stamp()
    g(f"""
    v_mov_b32 v{ML}, v{LA}
    v_mov_b32 v{ML+1}, {v(vMC)}
    v_add_u32 {v(vT0)}, 0x800, v{vSW}
    v_add_u32 {v(vT1)}, 0x10000, v{vSR}
    ds_write2_b64 v{vSW}, v[{ACC}:{ACC+1}], v[{ML}:{ML+1}] offset0:0 offset1:1
    ds_write2_b64 v{vSW}, v[{ACC+2}:{ACC+3}], v[{ML}:{ML+1}] offset0:128 offset1:129
    ds_write2_b64 {v(vT0)}, v[{ACC+4}:{ACC+5}], v[{ML}:{ML+1}] offset0:0 offset1:1
    ds_write2_b64 {v(vT0)}, v[{ACC+6}:{ACC+7}], v[{ML}:{ML+1}] offset0:128 offset1:129
    """)
    X = KF
    g(f"""
    s_waitcnt lgkmcnt(0)
    s_barrier
    ds_read_b128 {vr(X)}, v{vSR}
    ds_read_b128 {vr(X+4)}, v{vSR} offset:32768
    ds_read_b128 {vr(X+8)}, {v(vT1)}
    ds_read_b128 {vr(X+12)}, {v(vT1)} offset:32768
    """)
    g(f"""
    s_mov_b32 s{sT0}, 0x47ffff80
    v_mov_b32 {v(vT1)}, 0xc7ffff80
    s_mov_b32 s{sSPIN}, 0x10000
    s_mov_b32 s{sK0}, 3
    s_mov_b32 s{sLOC}, {a.thr}
    s_waitcnt lgkmcnt(0)
    """)
    stamp()
    g(f"""
    v_max3_f32 {v(vT0)}, v{X+3}, v{X+7}, v{X+11}
    v_max_f32 {v(vT0)}, {v(vT0)}, v{X+15}
    v_ceil_f32 {v(vT0)}, {v(vT0)}
    v_med3_f32 {v(vT0)}, {v(vT0)}, {v(vT1)}, s{sT0}
    v_sub_f32 v{X+3}, v{X+3}, {v(vT0)}
    v_sub_f32 v{X+7}, v{X+7}, {v(vT0)}
    v_sub_f32 v{X+11}, v{X+11}, {v(vT0)}
    v_sub_f32 v{X+15}, v{X+15}, {v(vT0)}
    v_exp_f32 v{X+3}, v{X+3}
    v_exp_f32 v{X+7}, v{X+7}
    v_exp_f32 v{X+11}, v{X+11}
    v_exp_f32 v{X+15}, v{X+15}
    v_cvt_i32_f32 v{G0+3}, {v(vT0)}
    v_pk_mul_f32 v[{G0}:{G0+1}], v[{X}:{X+1}], v[{X+2}:{X+3}] op_sel:[0,1] op_sel_hi:[1,1]
    v_mul_f32 v{G0+2}, v{X+2}, v{X+3}
    v_add_u32 v{G0+3}, s{sTAGN}, v{G0+3}
    """)
    for k in range(1, 4):
        g(f"v_pk_fma_f32 v[{G0}:{G0+1}], v[{X+4*k}:{X+4*k+1}], v[{X+4*k+2}:{X+4*k+3}], v[{G0}:{G0+1}] op_sel:[0,1,0] op_sel_hi:[1,1,1]")
        g(f"v_fmac_f32 v{G0+2}, v{X+4*k+2}, v{X+4*k+3}")
    g(f"""
    buffer_store_dwordx4 {vr(G0)}, {v(vWS)}, s[24:27], s{sOWN} offen
L_poll:
    """)
    for r in range(4):
        g(f"""
        s_mov_b64 exec, s[{sMK+2*r}:{sMK+2*r+1}]
        """ + (f"s_cbranch_execz L_pe" if r else "") + f"""
        buffer_load_dwordx4 {vr(E+4*r)}, v{vPA}, s[4:7], s{sPO+r} offen sc1
        """)
    n0, n1, n2, n3 = E + 3, E + 7, E + 11, E + 15
    W = X + 8
    g(f"""
L_pe:
    s_mov_b64 exec, -1
    s_waitcnt vmcnt(0)
    v_max3_u32 {v(vT0)}, v{n0}, v{n1}, v{n2}
    v_min3_u32 {v(vT2)}, v{n0}, v{n1}, v{n2}
    v_max_u32 {v(vT0)}, {v(vT0)}, v{n3}
    v_min_u32 {v(vT2)}, {v(vT2)}, v{n3}
    v_cmp_lt_u32 vcc, s{sTAGH}, {v(vT0)}
    v_cmp_gt_u32_e64 s[{sM}:{sM+1}], s{sTAG}, {v(vT2)}
    v_max_u32_dpp {v(vT0)}, {v(vT0)}, {v(vT0)} row_ror:4 row_mask:0xf bank_mask:0xf
    s_or_b64 vcc, vcc, s[{sM}:{sM+1}]
    s_cbranch_vccnz L_retry
L_got:
    {"s_memrealtime s[%d:%d]" % (sST+2*nst[0]+2, sST+2*nst[0]+3) if a.stamps and not a.kst else ""}
    v_max_u32_dpp {v(vT0)}, {v(vT0)}, {v(vT0)} row_ror:8 row_mask:0xf bank_mask:0xf
    v_mov_b32 {v(vT1)}, {v(vT0)}
    s_nop 1
    v_permlane16_swap_b32 {v(vT0)}, {v(vT1)}
    v_max_u32 {v(vT0)}, {v(vT0)}, {v(vT1)}
    v_mov_b32 {v(vT1)}, {v(vT0)}
    s_nop 1
    v_permlane32_swap_b32 {v(vT0)}, {v(vT1)}
    v_max_u32 {v(vT0)}, {v(vT0)}, {v(vT1)}
    v_sub_u32 v{W}, v{n0}, {v(vT0)}
    v_sub_u32 v{W+1}, v{n1}, {v(vT0)}
    v_sub_u32 v{W+2}, v{n2}, {v(vT0)}
    v_sub_u32 v{W+3}, v{n3}, {v(vT0)}
    v_ldexp_f32 v{W}, 1.0, v{W}
    v_ldexp_f32 v{W+1}, 1.0, v{W+1}
    v_ldexp_f32 v{W+2}, 1.0, v{W+2}
    v_ldexp_f32 v{W+3}, 1.0, v{W+3}
    v_mul_f32 v{X+2}, v{E+2}, v{W}
    v_pk_mul_f32 v[{X}:{X+1}], v[{E}:{E+1}], v[{W}:{W+1}] op_sel:[0,0] op_sel_hi:[1,0]
    v_fmac_f32 v{X+2}, v{E+6}, v{W+1}
    v_pk_fma_f32 v[{X}:{X+1}], v[{E+4}:{E+5}], v[{W}:{W+1}], v[{X}:{X+1}] op_sel:[0,1,0] op_sel_hi:[1,1,1]
    v_fmac_f32 v{X+2}, v{E+10}, v{W+2}
    v_pk_fma_f32 v[{X}:{X+1}], v[{E+8}:{E+9}], v[{W+2}:{W+3}], v[{X}:{X+1}] op_sel:[0,0,0] op_sel_hi:[1,0,1]
    v_fmac_f32 v{X+2}, v{E+14}, v{W+3}
    v_pk_fma_f32 v[{X}:{X+1}], v[{E+12}:{E+13}], v[{W+2}:{W+3}], v[{X}:{X+1}] op_sel:[0,1,0] op_sel_hi:[1,1,1]
    v_mov_b32 v{X+3}, v{X+2}
    v_add_u32 {v(vT2)}, s{sOO}, {v(vOUT)}
    s_nop 0
    v_permlane32_swap_b32 v{X}, v{X+1}
    v_permlane32_swap_b32 v{X+2}, v{X+3}
    v_add_f32 v{X}, v{X}, v{X+1}
    v_add_f32 v{X+2}, v{X+2}, v{X+3}
    s_nop 1
    v_permlane16_swap_b32 v{X}, v{X+2}
    v_add_f32 v{X}, v{X}, v{X+2}
    s_nop 1
    v_add_f32_dpp v{X}, v{X}, v{X} row_ror:4 row_mask:0xf bank_mask:0xf
    s_nop 1
    v_add_f32_dpp v{X}, v{X}, v{X} row_ror:8 row_mask:0xf bank_mask:0xf
    v_rcp_f32 v{X+1}, v{X}
    v_cmp_u_f32 vcc, v{X}, v{X}
    v_mov_b32 v{X+2}, v{X+1}
    s_cbranch_vccz L_clean
    s_sub_u32 s{sK0}, s{sK0}, 1
    s_cbranch_scc0 L_poll
L_clean:
    s_nop 0
    v_permlane16_swap_b32 v{X+1}, v{X}
    v_mul_f32 v{X+1}, v{X+1}, v{X+2}
    s_mov_b32 exec_lo, 0x000f0000
    s_mov_b32 exec_hi, 0x000f0000
    v_cvt_pk_bf16_f32 v{X+1}, v{X+1}, v{X+1}
    global_store_short {v(vT2)}, v{X+1}, s[20:21]
    s_mov_b64 exec, -1
    s_cmp_lg_u32 s{sPO}, s{sREG}
    s_cbranch_scc1 L_noep
    v_mov_b32 {v(vT0)}, s{sEPO}
    v_mov_b32 {v(vT1)}, s{sEP}
    s_mov_b64 exec, 1
    global_store_dword {v(vT0)}, {v(vT1)}, s[24:25]
    s_mov_b64 exec, -1
L_noep:
    s_add_u32 s{sCB}, s{sCB}, s{sNB}
    s_cmp_ge_u32 s{sCB}, 16
    s_cbranch_scc1 L_fin
L_task:
    """)
    g(task)
    g(f"""
    s_cmp_eq_u32 s{sFIRST}, 0
    s_mov_b32 s{sFIRST}, 1
    s_cbranch_scc1 L_sibback
    s_branch L_poll
L_retry:
    s_sub_u32 s{sSPIN}, s{sSPIN}, 1
    s_cbranch_scc1 L_got
    s_sub_i32 s{sLOC}, s{sLOC}, 1
    s_cmp_gt_i32 s{sLOC}, 0
    s_cbranch_scc1 L_poll
    s_cmp_lt_i32 s{sLOC}, 0
    s_cbranch_scc1 L_tog
    v_xor_b32 v{G0+3}, s{sXC}, v{G0+3}
    s_add_u32 s{sOWN}, s{sOWN}, 0x200000
    buffer_store_dwordx4 {vr(G0)}, {v(vWS)}, s[24:27], s{sOWN} offen sc1
L_tog:
    s_mov_b32 s{sLOC}, -1
    s_xor_b32 s{sREG}, s{sREG}, 0x200000
    s_xor_b32 s{sPO}, s{sPO}, 0x200000
    s_xor_b32 s{sPO+1}, s{sPO+1}, 0x200000
    s_xor_b32 s{sPO+2}, s{sPO+2}, 0x200000
    s_xor_b32 s{sPO+3}, s{sPO+3}, 0x200000
    s_xor_b32 s{sTAG}, s{sTAG}, s{sXC}
    s_xor_b32 s{sTAGH}, s{sTAGH}, s{sXC}
    v_mov_b32 v{E+3}, s{sTAG}
    v_mov_b32 v{E+7}, s{sTAG}
    v_mov_b32 v{E+11}, s{sTAG}
    v_mov_b32 v{E+15}, s{sTAG}
    s_branch L_poll
L_fin:
    """)
    if a.amp:
        stamp()
        ia, ib = a.amp // 10, a.amp % 10
        g(f"""
        s_waitcnt lgkmcnt(0)
        s_cmp_lg_u32 s2, {a.ampwg}
        s_cbranch_scc1 L_end
        s_cmp_lg_u32 s{sI}, 0
        s_cbranch_scc1 L_end
        s_sub_u32 s6, s{sST+2*ib}, s{sST+2*ia}
        s_mul_i32 s6, s6, 10
        s_min_u32 s6, s6, 50000
        s_add_u32 s6, s6, s{sST+14}
L_spin:
        s_memrealtime s[2:3]
        s_waitcnt lgkmcnt(0)
        s_sub_u32 s7, s2, s6
        s_cmp_lt_i32 s7, 0
        s_cbranch_scc1 L_spin
        """)
    elif a.stamps:
        stamp()
        n = nst[0] + 1
        g(f"""
        s_waitcnt lgkmcnt(0)
        s_lshl_b32 s6, s2, 4
        s_add_u32 s6, s6, s{sI}
        s_lshl_b32 s6, s6, 7
        s_add_u32 s6, s6, 0x1000000
        v_mov_b32 v14, s6
        s_getreg_b32 s6, hwreg(HW_REG_XCC_ID)
        s_mov_b64 exec, 1
        """)
        for k in range(n):
            g(f"v_mov_b32 v15, s{sST+2*k}")
            g(f"global_store_dword v14, v15, s[24:25] offset:{4*k}")
        g(f"""
        v_mov_b32 v15, s6
        global_store_dword v14, v15, s[24:25] offset:120
        s_sub_u32 s6, 0x10000, s{sSPIN}
        s_cmp_lt_i32 s{sLOC}, 0
        s_cselect_b32 s7, 1000, 0
        s_add_u32 s6, s6, s7
        v_mov_b32 v15, s6
        global_store_dword v14, v15, s[24:25] offset:124
        """)
    g("L_end:")
    g("s_endpgm")
    acc = (NV + 3) // 4 * 4
    out = HDR + f"; @launch grid=(256,1,1) block=(512,1,1) lds={LDS}\n"
    out += f""".amdgcn_target "amdgcn-amd-amdhsa--gfx950"
.text
.globl {NAME}_kernel
.p2align 8
.type {NAME}_kernel,@function
{NAME}_kernel:
""" + g.text() + f""".section .rodata,"a"
.p2align 6
.amdhsa_kernel {NAME}_kernel
  .amdhsa_next_free_vgpr {NV}
  .amdhsa_next_free_sgpr 102
  .amdhsa_accum_offset {acc}
  .amdhsa_group_segment_fixed_size 0
  .amdhsa_kernarg_size 64
  .amdhsa_user_sgpr_count 2
  .amdhsa_user_sgpr_kernarg_segment_ptr 1
  .amdhsa_system_sgpr_workgroup_id_x 1
.end_amdhsa_kernel
"""
    return out

if __name__ == "__main__":
    p = argparse.ArgumentParser()
    for k, d in dict(map=0, stamps=0, ch=20, snt=0, nt=1, prio=1, scl=1, early_const=1, fine=0, warm=0, pf=1, lw=3, thr=16, kst=0, otouch=0, kvtouch=0, amp=0, ampwg=0).items():
        p.add_argument("--" + k, type=int, default=d)
    p.add_argument("-o", default="-")
    a = p.parse_args()
    if a.amp: a.stamps = 1
    t = gen(a)
    if a.o == "-": sys.stdout.write(t)
    else: open(a.o, "w").write(t)
```

```python
import sys, argparse, math, struct
from gen import NAME, HDR, f32bits, G

def gen(a):
    g = G()
    CH = a.ch
    KVSIZE = 1028 * 32768
    C = (128 ** -0.5) * math.log2(math.e)
    TBL = 131072
    LDS = TBL + 5376
    EPOFF = 0x600000
    snt = " nt" if a.snt else ""
    kvnt = ["", " nt", " sc1 nt", " sc0 sc1 nt", " sc0 nt"][a.nt]
    sI, sJ, sHP, sH256 = 28, 29, 30, 31
    sB, sCB, sNB, sREM, sNU, sNXT, sKM, sVM, sSO, sC, sT0, sT1, sOWN, sK0, sCONS, sSPIN, sX0, sX1, sQO, sTAG = range(32, 52)
    sM = 52
    sSIB = 60
    sEP, sTAGN, sTAGH, sEPO = 80, 81, 82, 83
    sMK, sPO, sOO, sFIRST, sXC, sLOC, sDO = 60, 68, 72, 73, 74, 75, 76
    sXD = 52
    sREG = 77
    sST = 84
    nst = [0]
    def stamp():
        if a.stamps:
            k = nst[0]; nst[0] += 1
            assert sST + 2 * k + 1 <= 101
            g(f"s_memrealtime s[{sST+2*k}:{sST+2*k+1}]")
    vL, vT0, vT1, vT2, vT3, vT4, vT5, vSO, vWS, vOUT, vTK, vM, vMC, vAL, vNEG, vT4q, vSW, vSR = range(1, 19)
    ACC, LA, ML, KF = 20, 28, 32, 36
    KD, VD, KR, VR, Q, PA, PK, ONE, S, VF = 52, 56, 60, 64, 72, 88, 96, 98, 100, 104
    E = 120
    G0 = 136
    vPA = 19
    JK = G0 + 4
    NV = JK + 8
    def v(i): return f"v{i}"
    def vr(b, n=4): return f"v[{b}:{b+n-1}]"
    stamp()
    g(f"""
    s_load_dwordx4 s[16:19], s[0:1], 24
    s_load_dwordx2 s[8:9], s[0:1], 8
    s_load_dwordx2 s[12:13], s[0:1], 16
    s_load_dwordx2 s[4:5], s[0:1], 0
    s_load_dwordx2 s[24:25], s[0:1], 56
    s_load_dwordx2 s[20:21], s[0:1], 40
    s_cmp_ge_u32 s2, 256
    s_cbranch_scc1 L_end
    v_readfirstlane_b32 s3, v0
    """)
    if a.pf:
        g("""
        s_cmpk_eq_u32 s3, 320
        s_cbranch_scc1 L_pad0
        s_cmpk_eq_u32 s3, 384
        s_cbranch_scc1 L_pad1
        s_cmpk_eq_u32 s3, 448
        s_cbranch_scc1 L_pad2
L_pfback:
        """)
    g(f"""
    v_and_b32 {v(vL)}, 63, v0
    v_and_b32 {v(vT0)}, 3, v0
    v_lshlrev_b32 {v(vT0)}, 2, {v(vT0)}
    v_lshlrev_b32 {v(vWS)}, 4, v0
    v_and_b32 {v(vT1)}, 0xfff, {v(vWS)}
    s_lshr_b32 s{sI}, s3, 6
    s_lshl_b32 s3, s3, 4
    s_and_b32 s3, s3, 0xfff
    s_add_u32 s3, s3, {TBL}
    s_mov_b32 m0, s3
    s_mov_b32 s10, 0x{KVSIZE:x}
    s_mov_b32 s11, 0x20000
    s_mov_b32 s14, 0x{KVSIZE:x}
    s_mov_b32 s15, 0x20000
    s_mov_b32 s26, 0x400000
    s_mov_b32 s27, 0x20000
    """)
    if a.map == 0:
        g(f"""
        s_and_b32 s{sHP}, s2, 3
        s_lshl_b32 s{sJ}, s2, 3
        s_and_b32 s{sJ}, s{sJ}, 32
        s_lshr_b32 s{sT0}, s2, 3
        s_add_u32 s{sJ}, s{sJ}, s{sT0}
        """)
    else:
        g(f"""
        s_lshr_b32 s{sHP}, s2, 6
        s_and_b32 s{sJ}, s2, 63
        """)
    lanec = f"""
    s_and_b32 s{sT0}, s{sI}, 1
    s_lshl_b32 s{sH256}, s{sHP}, 1
    s_add_u32 s{sH256}, s{sH256}, s{sT0}
    s_lshl_b32 s{sH256}, s{sH256}, 8
    s_lshl_b32 s{sKM}, s{sI}, 14
    s_add_u32 s{sVM}, s{sKM}, 0x2000
    v_lshrrev_b32 {v(vT4q)}, 4, {v(vL)}
    v_and_b32 {v(vT2)}, 15, v0
    v_xor_b32 {v(vT3)}, {v(vT2)}, {v(vT4q)}
    v_lshlrev_b32 {v(vT3)}, 4, {v(vT3)}
    v_lshl_add_u32 v{KR}, {v(vT2)}, 8, {v(vT3)}
    v_add_u32 v{KR}, s{sKM}, v{KR}
    v_lshl_add_u32 v{KD}, {v(vT4q)}, 11, {v(vT3)}
    v_add_u32 v{KD}, s{sH256}, v{KD}
    v_lshlrev_b32 {v(vT3)}, 1, {v(vT4q)}
    v_xor_b32 {v(vT3)}, {v(vT2)}, {v(vT3)}
    v_lshlrev_b32 {v(vT3)}, 4, {v(vT3)}
    v_lshl_add_u32 v{VD}, {v(vT4q)}, 11, {v(vT3)}
    v_add_u32 v{VD}, s{sH256}, v{VD}
    """
    for e in range(1, 4):
        lanec += f"""
        v_xor_b32 v{KD+e}, {e<<6}, v{KD}
        v_add_u32 v{KD+e}, {e*7168}, v{KD+e}
        """
    lanec += f"""
    v_xor_b32 v{VD+1}, 0x80, v{VD}
    v_add_u32 v{VD+2}, {2*7168}, v{VD}
    v_add_u32 v{VD+3}, {3*7168}, v{VD+1}
    v_add_u32 v{VD+1}, 7168, v{VD+1}
    v_add_u32 {v(vT5)}, 1, {v(vL)}
    s_mov_b32 s{sT1}, 0x42700000
    """
    nsh = 8 if a.lw != 3 else (0 if (a.kvtouch or a.stamps) else 2 if a.otouch else 4)
    shadow = f"""
    v_and_b32 {v(vT4)}, 3, v0
    v_lshrrev_b32 {v(vT0)}, 2, {v(vT2)}
    v_lshl_add_u32 {v(vT0)}, {v(vT4q)}, 2, {v(vT0)}
    v_and_b32 {v(vT3)}, 7, {v(vT0)}
    v_lshlrev_b32 {v(vT3)}, 5, {v(vT3)}
    v_lshl_add_u32 {v(vT3)}, {v(vT0)}, 8, {v(vT3)}
    v_lshl_add_u32 {v(vT3)}, {v(vT4)}, 3, {v(vT3)}
    v_add_u32 v{VR}, s{sVM}, {v(vT3)}
    """ + "".join(f"v_mov_b32 v{ACC+i}, 0\n" for i in range(nsh))
    if a.early_const: g(lanec)
    g("s_waitcnt lgkmcnt(0)")
    stamp()
    if a.scl:
        g(f"""
        s_load_dwordx4 s[{sM}:{sM+3}], s[18:19], 0
        s_cmp_ge_u32 s{sI}, 4
        s_cbranch_scc1 L_notbl
        global_load_lds_dwordx4 {v(vT1)}, s[16:17]{snt}
L_notbl:
        """)
        if a.lw == 3:
            g(f"""
            s_lshl_b32 s{sOWN}, s{sHP}, 6
            s_add_u32 s{sOWN}, s{sOWN}, s{sJ}
            s_lshl_b32 s{sOWN}, s{sOWN}, 13
            buffer_load_dwordx4 {vr(JK)}, {v(vWS)}, s[24:27], s{sOWN} offen sc1
            """)
        if a.otouch:
            g(f"""
            global_load_dword v{JK+4}, {v(vWS)}, s[20:21]
            """)
        if a.kvtouch:
            g(f"""
            s_cmp_lg_u32 s{sI}, {a.kvtouch}
            s_cbranch_scc1 L_nkt
            v_lshlrev_b32 {v(vT4)}, 21, {v(vL)}
            buffer_load_dword v{JK+5}, {v(vT4)}, s[8:11], 0 offen nt
            buffer_load_dword v{JK+6}, {v(vT4)}, s[12:15], 0 offen nt
L_nkt:
            """)
        g(shadow)
        if a.pf:
            g(f"""
            s_branch L_math
            .fill ({NAME}_kernel + 0x200 - .) / 4, 4, 0xbf800000
L_pad0:
            s_branch L_pfback
L_math:
            """)
    else:
        g(f"""
        global_load_dword {v(vT0)}, {v(vT0)}, s[18:19]{snt}
        global_load_lds_dwordx4 {v(vT1)}, s[16:17]{snt}
        """)
    if not a.early_const: g(lanec)
    if a.scl:
        g("s_waitcnt lgkmcnt(0)")
        stamp()
        g(f"""
        v_mov_b32 {v(vT0)}, s{sM}
        v_writelane_b32 {v(vT0)}, s{sM+3}, 1
        v_writelane_b32 {v(vT0)}, s{sM+1}, 2
        v_writelane_b32 {v(vT0)}, s{sM+2}, 3
        """)
    else:
        g("s_waitcnt vmcnt(1)")
        stamp()
    cl, nb, pf, cn, cb, x0, x1 = vT0, vT1, vT3, vSO, vTK, vM, vMC
    fq, n_, k_ = vAL, vNEG, vOUT
    g(f"""
    v_add_u32 {v(nb)}, -1, {v(cl)}
    v_ashrrev_i32 {v(nb)}, 4, {v(nb)}
    v_min_u32 {v(nb)}, 0xff, {v(nb)}
    v_add_u32 {v(nb)}, 1, {v(nb)}
    s_nop 1
    v_add_u32_dpp {v(pf)}, {v(nb)}, {v(nb)} row_shr:1 row_mask:0xf bank_mask:0xf bound_ctrl:0
    v_lshlrev_b32 {v(nb)}, 1, {v(nb)}
    v_cvt_f32_u32 {v(fq)}, {v(nb)}
    v_add_u32_dpp {v(pf)}, {v(pf)}, {v(pf)} row_shr:2 row_mask:0xf bank_mask:0xf bound_ctrl:0
    s_nop 1
    v_cvt_f32_u32_dpp {v(cn)}, {v(pf)} quad_perm:[3,3,3,3] row_mask:0xf bank_mask:0xf
    v_cvt_f32_u32 {v(pf)}, {v(pf)}
    v_rcp_f32 {v(cn)}, {v(cn)}
    v_mul_f32 {v(pf)}, s{sT1}, {v(pf)}
    v_fma_f32 {v(cn)}, {v(pf)}, {v(cn)}, 0.5
    v_cvt_u32_f32 {v(cn)}, {v(cn)}
    v_add_u32 {v(cn)}, {v(cn)}, {v(vT5)}
    v_cmp_ge_u32 vcc, s{sJ}, {v(cn)}
    s_nop 0
    v_mov_b32_dpp {v(cb)}, {v(cn)} row_shr:1 row_mask:0xf bank_mask:0xf bound_ctrl:0
    s_and_b32 s{sB}, vcc_lo, 7
    v_sub_u32 {v(n_)}, {v(cn)}, {v(cb)}
    v_sub_u32 {v(k_)}, s{sJ}, {v(cb)}
    v_cvt_f32_u32 {v(x0)}, {v(n_)}
    v_rcp_f32 {v(x0)}, {v(x0)}
    v_add_u32 {v(pf)}, 1, {v(k_)}
    v_mul_f32 {v(fq)}, {v(fq)}, {v(x0)}
    v_cvt_f32_u32 {v(x0)}, {v(k_)}
    v_cvt_f32_u32 {v(x1)}, {v(pf)}
    v_cmp_eq_u32 vcc, {v(pf)}, {v(n_)}
    v_mul_f32 {v(x0)}, {v(x0)}, {v(fq)}
    v_mul_f32 {v(x1)}, {v(x1)}, {v(fq)}
    v_cvt_u32_f32 {v(x0)}, {v(x0)}
    v_cvt_u32_f32 {v(x1)}, {v(x1)}
    s_bcnt1_i32_b32 s{sB}, s{sB}
    v_cndmask_b32 {v(x1)}, {v(x1)}, {v(nb)}, vcc
    v_readlane_b32 s{sX0}, {v(x0)}, s{sB}
    v_readlane_b32 s{sREM}, {v(cl)}, s{sB}
    v_readlane_b32 s{sX1}, {v(x1)}, s{sB}
    v_readlane_b32 s{sCB}, {v(cb)}, s{sB}
    v_readlane_b32 s{sNB}, {v(n_)}, s{sB}
    s_lshl_b32 s{sB}, s{sB}, 2
    s_lshr_b32 s{sB}, 0x2130, s{sB}
    s_and_b32 s{sB}, s{sB}, 3
    s_xor_b32 s{sT0}, s{sX0}, s{sI}
    s_and_b32 s{sT0}, s{sT0}, 1
    s_add_u32 s{sX0}, s{sX0}, s{sT0}
    s_andn2_b32 s{sT0}, s{sI}, 1
    s_add_u32 s{sX0}, s{sX0}, s{sT0}
    s_sub_i32 s{sNU}, s{sX1}, s{sX0}
    s_lshr_b32 s{sX0}, s{sX0}, 1
    s_lshl_b32 s{sT0}, s{sB}, 8
    s_add_u32 s{sT0}, s{sT0}, s{sX0}
    s_lshl_b32 s{sT0}, s{sT0}, 2
    s_add_u32 s{sT0}, s{sT0}, {TBL}
    v_lshl_add_u32 {v(vT0)}, {v(vL)}, 4, s{sT0}
    """)
    if a.fine: stamp()
    g(f"""
    {"s_cmp_ge_u32 s%d, 4" % sI if a.kvtouch else ""}
    {"s_cbranch_scc1 L_ntw" if a.kvtouch else ""}
    s_waitcnt vmcnt({(1 if a.lw == 3 else 0) + (1 if a.otouch else 0)})
    {"L_ntw:" if a.kvtouch else ""}
    s_barrier
    ds_read_b32 {v(vSO)}, {v(vT0)}
    s_add_i32 s{sNU}, s{sNU}, 7
    s_ashr_i32 s{sNU}, s{sNU}, 3
    s_cmp_gt_i32 s{sREM}, 0
    s_cselect_b32 s{sX1}, 0xce800000, 0
    s_lshl_b32 s{sX0}, s{sX0}, 4
    s_sub_i32 s{sREM}, s{sREM}, s{sX0}
    s_lshl_b32 s{sQO}, s{sB}, 13
    s_lshl_b32 s{sT0}, s{sH256}, 2
    s_add_u32 s{sQO}, s{sQO}, s{sT0}
    v_and_b32 {v(vT1)}, 3, v0
    v_lshlrev_b32 {v(vT3)}, 4, {v(vT4q)}
    v_lshl_add_u32 {v(vT3)}, {v(vT1)}, 8, {v(vT3)}
    v_add_u32 {v(vT3)}, s{sQO}, {v(vT3)}
    s_mov_b32 m0, s{sKM}
    s_cmp_lt_i32 s{sNU}, 1
    s_cbranch_scc1 L_issued
    s_waitcnt lgkmcnt(0)
    v_lshlrev_b32 {v(vSO)}, 15, {v(vSO)}
    s_nop 0
    v_readlane_b32 s{sSO}, {v(vSO)}, 0
    v_readlane_b32 s{sT1}, {v(vSO)}, 1
    s_nop 3
    """)
    stamp()
    if a.prio: g("s_setprio 3")
    def dma(srd, offs, so):
        for e in range(4):
            io = f" offset:{e*1024}" if e else ""
            g(f"buffer_load_dwordx4 v{offs+e}, s[{srd}:{srd+3}], s{so} offen{io}{kvnt} lds")
    dma(8, KD, sSO)
    for jj in range(4):
        g(f"global_load_dwordx4 {vr(Q+4*jj)}, {v(vT3)}, s[4:5]" + (f" offset:{64*jj}" if jj else "") + snt)
    g(f"s_mov_b32 m0, s{sVM}")
    g(f"s_nop 0")
    dma(12, VD, sSO)
    if a.prio == 2: g("s_setprio 2")
    g(f"""
    s_cmp_lt_i32 s{sNU}, 2
    s_cbranch_scc1 L_issued
    s_add_u32 s{sT0}, s{sKM}, 0x1000
    s_mov_b32 m0, s{sT0}
    s_add_u32 s{sT0}, s{sVM}, 0x1000
    """)
    dma(8, KD, sT1)
    g(f"s_mov_b32 m0, s{sT0}")
    g(f"s_nop 0")
    dma(12, VD, sT1)
    g("L_issued:")
    if a.prio: g("s_setprio 0")
    stamp()
    g(f"""
    s_lshl_b32 s{sEPO}, s{sHP}, 2
    s_add_u32 s{sEPO}, s{sEPO}, s{sB}
    s_lshl_b32 s{sEPO}, s{sEPO}, 7
    s_add_u32 s{sEPO}, s{sEPO}, {EPOFF + 12}
    s_load_dword s{sEP}, s[24:25], s{sEPO}
    """)
    for i in range(1, 8):
        g(f"v_xor_b32 v{VR+i}, {i<<5}, v{VR}")
    for e in range(1, 4):
        g(f"v_xor_b32 v{KR+e}, {e<<6}, v{KR}")
    g(f"""
    v_lshlrev_b32 {v(vT4q)}, 2, {v(vT4q)}
    v_lshl_add_u32 v{vSW}, {v(vL)}, 4, s{sKM}
    s_and_b32 s{sT0}, s{sI}, 1
    s_lshl_b32 s{sT0}, s{sT0}, 14
    s_lshr_b32 s{sT1}, s{sI}, 1
    s_lshl_b32 s{sT1}, s{sT1}, 10
    s_add_u32 s{sT0}, s{sT0}, s{sT1}
    v_lshl_add_u32 v{vSR}, {v(vL)}, 4, s{sT0}
    v_mov_b32 {v(vNEG)}, s{sX1}
    s_mov_b32 s{sC}, 0x{f32bits(C):08x}
    v_mov_b32 {v(vM)}, 0xce800000
    v_mul_f32 {v(vMC)}, s{sC}, {v(vM)}
    v_mov_b32 v{ONE}, 0x3f803f80
    v_mov_b32 v{ONE+1}, 0x3f803f80
    """)
    for i in range(nsh, 8): g(f"v_mov_b32 v{ACC+i}, 0")
    for i in range(4): g(f"v_mov_b32 v{LA+i}, 0")
    for i in range(8): g(f"v_mov_b32 v{PA+i}, 0")
    g(f"""
    s_lshl_b32 s{sT0}, s{sHP}, 6
    s_add_u32 s{sOWN}, s{sT0}, s{sJ}
    s_lshl_b32 s{sOWN}, s{sOWN}, 13
    s_getreg_b32 s{sXC}, hwreg(HW_REG_XCC_ID, 0, 3)
    s_lshl_b32 s{sXC}, s{sXC}, 18
    s_add_u32 s{sT0}, s{sT0}, s{sCB}
    s_lshl_b32 s{sT0}, s{sT0}, 13
    s_add_u32 s4, s24, s{sT0}
    s_addc_u32 s5, s25, 0
    s_mov_b32 s6, 0x400000
    s_mov_b32 s7, 0x20000
    s_sub_u32 s{sCB}, s{sJ}, s{sCB}
    s_and_b32 s{sCB}, s{sCB}, 15
    s_mov_b32 s{sREG}, 0
    s_mov_b32 s{sNXT}, 2
    v_lshrrev_b32 {v(vT0)}, 2, {v(vL)}
    v_lshlrev_b32 v{vPA}, 4, {v(vT1)}
    v_lshl_add_u32 v{vPA}, {v(vT0)}, 13, v{vPA}
    v_cmp_gt_u32_e64 s[{sMK}:{sMK+1}], s{sNB}, {v(vT0)}
    v_add_u32 {v(vT0)}, 16, {v(vT0)}
    v_cmp_gt_u32_e64 s[{sMK+2}:{sMK+3}], s{sNB}, {v(vT0)}
    v_add_u32 {v(vT0)}, 16, {v(vT0)}
    v_cmp_gt_u32_e64 s[{sMK+4}:{sMK+5}], s{sNB}, {v(vT0)}
    v_add_u32 {v(vT0)}, 16, {v(vT0)}
    v_cmp_gt_u32_e64 s[{sMK+6}:{sMK+7}], s{sNB}, {v(vT0)}
    v_lshrrev_b32 {v(vOUT)}, 4, {v(vL)}
    v_and_b32 {v(vOUT)}, 2, {v(vOUT)}
    v_lshl_add_u32 {v(vOUT)}, {v(vT1)}, 8, {v(vOUT)}
    s_lshl_b32 s{sQO}, s{sB}, 13
    s_lshl_b32 s{sT0}, s{sHP}, 11
    s_add_u32 s{sQO}, s{sQO}, s{sT0}
    s_waitcnt lgkmcnt(0)
    s_add_u32 s{sEP}, s{sEP}, 0x9e3c0000
    s_and_b32 s{sTAG}, s{sEP}, 0xffe00000
    s_or_b32 s{sTAG}, s{sTAG}, s{sXC}
    s_and_b32 s{sXC}, s{sEP}, 0xfffc0000
    s_xor_b32 s{sXC}, s{sXC}, s{sTAG}
    s_or_b32 s{sTAGN}, s{sTAG}, 0x20000
    s_or_b32 s{sTAGH}, s{sTAG}, 0x3ffff
    """)
    for r in range(4):
        g(f"""
        v_mov_b32 v{E+4*r}, 0
        v_mov_b32 v{E+4*r+1}, 0
        v_mov_b32 v{E+4*r+2}, 0
        v_mov_b32 v{E+4*r+3}, s{sTAG}
        """)
    task = f"""
    s_lshl_b32 s{sT0}, s{sCB}, 3
    s_add_u32 s{sT0}, s{sT0}, s{sI}
    s_lshl_b32 s{sPO}, s{sT0}, 6
    s_add_u32 s{sPO}, s{sPO}, s{sREG}
    s_add_u32 s{sPO+1}, s{sPO}, 0x20000
    s_add_u32 s{sPO+2}, s{sPO}, 0x40000
    s_add_u32 s{sPO+3}, s{sPO}, 0x60000
    s_and_b32 s{sOO}, s{sT0}, 3
    s_lshl_b32 s{sOO}, s{sOO}, 6
    s_and_b32 s{sT1}, s{sT0}, 12
    s_lshl_b32 s{sT1}, s{sT1}, 1
    s_add_u32 s{sOO}, s{sOO}, s{sT1}
    s_and_b32 s{sT1}, s{sT0}, 16
    s_lshl_b32 s{sT1}, s{sT1}, 6
    s_add_u32 s{sOO}, s{sOO}, s{sT1}
    s_and_b32 s{sT1}, s{sT0}, 32
    s_lshr_b32 s{sT1}, s{sT1}, 3
    s_add_u32 s{sOO}, s{sOO}, s{sT1}
    s_and_b32 s{sT1}, s{sT0}, 64
    s_lshr_b32 s{sT1}, s{sT1}, 1
    s_add_u32 s{sOO}, s{sOO}, s{sT1}
    s_add_u32 s{sOO}, s{sOO}, s{sQO}
    """
    g(f"s_mov_b32 s{sFIRST}, 0")
    g("s_branch L_task")
    if a.pf: g("L_pad1:\ns_branch L_pfback")
    g(f"""
L_sibback:
    """)
    if a.lw == 1:
        g(f"""
        s_cmp_lg_u32 s{sNU}, 1
        s_cbranch_scc1 L_nw1
        buffer_load_dwordx4 {vr(JK)}, {v(vWS)}, s[24:27], s{sOWN} offen sc1
L_nw1:
        """)
    if a.lw == 2:
        g(f"""
        buffer_load_dwordx4 {vr(JK)}, {v(vWS)}, s[24:27], s{sOWN} offen sc1
        """)
    if a.warm:
        g(f"""
        s_mov_b64 exec, s[{sMK}:{sMK+1}]
        buffer_load_dwordx4 {vr(E)}, v{vPA}, s[4:7], s{sPO} offen sc1
        s_mov_b64 exec, s[{sMK+2}:{sMK+3}]
        s_cbranch_execz L_nowarm
        buffer_load_dwordx4 {vr(E+4)}, v{vPA}, s[4:7], s{sPO+1} offen sc1
L_nowarm:
        s_mov_b64 exec, -1
        """)
    g(f"""
    s_cmp_lt_i32 s{sNU}, 1
    s_cbranch_scc1 L_done
L_loop:
    s_waitcnt vmcnt(12)
    s_cmp_gt_i32 s{sNU}, 1
    s_cbranch_scc1 L_kready
    """)
    g(f"""
    s_waitcnt vmcnt({5 if a.lw == 1 else 4})
L_kready:
    """)
    if a.kst:
        g(f"""
        s_cmp_lg_u32 s{sNXT}, 2
        s_cbranch_scc1 L_nks
        s_memrealtime s[{sST+16}:{sST+17}]
        s_waitcnt lgkmcnt(0)
L_nks:
        """)
    for jj in range(4):
        g(f"ds_read_b128 {vr(KF+4*jj)}, v{KR+jj}")
    g(f"v_readlane_b32 s{sSO}, {v(vSO)}, s{sNXT}")
    g(f"s_mov_b32 m0, s{sKM}")
    for jj in range(4):
        g(f"s_waitcnt lgkmcnt({3-jj})")
        g(f"v_mfma_f32_16x16x32_bf16 {vr(S)}, {vr(KF+4*jj)}, {vr(Q+4*jj)}, " + ("0" if jj == 0 else vr(S)))
    g(f"""
    s_cmp_lt_i32 s{sNU}, 3
    s_cbranch_scc1 L_nok
    """)
    dma(8, KD, sSO)
    g("L_nok:")
    for jj in range(4):
        g(f"v_xor_b32 v{KR+jj}, 0x1000, v{KR+jj}")
    g(f"""
    s_xor_b32 s{sKM}, s{sKM}, 0x1000
    s_mov_b32 m0, s{sVM}
    s_nop 1
    s_cmp_ge_i32 s{sREM}, 16
    s_cbranch_scc1 L_nomask
    v_subrev_u32 {v(vT0)}, s{sREM}, {v(vT4q)}
    """)
    for e in range(4):
        g(f"v_cmp_gt_i32_e64 s[{sM+2*e}:{sM+2*e+1}], {-e}, {v(vT0)}")
    for e in range(4):
        g(f"v_cndmask_b32_e64 v{S+e}, {v(vNEG)}, v{S+e}, s[{sM+2*e}:{sM+2*e+1}]")
    g(f"""
L_nomask:
    v_max3_f32 {v(vM)}, v{S}, v{S+1}, {v(vM)}
    v_max3_f32 {v(vM)}, v{S+2}, v{S+3}, {v(vM)}
    v_mov_b32 {v(vT0)}, {v(vM)}
    s_nop 1
    v_permlane16_swap_b32 {v(vM)}, {v(vT0)}
    v_max_f32 {v(vM)}, {v(vM)}, {v(vT0)}
    v_mov_b32 {v(vT0)}, {v(vM)}
    s_nop 1
    v_permlane32_swap_b32 {v(vM)}, {v(vT0)}
    v_max_f32 {v(vM)}, {v(vM)}, {v(vT0)}
    v_mul_f32 {v(vT0)}, s{sC}, {v(vM)}
    v_sub_f32 {v(vAL)}, {v(vMC)}, {v(vT0)}
    """)
    for e in range(4):
        g(f"v_fma_f32 v{S+e}, v{S+e}, s{sC}, -{v(vT0)}")
    g(f"v_exp_f32 {v(vAL)}, {v(vAL)}")
    for e in range(4):
        g(f"v_exp_f32 v{S+e}, v{S+e}")
    g(f"""
    v_mov_b32 {v(vMC)}, {v(vT0)}
    v_cvt_pk_bf16_f32 v{PK}, v{S}, v{S+1}
    v_cvt_pk_bf16_f32 v{PK+1}, v{S+2}, v{S+3}
    v_mul_f32 v{LA}, {v(vAL)}, v{LA}
    """)
    for i in range(8):
        g(f"v_mul_f32 v{ACC+i}, {v(vAL)}, v{ACC+i}")
    g(f"v_mfma_f32_16x16x16_bf16 {vr(LA)}, v[{ONE}:{ONE+1}], v[{PK}:{PK+1}], {vr(LA)}")
    for aa in range(4):
        for x in range(2):
            g(f"v_mov_b32_dpp v{PA+2*aa+x}, v{PK+x} quad_perm:[0,1,2,3] row_mask:0xf bank_mask:0x{1<<aa:x}")
    g(f"""
    s_waitcnt vmcnt(12)
    s_cmp_gt_i32 s{sNU}, 2
    s_cbranch_scc1 L_vready
    """)
    if a.lw == 1:
        g(f"""
        s_cmp_gt_i32 s{sNU}, 1
        s_cbranch_scc1 L_v8
        s_waitcnt vmcnt(1)
        s_branch L_vready
L_v8:
        buffer_load_dwordx4 {vr(JK)}, {v(vWS)}, s[24:27], s{sOWN} offen sc1
        s_waitcnt vmcnt(9)
        """)
    else:
        g(f"""
        s_waitcnt vmcnt(8)
        s_cmp_gt_i32 s{sNU}, 1
        s_cbranch_scc1 L_vready
        s_waitcnt vmcnt(0)
        """)
    g(f"""
L_vready:
    """)
    for i in range(8):
        g(f"ds_read_b64_tr_b16 v[{VF+2*i}:{VF+2*i+1}], v{VR+i}")
    for i in range(8):
        aa, uu = i >> 1, i & 1
        g(f"s_waitcnt lgkmcnt({7-i})")
        g(f"v_mfma_f32_16x16x16_bf16 {vr(ACC+4*uu)}, v[{VF+2*i}:{VF+2*i+1}], v[{PA+2*aa}:{PA+2*aa+1}], {vr(ACC+4*uu)}")
    g(f"""
    s_cmp_lt_i32 s{sNU}, 2
    s_cbranch_scc1 L_last
    s_cmp_lt_i32 s{sNU}, 3
    s_cbranch_scc1 L_nov
    """)
    dma(12, VD, sSO)
    g("L_nov:")
    for i in range(8):
        g(f"v_xor_b32 v{VR+i}, 0x1000, v{VR+i}")
    g(f"""
    s_xor_b32 s{sVM}, s{sVM}, 0x1000
    s_sub_i32 s{sNU}, s{sNU}, 1
    s_sub_i32 s{sREM}, s{sREM}, 64
    s_add_u32 s{sNXT}, s{sNXT}, 1
    s_branch L_loop
    {"L_pad2:" if a.pf else ""}
    {"s_branch L_pfback" if a.pf else ""}
L_last:
    s_nop 3
L_done:
    """)
    stamp()
    g(f"""
    v_mov_b32 v{ML}, v{LA}
    v_mov_b32 v{ML+1}, {v(vMC)}
    v_add_u32 {v(vT0)}, 0x800, v{vSW}
    v_add_u32 {v(vT1)}, 0x10000, v{vSR}
    ds_write2_b64 v{vSW}, v[{ACC}:{ACC+1}], v[{ML}:{ML+1}] offset0:0 offset1:1
    ds_write2_b64 v{vSW}, v[{ACC+2}:{ACC+3}], v[{ML}:{ML+1}] offset0:128 offset1:129
    ds_write2_b64 {v(vT0)}, v[{ACC+4}:{ACC+5}], v[{ML}:{ML+1}] offset0:0 offset1:1
    ds_write2_b64 {v(vT0)}, v[{ACC+6}:{ACC+7}], v[{ML}:{ML+1}] offset0:128 offset1:129
    """)
    X = KF
    g(f"""
    s_waitcnt lgkmcnt(0)
    s_barrier
    ds_read_b128 {vr(X)}, v{vSR}
    ds_read_b128 {vr(X+4)}, v{vSR} offset:32768
    ds_read_b128 {vr(X+8)}, {v(vT1)}
    ds_read_b128 {vr(X+12)}, {v(vT1)} offset:32768
    """)
    g(f"""
    s_mov_b32 s{sT0}, 0x47ffff80
    v_mov_b32 {v(vT1)}, 0xc7ffff80
    s_mov_b32 s{sSPIN}, 0x10000
    s_mov_b32 s{sK0}, 3
    s_mov_b32 s{sLOC}, {a.thr}
    s_waitcnt lgkmcnt(0)
    """)
    stamp()
    g(f"""
    v_max3_f32 {v(vT0)}, v{X+3}, v{X+7}, v{X+11}
    v_max_f32 {v(vT0)}, {v(vT0)}, v{X+15}
    v_ceil_f32 {v(vT0)}, {v(vT0)}
    v_med3_f32 {v(vT0)}, {v(vT0)}, {v(vT1)}, s{sT0}
    v_sub_f32 v{X+3}, v{X+3}, {v(vT0)}
    v_sub_f32 v{X+7}, v{X+7}, {v(vT0)}
    v_sub_f32 v{X+11}, v{X+11}, {v(vT0)}
    v_sub_f32 v{X+15}, v{X+15}, {v(vT0)}
    v_exp_f32 v{X+3}, v{X+3}
    v_exp_f32 v{X+7}, v{X+7}
    v_exp_f32 v{X+11}, v{X+11}
    v_exp_f32 v{X+15}, v{X+15}
    v_cvt_i32_f32 v{G0+3}, {v(vT0)}
    v_pk_mul_f32 v[{G0}:{G0+1}], v[{X}:{X+1}], v[{X+2}:{X+3}] op_sel:[0,1] op_sel_hi:[1,1]
    v_mul_f32 v{G0+2}, v{X+2}, v{X+3}
    v_add_u32 v{G0+3}, s{sTAGN}, v{G0+3}
    """)
    for k in range(1, 4):
        g(f"v_pk_fma_f32 v[{G0}:{G0+1}], v[{X+4*k}:{X+4*k+1}], v[{X+4*k+2}:{X+4*k+3}], v[{G0}:{G0+1}] op_sel:[0,1,0] op_sel_hi:[1,1,1]")
        g(f"v_fmac_f32 v{G0+2}, v{X+4*k+2}, v{X+4*k+3}")
    g(f"""
    buffer_store_dwordx4 {vr(G0)}, {v(vWS)}, s[24:27], s{sOWN} offen
L_poll:
    """)
    for r in range(4):
        g(f"""
        s_mov_b64 exec, s[{sMK+2*r}:{sMK+2*r+1}]
        """ + (f"s_cbranch_execz L_pe" if r else "") + f"""
        buffer_load_dwordx4 {vr(E+4*r)}, v{vPA}, s[4:7], s{sPO+r} offen sc1
        """)
    n0, n1, n2, n3 = E + 3, E + 7, E + 11, E + 15
    W = X + 8
    g(f"""
L_pe:
    s_mov_b64 exec, -1
    s_waitcnt vmcnt(0)
    v_max3_u32 {v(vT0)}, v{n0}, v{n1}, v{n2}
    v_min3_u32 {v(vT2)}, v{n0}, v{n1}, v{n2}
    v_max_u32 {v(vT0)}, {v(vT0)}, v{n3}
    v_min_u32 {v(vT2)}, {v(vT2)}, v{n3}
    v_cmp_lt_u32 vcc, s{sTAGH}, {v(vT0)}
    v_cmp_gt_u32_e64 s[{sM}:{sM+1}], s{sTAG}, {v(vT2)}
    v_max_u32_dpp {v(vT0)}, {v(vT0)}, {v(vT0)} row_ror:4 row_mask:0xf bank_mask:0xf
    s_or_b64 vcc, vcc, s[{sM}:{sM+1}]
    s_cbranch_vccnz L_retry
L_got:
    {"s_memrealtime s[%d:%d]" % (sST+2*nst[0]+2, sST+2*nst[0]+3) if a.stamps and not a.kst else ""}
    v_max_u32_dpp {v(vT0)}, {v(vT0)}, {v(vT0)} row_ror:8 row_mask:0xf bank_mask:0xf
    v_mov_b32 {v(vT1)}, {v(vT0)}
    s_nop 1
    v_permlane16_swap_b32 {v(vT0)}, {v(vT1)}
    v_max_u32 {v(vT0)}, {v(vT0)}, {v(vT1)}
    v_mov_b32 {v(vT1)}, {v(vT0)}
    s_nop 1
    v_permlane32_swap_b32 {v(vT0)}, {v(vT1)}
    v_max_u32 {v(vT0)}, {v(vT0)}, {v(vT1)}
    v_sub_u32 v{W}, v{n0}, {v(vT0)}
    v_sub_u32 v{W+1}, v{n1}, {v(vT0)}
    v_sub_u32 v{W+2}, v{n2}, {v(vT0)}
    v_sub_u32 v{W+3}, v{n3}, {v(vT0)}
    v_ldexp_f32 v{W}, 1.0, v{W}
    v_ldexp_f32 v{W+1}, 1.0, v{W+1}
    v_ldexp_f32 v{W+2}, 1.0, v{W+2}
    v_ldexp_f32 v{W+3}, 1.0, v{W+3}
    v_mul_f32 v{X+2}, v{E+2}, v{W}
    v_pk_mul_f32 v[{X}:{X+1}], v[{E}:{E+1}], v[{W}:{W+1}] op_sel:[0,0] op_sel_hi:[1,0]
    v_fmac_f32 v{X+2}, v{E+6}, v{W+1}
    v_pk_fma_f32 v[{X}:{X+1}], v[{E+4}:{E+5}], v[{W}:{W+1}], v[{X}:{X+1}] op_sel:[0,1,0] op_sel_hi:[1,1,1]
    v_fmac_f32 v{X+2}, v{E+10}, v{W+2}
    v_pk_fma_f32 v[{X}:{X+1}], v[{E+8}:{E+9}], v[{W+2}:{W+3}], v[{X}:{X+1}] op_sel:[0,0,0] op_sel_hi:[1,0,1]
    v_fmac_f32 v{X+2}, v{E+14}, v{W+3}
    v_pk_fma_f32 v[{X}:{X+1}], v[{E+12}:{E+13}], v[{W+2}:{W+3}], v[{X}:{X+1}] op_sel:[0,1,0] op_sel_hi:[1,1,1]
    v_mov_b32 v{X+3}, v{X+2}
    v_add_u32 {v(vT2)}, s{sOO}, {v(vOUT)}
    s_nop 0
    v_permlane32_swap_b32 v{X}, v{X+1}
    v_permlane32_swap_b32 v{X+2}, v{X+3}
    v_add_f32 v{X}, v{X}, v{X+1}
    v_add_f32 v{X+2}, v{X+2}, v{X+3}
    s_nop 1
    v_permlane16_swap_b32 v{X}, v{X+2}
    v_add_f32 v{X}, v{X}, v{X+2}
    s_nop 1
    v_add_f32_dpp v{X}, v{X}, v{X} row_ror:4 row_mask:0xf bank_mask:0xf
    s_nop 1
    v_add_f32_dpp v{X}, v{X}, v{X} row_ror:8 row_mask:0xf bank_mask:0xf
    v_rcp_f32 v{X+1}, v{X}
    v_cmp_u_f32 vcc, v{X}, v{X}
    v_mov_b32 v{X+2}, v{X+1}
    s_cbranch_vccz L_clean
    s_sub_u32 s{sK0}, s{sK0}, 1
    s_cbranch_scc0 L_poll
L_clean:
    s_nop 0
    v_permlane16_swap_b32 v{X+1}, v{X}
    v_mul_f32 v{X+1}, v{X+1}, v{X+2}
    s_mov_b32 exec_lo, 0x000f0000
    s_mov_b32 exec_hi, 0x000f0000
    v_cvt_pk_bf16_f32 v{X+1}, v{X+1}, v{X+1}
    global_store_short {v(vT2)}, v{X+1}, s[20:21]
    s_mov_b64 exec, -1
    s_cmp_lg_u32 s{sPO}, s{sREG}
    s_cbranch_scc1 L_noep
    v_mov_b32 {v(vT0)}, s{sEPO}
    v_mov_b32 {v(vT1)}, s{sEP}
    s_mov_b64 exec, 1
    global_store_dword {v(vT0)}, {v(vT1)}, s[24:25]
    s_mov_b64 exec, -1
L_noep:
    s_add_u32 s{sCB}, s{sCB}, s{sNB}
    s_cmp_ge_u32 s{sCB}, 16
    s_cbranch_scc1 L_fin
L_task:
    """)
    g(task)
    g(f"""
    s_cmp_eq_u32 s{sFIRST}, 0
    s_mov_b32 s{sFIRST}, 1
    s_cbranch_scc1 L_sibback
    s_branch L_poll
L_retry:
    s_sub_u32 s{sSPIN}, s{sSPIN}, 1
    s_cbranch_scc1 L_got
    s_sub_i32 s{sLOC}, s{sLOC}, 1
    s_cmp_gt_i32 s{sLOC}, 0
    s_cbranch_scc1 L_poll
    s_cmp_lt_i32 s{sLOC}, 0
    s_cbranch_scc1 L_tog
    v_xor_b32 v{G0+3}, s{sXC}, v{G0+3}
    s_add_u32 s{sOWN}, s{sOWN}, 0x200000
    buffer_store_dwordx4 {vr(G0)}, {v(vWS)}, s[24:27], s{sOWN} offen sc1
L_tog:
    s_mov_b32 s{sLOC}, -1
    s_xor_b32 s{sREG}, s{sREG}, 0x200000
    s_xor_b32 s{sPO}, s{sPO}, 0x200000
    s_xor_b32 s{sPO+1}, s{sPO+1}, 0x200000
    s_xor_b32 s{sPO+2}, s{sPO+2}, 0x200000
    s_xor_b32 s{sPO+3}, s{sPO+3}, 0x200000
    s_xor_b32 s{sTAG}, s{sTAG}, s{sXC}
    s_xor_b32 s{sTAGH}, s{sTAGH}, s{sXC}
    v_mov_b32 v{E+3}, s{sTAG}
    v_mov_b32 v{E+7}, s{sTAG}
    v_mov_b32 v{E+11}, s{sTAG}
    v_mov_b32 v{E+15}, s{sTAG}
    s_branch L_poll
L_fin:
    """)
    if a.amp:
        stamp()
        ia, ib = a.amp // 10, a.amp % 10
        g(f"""
        s_waitcnt lgkmcnt(0)
        """)
        if a.ampwg >= 0:
            g(f"""
            s_cmp_lg_u32 s2, {a.ampwg}
            s_cbranch_scc1 L_end
            s_cmp_lg_u32 s{sI}, 0
            s_cbranch_scc1 L_end
            """)
        g(f"""
        s_sub_u32 s6, s{sST+2*ib}, s{sST+2*ia}
        s_mul_i32 s6, s6, 10
        s_min_u32 s6, s6, 50000
        s_add_u32 s6, s6, s{sST+14}
L_spin:
        s_sleep 4
        s_memrealtime s[2:3]
        s_waitcnt lgkmcnt(0)
        s_sub_u32 s7, s2, s6
        s_cmp_lt_i32 s7, 0
        s_cbranch_scc1 L_spin
        """)
    elif a.stamps:
        stamp()
        n = nst[0] + 1
        g(f"""
        s_waitcnt lgkmcnt(0)
        s_lshl_b32 s6, s2, 4
        s_add_u32 s6, s6, s{sI}
        s_lshl_b32 s6, s6, 7
        s_add_u32 s6, s6, 0x1000000
        v_mov_b32 v14, s6
        s_getreg_b32 s6, hwreg(HW_REG_XCC_ID)
        s_mov_b64 exec, 1
        """)
        for k in range(n):
            g(f"v_mov_b32 v15, s{sST+2*k}")
            g(f"global_store_dword v14, v15, s[24:25] offset:{4*k}")
        g(f"""
        v_mov_b32 v15, s6
        global_store_dword v14, v15, s[24:25] offset:120
        s_sub_u32 s6, 0x10000, s{sSPIN}
        s_cmp_lt_i32 s{sLOC}, 0
        s_cselect_b32 s7, 1000, 0
        s_add_u32 s6, s6, s7
        v_mov_b32 v15, s6
        global_store_dword v14, v15, s[24:25] offset:124
        """)
    g("L_end:")
    g("s_endpgm")
    acc = (NV + 3) // 4 * 4
    out = HDR + f"; @launch grid=(256,1,1) block=(512,1,1) lds={LDS}\n"
    out += f""".amdgcn_target "amdgcn-amd-amdhsa--gfx950"
.text
.globl {NAME}_kernel
.p2align 8
.type {NAME}_kernel,@function
{NAME}_kernel:
""" + g.text() + f""".section .rodata,"a"
.p2align 6
.amdhsa_kernel {NAME}_kernel
  .amdhsa_next_free_vgpr {NV}
  .amdhsa_next_free_sgpr 102
  .amdhsa_accum_offset {acc}
  .amdhsa_group_segment_fixed_size 0
  .amdhsa_kernarg_size 64
  .amdhsa_user_sgpr_count 2
  .amdhsa_user_sgpr_kernarg_segment_ptr 1
  .amdhsa_system_sgpr_workgroup_id_x 1
.end_amdhsa_kernel
"""
    return out

if __name__ == "__main__":
    p = argparse.ArgumentParser()
    for k, d in dict(map=0, stamps=0, ch=20, snt=0, nt=1, prio=1, scl=1, early_const=1, fine=0, warm=0, pf=1, lw=3, thr=16, kst=0, otouch=0, kvtouch=0, amp=0, ampwg=0).items():
        p.add_argument("--" + k, type=int, default=d)
    p.add_argument("-o", default="-")
    a = p.parse_args()
    if a.amp: a.stamps = 1
    t = gen(a)
    if a.o == "-": sys.stdout.write(t)
    else: open(a.o, "w").write(t)
```

```python
import sys, argparse, math, struct
from gen import NAME, HDR, f32bits, G

EXP_CL = [3663, 3230, 2797, 2364]
PERM = [0, 3, 1, 2]

def plan():
    nblk = [(EXP_CL[b] + 15) // 16 for b in PERM]
    T = sum(nblk); P = 0; c = [0]
    for x in range(4):
        P += nblk[x]
        c.append(x + 1 + int(60 * P / T + 0.5))
    n = [c[x + 1] - c[x] for x in range(4)]
    q = [2 * nblk[x] // n[x] for x in range(4)]
    r = [2 * nblk[x] - q[x] * n[x] for x in range(4)]
    pad = [16 * nblk[x] - EXP_CL[PERM[x]] for x in range(4)]
    return nblk, c, n, q, r, pad

def pack(vals):
    assert all(0 <= v < 256 for v in vals)
    return sum(v << (8 * i) for i, v in enumerate(vals))

def gen(a):
    g = G()
    KVSIZE = 1028 * 32768
    C = (128 ** -0.5) * math.log2(math.e)
    TBL = 131072
    LDS = TBL + 5376
    EPOFF = 0x600000
    kvnt = " nt"
    sOO2, sDUAL = 22, 23
    sI, sJ, sHP, sH256 = 28, 29, 30, 31
    sB, sCB, sNB, sREM, sNU, sNXT, sKM, sVM, sSO, sC, sT0, sT1, sOWN, sSTEP, sPB, sSPIN, sX0, sX1, sQO, sTAG = range(32, 52)
    sM = 52
    sMK, sPO, sOO, sFIRST, sXC, sLOC, sREG = 60, 68, 72, 73, 74, 75, 76
    sMK1 = 78
    sEP, sTAGN, sTAGH, sEPO = 80, 81, 82, 83
    sST = 84
    nst = [0]
    def stamp():
        if a.stamps:
            k = nst[0]; nst[0] += 1
            assert sST + 2 * k + 1 <= 101
            g(f"s_memrealtime s[{sST+2*k}:{sST+2*k+1}]")
    vL, vT0, vT1, vT2, vT3, vG, vT5, vSO, vWS, vOUT, vQO, vM, vMC, vAL, vNEG, vT4q, vSW, vSR, vPA = range(1, 20)
    ACC, LA, ML, vSW2, vSR2, KF = 20, 28, 32, 34, 35, 36
    KD, VD, KR, VR, Q, PA, PK, ONE, S, VF = 52, 56, 60, 64, 72, 88, 96, 98, 100, 104
    E = 120
    G0, JK, S1 = 136, 140, 144
    vR, vHI = 148, 149
    NV = 150
    def v(i): return f"v{i}"
    def vr(b, n=4): return f"v[{b}:{b+n-1}]"
    nblk, cc, nn, qq, rr, pad = plan()

    stamp()
    g(f"""
    s_load_dwordx4 s[16:19], s[0:1], 24
    s_load_dwordx2 s[24:25], s[0:1], 56
    s_load_dwordx2 s[8:9], s[0:1], 8
    s_load_dwordx2 s[12:13], s[0:1], 16
    s_load_dwordx2 s[4:5], s[0:1], 0
    s_load_dwordx2 s[20:21], s[0:1], 40
    s_cmp_ge_u32 s2, 256
    s_cbranch_scc1 L_end
    v_readfirstlane_b32 s3, v0
    """)
    if a.pf:
        g("""
        s_cmpk_eq_u32 s3, 320
        s_cbranch_scc1 L_pad0
        s_cmpk_eq_u32 s3, 384
        s_cbranch_scc1 L_pad1
        s_cmpk_eq_u32 s3, 448
        s_cbranch_scc1 L_pad2
L_pfback:
        """)
    wave_range = f"""
    s_xor_b32 s{sT0}, s{sX0}, s{sI}
    s_and_b32 s{sT0}, s{sT0}, 1
    s_add_u32 s{sX0}, s{sX0}, s{sT0}
    s_andn2_b32 s{sT0}, s{sI}, 1
    s_add_u32 s{sX0}, s{sX0}, s{sT0}
    s_sub_i32 s{sNU}, s{sX1}, s{sX0}
    s_lshr_b32 s{sX0}, s{sX0}, 1
    s_lshl_b32 s{sT0}, s{sB}, 8
    s_add_u32 s{sT0}, s{sT0}, s{sX0}
    s_lshl_b32 s{sT0}, s{sT0}, 2
    """
    wave_range2 = f"""
    s_add_i32 s{sNU}, s{sNU}, 7
    s_ashr_i32 s{sNU}, s{sNU}, 3
    s_lshl_b32 s{sX0}, s{sX0}, 4
    s_sub_i32 s{sREM}, s{sREM}, s{sX0}
    s_lshl_b32 s{sQO}, s{sB}, 13
    s_lshl_b32 s{sT0}, s{sH256}, 2
    s_add_u32 s{sT0}, s{sT0}, s{sQO}
    v_lshlrev_b32 {v(vQO)}, 4, {v(vT4q)}
    v_lshl_add_u32 {v(vQO)}, {v(vG)}, 8, {v(vQO)}
    v_add_u32 {v(vQO)}, s{sT0}, {v(vQO)}
    """
    g(f"""
    s_lshr_b32 s{sI}, s3, 6
    v_and_b32 {v(vL)}, 63, v0
    s_and_b32 s{sHP}, s2, 3
    s_lshl_b32 s{sJ}, s2, 3
    s_and_b32 s{sJ}, s{sJ}, 32
    s_lshr_b32 s{sT0}, s2, 3
    s_add_u32 s{sJ}, s{sJ}, s{sT0}
    s_cmp_ge_u32 s{sJ}, {cc[1]}
    s_cselect_b32 s{sT1}, 8, 0
    s_cmp_ge_u32 s{sJ}, {cc[2]}
    s_cselect_b32 s{sT1}, 16, s{sT1}
    s_cmp_ge_u32 s{sJ}, {cc[3]}
    s_cselect_b32 s{sT1}, 24, s{sT1}
    s_or_b32 s{sT1}, s{sT1}, 0x80000
    s_bfe_u32 s{sCB}, 0x{pack(cc[:4]):x}, s{sT1}
    s_bfe_u32 s{sNB}, 0x{pack(nn):x}, s{sT1}
    s_bfe_u32 s{sX1}, 0x{pack(qq):x}, s{sT1}
    s_bfe_u32 s{sSO}, 0x{pack(rr):x}, s{sT1}
    s_bfe_u32 s{sB}, 0x{pack(PERM):x}, s{sT1}
    s_bfe_u32 s{sREM}, 0x{pack(nblk):x}, s{sT1}
    s_bfe_u32 s{sT1}, 0x{pack(pad):x}, s{sT1}
    s_lshl_b32 s{sREM}, s{sREM}, 4
    s_sub_u32 s{sREM}, s{sREM}, s{sT1}
    s_sub_u32 s{sT0}, s{sJ}, s{sCB}
    s_mul_i32 s{sX0}, s{sT0}, s{sX1}
    s_min_u32 s{sT1}, s{sT0}, s{sSO}
    s_add_u32 s{sX0}, s{sX0}, s{sT1}
    s_cmp_lt_u32 s{sT0}, s{sSO}
    s_addc_u32 s{sX1}, s{sX1}, s{sX0}
    """)
    g(wave_range)
    g(f"""
    v_lshl_add_u32 {v(vT0)}, {v(vL)}, 4, s{sT0}
    v_lshlrev_b32 {v(vWS)}, 4, v0
    s_lshl_b32 s{sOWN}, s{sHP}, 6
    s_add_u32 s{sOWN}, s{sOWN}, s{sJ}
    s_lshl_b32 s{sOWN}, s{sOWN}, 13
    s_mov_b32 s26, 0x400000
    s_mov_b32 s27, 0x20000
    s_mov_b64 exec, 0xff
    s_waitcnt lgkmcnt(0)
    """)
    stamp()
    if a.w9:
        g(f"""
        s_cmp_eq_u32 s{sI}, 8
        s_cbranch_scc1 L_touch
        """)
    g(f"""
    global_load_dword {v(vSO)}, {v(vT0)}, s[16:17]
    s_load_dwordx4 s[{sM}:{sM+3}], s[18:19], 0
    s_mov_b64 exec, -1
    {"buffer_load_dwordx4 %s, %s, s[24:27], s%d offen sc1" % (vr(JK), v(vWS), sOWN) if a.wpos == 0 else ""}
    s_mov_b32 s10, 0x{KVSIZE:x}
    s_mov_b32 s11, 0x20000
    s_mov_b32 s14, 0x{KVSIZE:x}
    s_mov_b32 s15, 0x20000
    s_and_b32 s{sT0}, s{sI}, 1
    s_lshl_b32 s{sH256}, s{sHP}, 1
    s_add_u32 s{sH256}, s{sH256}, s{sT0}
    s_lshl_b32 s{sH256}, s{sH256}, 8
    s_lshl_b32 s{sKM}, s{sI}, 14
    s_add_u32 s{sVM}, s{sKM}, 0x2000
    v_lshrrev_b32 {v(vT4q)}, 4, {v(vL)}
    v_and_b32 {v(vT2)}, 15, v0
    v_and_b32 {v(vG)}, 3, v0
    """)
    if a.pf:
        g(f"""
        s_branch L_c2
        .fill ({NAME}_kernel + 0x200 - .) / 4, 4, 0xbf800000
L_pad0:
        s_branch L_pfback
L_c2:
        """)
    g(f"""
    v_xor_b32 {v(vT3)}, {v(vT2)}, {v(vT4q)}
    v_lshlrev_b32 {v(vT3)}, 4, {v(vT3)}
    v_lshl_add_u32 v{KR}, {v(vT2)}, 8, {v(vT3)}
    v_add_u32 v{KR}, s{sKM}, v{KR}
    v_lshl_add_u32 v{KD}, {v(vT4q)}, 11, {v(vT3)}
    v_add_u32 v{KD}, s{sH256}, v{KD}
    v_lshlrev_b32 {v(vT3)}, 1, {v(vT4q)}
    v_xor_b32 {v(vT3)}, {v(vT2)}, {v(vT3)}
    v_lshlrev_b32 {v(vT3)}, 4, {v(vT3)}
    v_lshl_add_u32 v{VD}, {v(vT4q)}, 11, {v(vT3)}
    v_add_u32 v{VD}, s{sH256}, v{VD}
    """)
    for e in range(1, 4):
        g(f"""
        v_xor_b32 v{KD+e}, {e<<6}, v{KD}
        v_add_u32 v{KD+e}, {e*7168}, v{KD+e}
        """)
    g(f"""
    v_xor_b32 v{VD+1}, 0x80, v{VD}
    v_add_u32 v{VD+2}, {2*7168}, v{VD}
    v_add_u32 v{VD+3}, {3*7168}, v{VD+1}
    v_add_u32 v{VD+1}, 7168, v{VD+1}
    """)
    g(wave_range2)
    g(f"""
    s_mov_b32 s{sX1}, 0xce800000
    s_mov_b32 m0, s{sKM}
    s_waitcnt lgkmcnt(0)
    """)
    stamp()
    g(f"""
    s_xor_b32 s{sT0}, s{sM}, {EXP_CL[0] + a.forcegen}
    s_xor_b32 s{sT1}, s{sM+1}, {EXP_CL[1]}
    s_or_b32 s{sT0}, s{sT0}, s{sT1}
    s_xor_b32 s{sT1}, s{sM+2}, {EXP_CL[2]}
    s_or_b32 s{sT0}, s{sT0}, s{sT1}
    s_xor_b32 s{sT1}, s{sM+3}, {EXP_CL[3]}
    s_or_b32 s{sT0}, s{sT0}, s{sT1}
    s_cbranch_scc1 L_general
    s_waitcnt vmcnt({1 if a.wpos == 0 else 0})
L_have:
    v_lshlrev_b32 {v(vSO)}, 15, {v(vSO)}
    s_setprio 3
    v_readlane_b32 s{sSO}, {v(vSO)}, 0
    v_readlane_b32 s{sT1}, {v(vSO)}, 1
    s_nop 3
    """)
    stamp()
    def dma(srd, offs, so):
        for e in range(4):
            io = f" offset:{e*1024}" if e else ""
            g(f"buffer_load_dwordx4 v{offs+e}, s[{srd}:{srd+3}], s{so} offen{io}{kvnt} lds")
    dma(8, KD, sSO)
    for jj in range(4):
        g(f"global_load_dwordx4 {vr(Q+4*jj)}, {v(vQO)}, s[4:5]" + (f" offset:{64*jj}" if jj else ""))
    if a.wpos == 1: g(f"buffer_load_dwordx4 {vr(JK)}, {v(vWS)}, s[24:27], s{sOWN} offen sc1")
    g(f"s_mov_b32 m0, s{sVM}")
    g(f"s_nop 0")
    dma(12, VD, sSO)
    g(f"""
    s_cmp_lt_i32 s{sNU}, 2
    s_cbranch_scc1 L_issued
    s_add_u32 s{sT0}, s{sKM}, 0x1000
    s_mov_b32 m0, s{sT0}
    s_add_u32 s{sT0}, s{sVM}, 0x1000
    """)
    dma(8, KD, sT1)
    g(f"s_mov_b32 m0, s{sT0}")
    g(f"s_nop 0")
    dma(12, VD, sT1)
    g("L_issued:")
    g("s_setprio 0")
    stamp()
    g(f"""
    s_lshl_b32 s{sEPO}, s{sHP}, 2
    s_add_u32 s{sEPO}, s{sEPO}, s{sB}
    s_lshl_b32 s{sEPO}, s{sEPO}, 7
    s_add_u32 s{sEPO}, s{sEPO}, {EPOFF + 12}
    s_load_dword s{sEP}, s[24:25], s{sEPO}
    v_lshrrev_b32 {v(vT0)}, 2, {v(vT2)}
    v_lshl_add_u32 {v(vT0)}, {v(vT4q)}, 2, {v(vT0)}
    v_and_b32 {v(vT3)}, 7, {v(vT0)}
    v_lshlrev_b32 {v(vT3)}, 5, {v(vT3)}
    v_lshl_add_u32 {v(vT3)}, {v(vT0)}, 8, {v(vT3)}
    v_lshl_add_u32 {v(vT3)}, {v(vG)}, 3, {v(vT3)}
    v_add_u32 v{VR}, s{sVM}, {v(vT3)}
    """)
    for i in range(1, 8):
        g(f"v_xor_b32 v{VR+i}, {i<<5}, v{VR}")
    for e in range(1, 4):
        g(f"v_xor_b32 v{KR+e}, {e<<6}, v{KR}")
    g(f"""
    v_lshl_add_u32 v{vSW}, {v(vL)}, 4, s{sKM}
    v_add_u32 v{vSW2}, 0x800, v{vSW}
    s_and_b32 s{sT0}, s{sI}, 1
    s_lshl_b32 s{sT0}, s{sT0}, 14
    s_lshr_b32 s{sT1}, s{sI}, 1
    s_lshl_b32 s{sT1}, s{sT1}, 10
    s_add_u32 s{sT0}, s{sT0}, s{sT1}
    v_lshl_add_u32 v{vSR}, {v(vL)}, 4, s{sT0}
    v_add_u32 v{vSR2}, 0x10000, v{vSR}
    v_mov_b32 {v(vNEG)}, s{sX1}
    s_mov_b32 s{sC}, 0x{f32bits(C):08x}
    v_mov_b32 {v(vM)}, 0xce800000
    v_mul_f32 {v(vMC)}, s{sC}, {v(vM)}
    v_mov_b32 v{ONE}, 0x3f803f80
    v_mov_b32 v{ONE+1}, 0x3f803f80
    v_mov_b32 v{ML}, 0
    v_mov_b32 v{ML+1}, {v(vMC)}
    """)
    for i in range(8): g(f"v_mov_b32 v{ACC+i}, 0")
    for i in range(4): g(f"v_mov_b32 v{LA+i}, 0")
    for i in range(8): g(f"v_mov_b32 v{PA+i}, 0")
    g(f"""
    s_getreg_b32 s{sXC}, hwreg(HW_REG_XCC_ID, 0, 3)
    s_lshl_b32 s{sXC}, s{sXC}, 18
    s_lshl_b32 s{sT0}, s{sHP}, 6
    s_add_u32 s{sT0}, s{sT0}, s{sCB}
    s_lshl_b32 s{sT0}, s{sT0}, 13
    s_add_u32 s4, s24, s{sT0}
    s_addc_u32 s5, s25, 0
    s_mov_b32 s6, 0x400000
    s_mov_b32 s7, 0x20000
    s_sub_u32 s{sCB}, s{sJ}, s{sCB}
    s_and_b32 s{sCB}, s{sCB}, 15
    s_lshl_b32 s{sSTEP}, s{sNB}, 1
    s_lshl_b32 s{sPB}, s{sI}, 10
    s_mov_b32 s{sREG}, 0
    s_mov_b32 s{sNXT}, 2
    v_lshrrev_b32 {v(vT0)}, 2, {v(vL)}
    v_lshlrev_b32 v{vPA}, 4, {v(vG)}
    v_lshl_add_u32 v{vPA}, {v(vT0)}, 13, v{vPA}
    v_cmp_gt_u32_e64 s[{sMK}:{sMK+1}], s{sNB}, {v(vT0)}
    v_add_u32 {v(vT0)}, 16, {v(vT0)}
    v_cmp_gt_u32_e64 s[{sMK+2}:{sMK+3}], s{sNB}, {v(vT0)}
    v_add_u32 {v(vT0)}, 16, {v(vT0)}
    v_cmp_gt_u32_e64 s[{sMK+4}:{sMK+5}], s{sNB}, {v(vT0)}
    v_add_u32 {v(vT0)}, 16, {v(vT0)}
    v_cmp_gt_u32_e64 s[{sMK+6}:{sMK+7}], s{sNB}, {v(vT0)}
    v_and_b32 {v(vOUT)}, 2, {v(vT4q)}
    v_lshl_add_u32 {v(vOUT)}, {v(vG)}, 8, {v(vOUT)}
    s_lshl_b32 s{sT0}, s{sH256}, 2
    s_add_u32 s{sQO}, s{sQO}, s{sT0}
    s_and_b32 s{sT0}, s{sI}, 4
    s_lshl_b32 s{sT0}, s{sT0}, 3
    s_add_u32 s{sQO}, s{sQO}, s{sT0}
    s_and_b32 s{sT0}, s{sI}, 2
    s_lshl_b32 s{sT0}, s{sT0}, 1
    s_add_u32 s{sQO}, s{sQO}, s{sT0}
    v_add_u32 {v(vOUT)}, s{sQO}, {v(vOUT)}
    v_lshlrev_b32 {v(vT4q)}, 2, {v(vT4q)}
    s_waitcnt lgkmcnt(0)
    s_add_u32 s{sEP}, s{sEP}, 0x9e3c0000
    s_and_b32 s{sTAG}, s{sEP}, 0xffe00000
    s_or_b32 s{sTAG}, s{sTAG}, s{sXC}
    s_and_b32 s{sXC}, s{sEP}, 0xfffc0000
    s_xor_b32 s{sXC}, s{sXC}, s{sTAG}
    s_or_b32 s{sTAGN}, s{sTAG}, 0x20000
    s_or_b32 s{sTAGH}, s{sTAG}, 0x3ffff
    """)
    for r in range(4):
        g(f"""
        v_mov_b32 v{E+4*r}, 0
        v_mov_b32 v{E+4*r+1}, 0
        v_mov_b32 v{E+4*r+2}, 0
        v_mov_b32 v{E+4*r+3}, s{sTAG}
        """)
    g(f"""
    s_mov_b32 s{sFIRST}, 0
    s_branch L_task
    """)
    if a.pf: g("L_pad1:\ns_branch L_pfback")
    g(f"""
L_taskback:
    s_cmp_lt_i32 s{sNU}, 1
    s_cbranch_scc1 L_done
L_loop:
    s_waitcnt vmcnt(12)
    s_cmp_gt_i32 s{sNU}, 1
    s_cbranch_scc1 L_kready
    s_waitcnt vmcnt(4)
L_kready:
    """)
    if a.kst:
        g(f"""
        s_cmp_lg_u32 s{sNXT}, 2
        s_cbranch_scc1 L_nks
        s_memrealtime s[{sST+16}:{sST+17}]
        s_waitcnt lgkmcnt(0)
L_nks:
        """)
    for jj in range(4):
        g(f"ds_read_b128 {vr(KF+4*jj)}, v{KR+jj}")
    g(f"v_readlane_b32 s{sSO}, {v(vSO)}, s{sNXT}")
    g(f"s_mov_b32 m0, s{sKM}")
    for jj in range(4):
        g(f"s_waitcnt lgkmcnt({3-jj})")
        g(f"v_mfma_f32_16x16x32_bf16 {vr(S)}, {vr(KF+4*jj)}, {vr(Q+4*jj)}, " + ("0" if jj == 0 else vr(S)))
    g(f"""
    s_cmp_lt_i32 s{sNU}, 3
    s_cbranch_scc1 L_nok
    """)
    dma(8, KD, sSO)
    g("L_nok:")
    for jj in range(4):
        g(f"v_xor_b32 v{KR+jj}, 0x1000, v{KR+jj}")
    g(f"""
    s_xor_b32 s{sKM}, s{sKM}, 0x1000
    s_mov_b32 m0, s{sVM}
    s_nop 1
    s_cmp_ge_i32 s{sREM}, 16
    s_cbranch_scc1 L_nomask
    v_subrev_u32 {v(vT0)}, s{sREM}, {v(vT4q)}
    """)
    for e in range(4):
        g(f"v_cmp_gt_i32_e64 s[{sM+2*e}:{sM+2*e+1}], {-e}, {v(vT0)}")
    for e in range(4):
        g(f"v_cndmask_b32_e64 v{S+e}, {v(vNEG)}, v{S+e}, s[{sM+2*e}:{sM+2*e+1}]")
    g(f"""
L_nomask:
    v_max3_f32 {v(vM)}, v{S}, v{S+1}, {v(vM)}
    v_max3_f32 {v(vM)}, v{S+2}, v{S+3}, {v(vM)}
    v_mov_b32 {v(vT0)}, {v(vM)}
    s_nop 1
    v_permlane16_swap_b32 {v(vM)}, {v(vT0)}
    v_max_f32 {v(vM)}, {v(vM)}, {v(vT0)}
    v_mov_b32 {v(vT0)}, {v(vM)}
    s_nop 1
    v_permlane32_swap_b32 {v(vM)}, {v(vT0)}
    v_max_f32 {v(vM)}, {v(vM)}, {v(vT0)}
    v_mul_f32 v{ML+1}, s{sC}, {v(vM)}
    v_sub_f32 {v(vAL)}, {v(vMC)}, v{ML+1}
    """)
    for e in range(4):
        g(f"v_fma_f32 v{S+e}, v{S+e}, s{sC}, -v{ML+1}")
    g(f"v_exp_f32 {v(vAL)}, {v(vAL)}")
    for e in range(4):
        g(f"v_exp_f32 v{S+e}, v{S+e}")
    g(f"""
    v_mov_b32 {v(vMC)}, v{ML+1}
    v_cvt_pk_bf16_f32 v{PK}, v{S}, v{S+1}
    v_cvt_pk_bf16_f32 v{PK+1}, v{S+2}, v{S+3}
    v_mul_f32 v{LA}, {v(vAL)}, v{LA}
    """)
    for i in range(4):
        g(f"v_mul_f32 v{ACC+i}, {v(vAL)}, v{ACC+i}")
    g(f"v_mfma_f32_16x16x16_bf16 {vr(LA)}, v[{ONE}:{ONE+1}], v[{PK}:{PK+1}], {vr(LA)}")
    for i in range(4, 8):
        g(f"v_mul_f32 v{ACC+i}, {v(vAL)}, v{ACC+i}")
    for aa in range(4):
        for x in range(2):
            g(f"v_mov_b32_dpp v{PA+2*aa+x}, v{PK+x} quad_perm:[0,1,2,3] row_mask:0xf bank_mask:0x{1<<aa:x}")
    g(f"""
    v_mov_b32 v{ML}, v{LA}
    s_waitcnt vmcnt(12)
    s_cmp_gt_i32 s{sNU}, 2
    s_cbranch_scc1 L_vready
    s_waitcnt vmcnt(8)
    s_cmp_gt_i32 s{sNU}, 1
    s_cbranch_scc1 L_vready
    s_waitcnt vmcnt(0)
L_vready:
    """)
    for i in range(8):
        g(f"ds_read_b64_tr_b16 v[{VF+2*i}:{VF+2*i+1}], v{VR+i}")
    order = [0, 2, 4, 6, 1, 3, 5, 7] if a.accord else list(range(8))
    if a.accord:
        for _ in range(8): g.l.pop()
        for i in order:
            g(f"ds_read_b64_tr_b16 v[{VF+2*i}:{VF+2*i+1}], v{VR+i}")
    g(f"s_cmp_lt_i32 s{sNU}, 2")
    for n_, i in enumerate(order):
        aa, uu = i >> 1, i & 1
        g(f"s_waitcnt lgkmcnt({7-n_})")
        g(f"v_mfma_f32_16x16x16_bf16 {vr(ACC+4*uu)}, v[{VF+2*i}:{VF+2*i+1}], v[{PA+2*aa}:{PA+2*aa+1}], {vr(ACC+4*uu)}")
    g(f"""
    s_cbranch_scc1 L_last
    s_cmp_lt_i32 s{sNU}, 3
    s_cbranch_scc1 L_nov
    """)
    dma(12, VD, sSO)
    g("L_nov:")
    for i in range(8):
        g(f"v_xor_b32 v{VR+i}, 0x1000, v{VR+i}")
    g(f"""
    s_xor_b32 s{sVM}, s{sVM}, 0x1000
    s_sub_i32 s{sNU}, s{sNU}, 1
    s_sub_i32 s{sREM}, s{sREM}, 64
    s_add_u32 s{sNXT}, s{sNXT}, 1
    s_branch L_loop
    """)
    if a.pf: g("L_pad2:\ns_branch L_pfback")
    g("L_last:")
    wr = [f"ds_write2_b64 v{vSW}, v[{ACC}:{ACC+1}], v[{ML}:{ML+1}] offset0:0 offset1:1",
          f"ds_write2_b64 v{vSW}, v[{ACC+2}:{ACC+3}], v[{ML}:{ML+1}] offset0:128 offset1:129",
          f"ds_write2_b64 v{vSW2}, v[{ACC+4}:{ACC+5}], v[{ML}:{ML+1}] offset0:0 offset1:1",
          f"ds_write2_b64 v{vSW2}, v[{ACC+6}:{ACC+7}], v[{ML}:{ML+1}] offset0:128 offset1:129"]
    if a.accord:
        g("L_done:")
        stamp()
        g(wr[0]); g(wr[1]); g("s_nop 4"); g(wr[2]); g(wr[3])
    else:
        g("s_nop 6")
        g("L_done:")
        stamp()
        for w in wr: g(w)
    X = KF
    g(f"""
    s_mov_b32 s{sT0}, 0x47ff0000
    v_mov_b32 {v(vT1)}, 0xc7ff0000
    s_mov_b32 s{sSPIN}, 0x10000
    s_mov_b32 s{sLOC}, {a.thr}
    s_waitcnt lgkmcnt(0)
    s_barrier
    ds_read_b128 {vr(X)}, v{vSR}
    ds_read_b128 {vr(X+4)}, v{vSR} offset:32768
    ds_read_b128 {vr(X+8)}, v{vSR2}
    ds_read_b128 {vr(X+12)}, v{vSR2} offset:32768
    s_waitcnt lgkmcnt(0)
    """)
    stamp()
    g(f"""
    v_max3_f32 {v(vT0)}, v{X+3}, v{X+7}, v{X+11}
    v_max_f32 {v(vT0)}, {v(vT0)}, v{X+15}
    v_ceil_f32 {v(vT0)}, {v(vT0)}
    v_med3_f32 {v(vT0)}, {v(vT0)}, {v(vT1)}, s{sT0}
    v_sub_f32 v{X+3}, v{X+3}, {v(vT0)}
    v_sub_f32 v{X+7}, v{X+7}, {v(vT0)}
    v_sub_f32 v{X+11}, v{X+11}, {v(vT0)}
    v_sub_f32 v{X+15}, v{X+15}, {v(vT0)}
    v_exp_f32 v{X+3}, v{X+3}
    v_exp_f32 v{X+7}, v{X+7}
    v_exp_f32 v{X+11}, v{X+11}
    v_exp_f32 v{X+15}, v{X+15}
    v_cvt_i32_f32 v{G0+3}, {v(vT0)}
    v_pk_mul_f32 v[{G0}:{G0+1}], v[{X}:{X+1}], v[{X+2}:{X+3}] op_sel:[0,1] op_sel_hi:[1,1]
    v_mul_f32 v{G0+2}, v{X+2}, v{X+3}
    v_add_u32 v{G0+3}, s{sTAGN}, v{G0+3}
    """)
    for k in range(1, 4):
        g(f"v_pk_fma_f32 v[{G0}:{G0+1}], v[{X+4*k}:{X+4*k+1}], v[{X+4*k+2}:{X+4*k+3}], v[{G0}:{G0+1}] op_sel:[0,1,0] op_sel_hi:[1,1,1]")
        g(f"v_fmac_f32 v{G0+2}, v{X+4*k+2}, v{X+4*k+3}")
    n0, n1, n2, n3 = E + 3, E + 7, E + 11, E + 15
    W = X + 8
    g(f"""
    buffer_store_dwordx4 {vr(G0)}, {v(vWS)}, s[24:27], s{sOWN} offen
    v_mov_b32 v{vR}, v{G0+3}
    v_add_u32 v{vHI}, 60, v{G0+3}
L_poll:
    s_mov_b64 exec, s[16:17]
    s_cbranch_execz L_p1
    buffer_load_dwordx4 {vr(E)}, v{vPA}, s[4:7], s{sPO} offen sc1
L_p1:
    s_mov_b64 exec, s[18:19]
    s_cbranch_execz L_p2
    buffer_load_dwordx4 {vr(E+4)}, v{vPA}, s[4:7], s{sPO+1} offen sc1
L_p2:
    s_mov_b64 exec, s[{sMK+4}:{sMK+5}]
    s_cbranch_execnz L_pmore
L_pe:
    s_mov_b64 exec, -1
    v_add_u32 {v(vT2)}, s{sOO}, {v(vOUT)}
    s_waitcnt vmcnt(0)
    v_max_u32 {v(vT0)}, v{n0}, v{n1}
    v_min_u32 {v(vT1)}, v{n0}, v{n1}
    v_cmp_lt_u32 vcc, v{vHI}, {v(vT0)}
    v_cmp_gt_u32_e64 s[{sM}:{sM+1}], s{sTAG}, {v(vT1)}
    s_or_b64 vcc, vcc, s[{sM}:{sM+1}]
    s_cbranch_vccnz L_retry
L_got:
    """)
    if a.stamps and not a.kst: g(f"s_memrealtime s[{sST+16}:{sST+17}]")
    g(f"""
    v_sub_u32 v{W}, v{n0}, v{vR}
    s_cmp_lg_u32 s{sDUAL}, 0
    s_cbranch_scc1 L_stash
L_w:
    v_sub_u32 v{W+1}, v{n1}, v{vR}
    v_ldexp_f32 v{W}, 1.0, v{W}
    v_ldexp_f32 v{W+1}, 1.0, v{W+1}
    v_mul_f32 v{X+2}, v{E+2}, v{W}
    v_pk_mul_f32 v[{X}:{X+1}], v[{E}:{E+1}], v[{W}:{W+1}] op_sel:[0,0] op_sel_hi:[1,0]
    v_fmac_f32 v{X+2}, v{E+6}, v{W+1}
    v_pk_fma_f32 v[{X}:{X+1}], v[{E+4}:{E+5}], v[{W}:{W+1}], v[{X}:{X+1}] op_sel:[0,1,0] op_sel_hi:[1,1,1]
L_sum:
    v_mov_b32 v{X+3}, v{X+2}
    s_nop 0
    v_permlane32_swap_b32 v{X}, v{X+1}
    v_permlane32_swap_b32 v{X+2}, v{X+3}
    v_add_f32 v{X}, v{X}, v{X+1}
    v_add_f32 v{X+2}, v{X+2}, v{X+3}
    s_nop 1
    v_permlane16_swap_b32 v{X}, v{X+2}
    v_add_f32 v{X}, v{X}, v{X+2}
    s_nop 1
    v_add_f32_dpp v{X}, v{X}, v{X} row_ror:4 row_mask:0xf bank_mask:0xf
    s_nop 1
    v_add_f32_dpp v{X}, v{X}, v{X} row_ror:8 row_mask:0xf bank_mask:0xf
    v_rcp_f32 v{X+1}, v{X}
    v_mov_b32 v{X+2}, v{X}
    s_nop 1
    v_permlane16_swap_b32 v{X+2}, v{X}
    v_mul_f32 v{X+1}, v{X+1}, v{X+2}
    s_mov_b32 exec_lo, 0x000f0000
    s_mov_b32 exec_hi, 0x000f0000
    v_cvt_pk_bf16_f32 v{X+1}, v{X+1}, v{X+1}
    global_store_short {v(vT2)}, v{X+1}, s[20:21]
    s_mov_b64 exec, -1
    s_cmp_eq_u32 s{sDUAL}, 2
    s_cbranch_scc1 L_second
    s_cmp_lg_u32 s{sPO}, s{sREG}
    s_cbranch_scc1 L_noep
    v_mov_b32 {v(vT0)}, s{sEPO}
    v_mov_b32 {v(vT1)}, s{sEP}
    s_mov_b64 exec, 1
    global_store_dword {v(vT0)}, {v(vT1)}, s[24:25]
    s_mov_b64 exec, -1
L_noep:
    s_add_u32 s{sCB}, s{sCB}, s{sSTEP}
    s_cmp_lt_u32 s{sCB}, 16
    s_cbranch_scc1 L_task
    {"s_branch L_fin" if a.stamps else "s_endpgm"}
L_task:
    s_lshl_b32 s{sPO}, s{sCB}, 6
    s_add_u32 s{sPO}, s{sPO}, s{sPB}
    s_add_u32 s{sPO}, s{sPO}, s{sREG}
    s_add_u32 s{sPO+2}, s{sPO}, 0x40000
    s_add_u32 s{sPO+3}, s{sPO}, 0x60000
    s_and_b32 s{sOO}, s{sCB}, 3
    s_lshl_b32 s{sOO}, s{sOO}, 6
    s_and_b32 s{sT1}, s{sCB}, 12
    s_lshl_b32 s{sT1}, s{sT1}, 1
    s_add_u32 s{sOO}, s{sOO}, s{sT1}
    s_add_u32 s{sT0}, s{sCB}, s{sNB}
    s_and_b32 s{sOO2}, s{sT0}, 3
    s_lshl_b32 s{sOO2}, s{sOO2}, 6
    s_and_b32 s{sT1}, s{sT0}, 12
    s_lshl_b32 s{sT1}, s{sT1}, 1
    s_add_u32 s{sOO2}, s{sOO2}, s{sT1}
    s_lshl_b32 s{sT1}, s{sNB}, 6
    s_cmp_lt_u32 s{sT0}, 16
    s_cselect_b32 s{sDUAL}, 1, 0
    s_cselect_b32 s{sT1}, s{sT1}, 0x20000
    s_cselect_b64 s[{sMK1}:{sMK1+1}], s[{sMK}:{sMK+1}], s[{sMK+2}:{sMK+3}]
    s_add_u32 s{sPO+1}, s{sPO}, s{sT1}
    s_mov_b64 s[16:17], s[{sMK}:{sMK+1}]
    s_mov_b64 s[18:19], s[{sMK1}:{sMK1+1}]
    s_cmp_eq_u32 s{sFIRST}, 0
    s_mov_b32 s{sFIRST}, 1
    s_cbranch_scc1 L_taskback
    s_branch L_poll
L_stash:
    v_mov_b32 v{S1}, v{E+4}
    v_mov_b32 v{S1+1}, v{E+5}
    v_mov_b32 v{S1+2}, v{E+6}
    v_mov_b32 v{S1+3}, v{E+7}
    v_mov_b32 v{E+4}, 0
    v_mov_b32 v{E+5}, 0
    v_mov_b32 v{E+6}, 0
    v_mov_b32 v{E+7}, s{sTAG}
    s_mov_b32 s{sDUAL}, 2
    s_branch L_w
L_second:
    v_sub_u32 v{W}, v{S1+3}, v{vR}
    v_mov_b32 v{E}, v{S1}
    v_mov_b32 v{E+1}, v{S1+1}
    v_mov_b32 v{E+2}, v{S1+2}
    v_add_u32 {v(vT2)}, s{sOO2}, {v(vOUT)}
    s_mov_b32 s{sDUAL}, 3
    s_branch L_w
L_pmore:
    buffer_load_dwordx4 {vr(E+8)}, v{vPA}, s[4:7], s{sPO+2} offen sc1
    v_mov_b32 v{vHI}, 0
    s_mov_b64 exec, s[{sMK+6}:{sMK+7}]
    s_cbranch_execz L_pe
    buffer_load_dwordx4 {vr(E+12)}, v{vPA}, s[4:7], s{sPO+3} offen sc1
    s_branch L_pe
L_retry:
    v_max3_u32 {v(vT0)}, {v(vT0)}, v{n2}, v{n3}
    v_min3_u32 {v(vT1)}, {v(vT1)}, v{n2}, v{n3}
    v_cmp_lt_u32 vcc, s{sTAGH}, {v(vT0)}
    v_cmp_gt_u32_e64 s[{sM}:{sM+1}], s{sTAG}, {v(vT1)}
    s_or_b64 vcc, vcc, s[{sM}:{sM+1}]
    s_cbranch_vccz L_slow
    """)
    if a.sel:
        g(f"""
        v_subrev_u32 {v(vT1)}, s{sTAG}, v{n0}
        v_subrev_u32 {v(vT3)}, s{sTAG}, v{n1}
        s_mov_b32 s{sT0}, 0x3ffff
        v_cmp_lt_u32_e64 s[16:17], s{sT0}, {v(vT1)}
        v_cmp_lt_u32_e64 s[18:19], s{sT0}, {v(vT3)}
        """)
    if a.slp: g(f"s_sleep {a.slp}")
    g(f"""
    s_sub_u32 s{sSPIN}, s{sSPIN}, 1
    s_cbranch_scc1 L_slow
    s_sub_i32 s{sLOC}, s{sLOC}, 1
    s_cmp_gt_i32 s{sLOC}, 0
    s_cbranch_scc1 L_poll
    s_cmp_lt_i32 s{sLOC}, 0
    s_cbranch_scc1 L_tog
    v_xor_b32 v{G0+3}, s{sXC}, v{G0+3}
    s_add_u32 s{sOWN}, s{sOWN}, 0x200000
    buffer_store_dwordx4 {vr(G0)}, {v(vWS)}, s[24:27], s{sOWN} offen sc1
L_tog:
    s_mov_b32 s{sLOC}, -1
    s_xor_b32 s{sREG}, s{sREG}, 0x200000
    s_xor_b32 s{sPO}, s{sPO}, 0x200000
    s_xor_b32 s{sPO+1}, s{sPO+1}, 0x200000
    s_xor_b32 s{sPO+2}, s{sPO+2}, 0x200000
    s_xor_b32 s{sPO+3}, s{sPO+3}, 0x200000
    s_xor_b32 s{sTAG}, s{sTAG}, s{sXC}
    s_xor_b32 s{sTAGH}, s{sTAGH}, s{sXC}
    v_mov_b32 v{n0}, s{sTAG}
    v_mov_b32 v{n1}, s{sTAG}
    v_mov_b32 v{n2}, s{sTAG}
    v_mov_b32 v{n3}, s{sTAG}
    v_mov_b32 v{vHI}, 0
    s_mov_b64 s[16:17], s[{sMK}:{sMK+1}]
    s_mov_b64 s[18:19], s[{sMK1}:{sMK1+1}]
    s_branch L_poll
L_slow:
    v_max_u32_dpp {v(vT0)}, {v(vT0)}, {v(vT0)} row_ror:4 row_mask:0xf bank_mask:0xf
    s_nop 1
    v_max_u32_dpp {v(vT0)}, {v(vT0)}, {v(vT0)} row_ror:8 row_mask:0xf bank_mask:0xf
    v_mov_b32 {v(vT1)}, {v(vT0)}
    s_nop 1
    v_permlane16_swap_b32 {v(vT0)}, {v(vT1)}
    v_max_u32 {v(vT0)}, {v(vT0)}, {v(vT1)}
    v_mov_b32 {v(vT1)}, {v(vT0)}
    s_nop 1
    v_permlane32_swap_b32 {v(vT0)}, {v(vT1)}
    v_max_u32 v{vR}, {v(vT0)}, {v(vT1)}
    s_cmp_eq_u64 s[{sMK+4}:{sMK+5}], 0
    s_cbranch_scc1 L_got
    v_sub_u32 v{W}, v{n0}, v{vR}
    v_sub_u32 v{W+1}, v{n1}, v{vR}
    v_sub_u32 v{W+2}, v{n2}, v{vR}
    v_sub_u32 v{W+3}, v{n3}, v{vR}
    v_ldexp_f32 v{W}, 1.0, v{W}
    v_ldexp_f32 v{W+1}, 1.0, v{W+1}
    v_ldexp_f32 v{W+2}, 1.0, v{W+2}
    v_ldexp_f32 v{W+3}, 1.0, v{W+3}
    v_mul_f32 v{X+2}, v{E+2}, v{W}
    v_pk_mul_f32 v[{X}:{X+1}], v[{E}:{E+1}], v[{W}:{W+1}] op_sel:[0,0] op_sel_hi:[1,0]
    v_fmac_f32 v{X+2}, v{E+6}, v{W+1}
    v_pk_fma_f32 v[{X}:{X+1}], v[{E+4}:{E+5}], v[{W}:{W+1}], v[{X}:{X+1}] op_sel:[0,1,0] op_sel_hi:[1,1,1]
    v_fmac_f32 v{X+2}, v{E+10}, v{W+2}
    v_pk_fma_f32 v[{X}:{X+1}], v[{E+8}:{E+9}], v[{W+2}:{W+3}], v[{X}:{X+1}] op_sel:[0,0,0] op_sel_hi:[1,0,1]
    v_fmac_f32 v{X+2}, v{E+14}, v{W+3}
    v_pk_fma_f32 v[{X}:{X+1}], v[{E+12}:{E+13}], v[{W+2}:{W+3}], v[{X}:{X+1}] op_sel:[0,1,0] op_sel_hi:[1,1,1]
    s_branch L_sum
    """)
    cl, nb, pf, cn, cb, x0, x1 = vT0, vT1, vT3, vSO, vPA, vM, vMC
    fq, n_, k_ = vAL, vNEG, vOUT
    g(f"""
L_general:
    s_lshl_b32 s{sT0}, s{sI}, 10
    s_and_b32 s{sT0}, s{sT0}, 0xfff
    s_add_u32 s{sT0}, s{sT0}, {TBL}
    s_mov_b32 m0, s{sT0}
    v_and_b32 {v(vT1)}, 0xfff, {v(vWS)}
    v_add_u32 {v(vT5)}, 1, {v(vL)}
    s_mov_b32 s{sT1}, 0x42700000
    s_waitcnt vmcnt(0)
    global_load_lds_dwordx4 {v(vT1)}, s[16:17]
    v_mov_b32 {v(cl)}, s{sM+PERM[0]}
    v_writelane_b32 {v(cl)}, s{sM+PERM[1]}, 1
    v_writelane_b32 {v(cl)}, s{sM+PERM[2]}, 2
    v_writelane_b32 {v(cl)}, s{sM+PERM[3]}, 3
    v_add_u32 {v(nb)}, -1, {v(cl)}
    v_ashrrev_i32 {v(nb)}, 4, {v(nb)}
    v_min_u32 {v(nb)}, 0xff, {v(nb)}
    v_add_u32 {v(nb)}, 1, {v(nb)}
    s_nop 1
    v_add_u32_dpp {v(pf)}, {v(nb)}, {v(nb)} row_shr:1 row_mask:0xf bank_mask:0xf bound_ctrl:0
    v_lshlrev_b32 {v(nb)}, 1, {v(nb)}
    v_cvt_f32_u32 {v(fq)}, {v(nb)}
    v_add_u32_dpp {v(pf)}, {v(pf)}, {v(pf)} row_shr:2 row_mask:0xf bank_mask:0xf bound_ctrl:0
    s_nop 1
    v_cvt_f32_u32_dpp {v(cn)}, {v(pf)} quad_perm:[3,3,3,3] row_mask:0xf bank_mask:0xf
    v_cvt_f32_u32 {v(pf)}, {v(pf)}
    v_rcp_f32 {v(cn)}, {v(cn)}
    v_mul_f32 {v(pf)}, s{sT1}, {v(pf)}
    v_fma_f32 {v(cn)}, {v(pf)}, {v(cn)}, 0.5
    v_cvt_u32_f32 {v(cn)}, {v(cn)}
    v_add_u32 {v(cn)}, {v(cn)}, {v(vT5)}
    v_cmp_ge_u32 vcc, s{sJ}, {v(cn)}
    s_nop 0
    v_mov_b32_dpp {v(cb)}, {v(cn)} row_shr:1 row_mask:0xf bank_mask:0xf bound_ctrl:0
    s_and_b32 s{sB}, vcc_lo, 7
    v_sub_u32 {v(n_)}, {v(cn)}, {v(cb)}
    v_sub_u32 {v(k_)}, s{sJ}, {v(cb)}
    v_cvt_f32_u32 {v(x0)}, {v(n_)}
    v_rcp_f32 {v(x0)}, {v(x0)}
    v_add_u32 {v(pf)}, 1, {v(k_)}
    v_mul_f32 {v(fq)}, {v(fq)}, {v(x0)}
    v_cvt_f32_u32 {v(x0)}, {v(k_)}
    v_cvt_f32_u32 {v(x1)}, {v(pf)}
    v_cmp_eq_u32 vcc, {v(pf)}, {v(n_)}
    v_mul_f32 {v(x0)}, {v(x0)}, {v(fq)}
    v_mul_f32 {v(x1)}, {v(x1)}, {v(fq)}
    v_cvt_u32_f32 {v(x0)}, {v(x0)}
    v_cvt_u32_f32 {v(x1)}, {v(x1)}
    s_bcnt1_i32_b32 s{sB}, s{sB}
    v_cndmask_b32 {v(x1)}, {v(x1)}, {v(nb)}, vcc
    v_readlane_b32 s{sX0}, {v(x0)}, s{sB}
    v_readlane_b32 s{sREM}, {v(cl)}, s{sB}
    v_readlane_b32 s{sX1}, {v(x1)}, s{sB}
    v_readlane_b32 s{sCB}, {v(cb)}, s{sB}
    v_readlane_b32 s{sNB}, {v(n_)}, s{sB}
    s_lshl_b32 s{sB}, s{sB}, 3
    s_lshr_b32 s{sB}, 0x{pack(PERM):x}, s{sB}
    s_and_b32 s{sB}, s{sB}, 3
    """)
    g(wave_range)
    g(f"""
    s_add_u32 s{sT0}, s{sT0}, {TBL}
    v_lshl_add_u32 {v(vT0)}, {v(vL)}, 4, s{sT0}
    s_waitcnt vmcnt(0)
    s_barrier
    ds_read_b32 {v(vSO)}, {v(vT0)}
    s_cmp_gt_i32 s{sREM}, 0
    s_cselect_b32 s{sX1}, 0xce800000, 0
    """)
    g(wave_range2)
    g(f"""
    s_mov_b32 m0, s{sKM}
    s_waitcnt lgkmcnt(0)
    s_cmp_lt_i32 s{sNU}, 1
    s_cbranch_scc1 L_issued
    s_branch L_have
    """)
    if a.w9:
        g(f"""
L_touch:
        s_lshr_b32 s{sT0}, s2, 3
        s_lshl_b32 s{sT0}, s{sT0}, 20
        s_load_dword s{sM}, s[8:9], s{sT0}
        s_load_dword s{sM+1}, s[12:13], s{sT0}
        s_mov_b32 s{sT1}, 0x2000000
        s_load_dword s{sM+2}, s[8:9], s{sT1}
        s_load_dword s{sM+3}, s[12:13], s{sT1}
        s_load_dword s{sM+4}, s[4:5], 0
        s_load_dword s{sM+5}, s[20:21], 0
        """)
        if a.wpos == 2:
            g(f"""
            s_mov_b64 exec, -1
            v_lshlrev_b32 {v(vWS)}, 4, {v(vL)}
            s_add_u32 s{sT0}, s{sOWN}, 0x1000
            """)
            for k in range(8):
                g(f"buffer_load_dwordx4 {vr(KF+4*k)}, {v(vWS)}, s[24:27], s{sOWN if k < 4 else sT0} offen offset:{(k&3)*1024} sc1")
        g("""
        s_endpgm
        """)
    g("L_fin:")
    if a.amp:
        stamp()
        ia, ib = a.amp // 10, a.amp % 10
        g("s_waitcnt lgkmcnt(0)")
        if a.ampwg >= 0:
            g(f"""
            s_cmp_lg_u32 s2, {a.ampwg}
            s_cbranch_scc1 L_end
            s_cmp_lg_u32 s{sI}, 0
            s_cbranch_scc1 L_end
            """)
        g(f"""
        s_sub_u32 s6, s{sST+2*ib}, s{sST+2*ia}
        s_mul_i32 s6, s6, 10
        s_min_u32 s6, s6, 50000
        s_add_u32 s6, s6, s{sST+14}
L_spin:
        s_sleep 4
        s_memrealtime s[2:3]
        s_waitcnt lgkmcnt(0)
        s_sub_u32 s7, s2, s6
        s_cmp_lt_i32 s7, 0
        s_cbranch_scc1 L_spin
        """)
    elif a.stamps:
        stamp()
        g(f"""
        s_waitcnt lgkmcnt(0)
        s_lshl_b32 s6, s2, 4
        s_add_u32 s6, s6, s{sI}
        s_lshl_b32 s6, s6, 7
        s_add_u32 s6, s6, 0x1000000
        v_mov_b32 v14, s6
        s_getreg_b32 s6, hwreg(HW_REG_XCC_ID)
        s_mov_b64 exec, 1
        """)
        for k in range(9):
            g(f"v_mov_b32 v15, s{sST+2*k}")
            g(f"global_store_dword v14, v15, s[24:25] offset:{4*k}")
        g(f"""
        v_mov_b32 v15, s6
        global_store_dword v14, v15, s[24:25] offset:120
        s_sub_u32 s6, 0x10000, s{sSPIN}
        s_cmp_lt_i32 s{sLOC}, 0
        s_cselect_b32 s7, 1000, 0
        s_add_u32 s6, s6, s7
        v_mov_b32 v15, s6
        global_store_dword v14, v15, s[24:25] offset:124
        """)
    g("L_end:")
    g("s_endpgm")
    acc = (NV + 3) // 4 * 4
    out = HDR + f"; @launch grid=(256,1,1) block=({576 if a.w9 else 512},1,1) lds={LDS}\n"
    out += f""".amdgcn_target "amdgcn-amd-amdhsa--gfx950"
.text
.globl {NAME}_kernel
.p2align 8
.type {NAME}_kernel,@function
{NAME}_kernel:
""" + g.text() + f""".section .rodata,"a"
.p2align 6
.amdhsa_kernel {NAME}_kernel
  .amdhsa_next_free_vgpr {NV}
  .amdhsa_next_free_sgpr 102
  .amdhsa_accum_offset {acc}
  .amdhsa_group_segment_fixed_size 0
  .amdhsa_kernarg_size 64
  .amdhsa_user_sgpr_count 2
  .amdhsa_user_sgpr_kernarg_segment_ptr 1
  .amdhsa_system_sgpr_workgroup_id_x 1
.end_amdhsa_kernel
"""
    return out

if __name__ == "__main__":
    p = argparse.ArgumentParser()
    for k, d in dict(stamps=0, pf=1, thr=16, kst=0, w9=0, amp=0, ampwg=0, forcegen=0, accord=1, sel=0, slp=0, wpos=0).items():
        p.add_argument("--" + k, type=int, default=d)
    p.add_argument("-o", default="-")
    a = p.parse_args()
    if a.amp: a.stamps = 1
    t = gen(a)
    if a.o == "-": sys.stdout.write(t)
    else: open(a.o, "w").write(t)
```

```python
import sys, argparse, math, struct
from gen import NAME, HDR, f32bits, G

EXP_CL = [3663, 3230, 2797, 2364]
PERM = [0, 3, 1, 2]

def plan():
    nblk = [(EXP_CL[b] + 15) // 16 for b in PERM]
    T = sum(nblk); P = 0; c = [0]
    for x in range(4):
        P += nblk[x]
        c.append(x + 1 + int(60 * P / T + 0.5))
    n = [c[x + 1] - c[x] for x in range(4)]
    q = [2 * nblk[x] // n[x] for x in range(4)]
    r = [2 * nblk[x] - q[x] * n[x] for x in range(4)]
    pad = [16 * nblk[x] - EXP_CL[PERM[x]] for x in range(4)]
    return nblk, c, n, q, r, pad

def pack(vals):
    assert all(0 <= v < 256 for v in vals)
    return sum(v << (8 * i) for i, v in enumerate(vals))

def gen(a):
    g = G()
    KVSIZE = 1028 * 32768
    C = (128 ** -0.5) * math.log2(math.e)
    TBL = 131072
    LDS = TBL + 5376
    EPOFF = 0x300000
    kvnt = " nt"
    sOO2, sDUAL = 22, 23
    sI, sJ, sHP, sH256 = 28, 29, 30, 31
    sB, sCB, sNB, sREM, sNU, sNXT, sKM, sVM, sSO, sC, sT0, sT1, sOWN, sSTEP, sPB, sSPIN, sX0, sX1, sQO, sTAG = range(32, 52)
    sM = 52
    sMK, sPO, sOO, sFIRST, sXC, sLOC, sREG = 60, 68, 72, 73, 74, 75, 76
    sSENT = 77
    sHIM = 22
    sMK1 = 78
    sKA = 56
    sEP, sTAGN, sTAGH, sEPO = 80, 81, 82, 83
    sST = 84
    nst = [0]
    def stamp():
        if a.stamps:
            k = nst[0]; nst[0] += 1
            assert sST + 2 * k + 1 <= 101
            g(f"s_memrealtime s[{sST+2*k}:{sST+2*k+1}]")
    vL, vT0, vT1, vT2, vT3, vG, vT5, vSO, vWS, vOUT, vQO, vM, vMC, vAL, vNEG, vT4q, vSW, vSR, vPA = range(1, 20)
    ACC, LA, ML, vSW2, vSR2, KF = 20, 28, 32, 34, 35, 36
    KD, VD, KR, VR, Q, PA, PK, ONE, S, VF = 52, 56, 60, 64, 72, 88, 96, 98, 100, 104
    E = 120
    G0, JK, S1 = 136, 140, 144
    vR, vHI, vSM, vSM2 = 148, 149, 150, 151
    NV = 152
    def v(i): return f"v{i}"
    def vr(b, n=4): return f"v[{b}:{b+n-1}]"
    nblk, cc, nn, qq, rr, pad = plan()

    stamp()
    g(f"""
    s_load_dwordx16 s[{sKA}:{sKA+15}], s[0:1], 0
    v_readfirstlane_b32 s3, v0
    s_cmp_ge_u32 s2, 256
    s_cbranch_scc1 L_end
    """)
    if a.pf:
        g("""
        s_cmpk_eq_u32 s3, 512
        s_cbranch_scc1 L_pad0
        """)
    wave_range = f"""
    s_xor_b32 s{sT0}, s{sX0}, s{sI}
    s_and_b32 s{sT0}, s{sT0}, 1
    s_add_u32 s{sX0}, s{sX0}, s{sT0}
    s_andn2_b32 s{sT0}, s{sI}, 1
    s_add_u32 s{sX0}, s{sX0}, s{sT0}
    s_sub_i32 s{sNU}, s{sX1}, s{sX0}
    s_lshr_b32 s{sX0}, s{sX0}, 1
    s_lshl_b32 s{sT0}, s{sB}, 8
    s_add_u32 s{sT0}, s{sT0}, s{sX0}
    s_lshl_b32 s{sT0}, s{sT0}, 2
    """
    wave_range2 = f"""
    s_add_i32 s{sNU}, s{sNU}, 7
    s_ashr_i32 s{sNU}, s{sNU}, 3
    s_lshl_b32 s{sX0}, s{sX0}, 4
    s_sub_i32 s{sREM}, s{sREM}, s{sX0}
    s_lshl_b32 s{sQO}, s{sB}, 13
    s_lshl_b32 s{sT0}, s{sH256}, 2
    s_add_u32 s{sT0}, s{sT0}, s{sQO}
    v_lshlrev_b32 {v(vQO)}, 4, {v(vT4q)}
    v_lshl_add_u32 {v(vQO)}, {v(vG)}, 8, {v(vQO)}
    v_add_u32 {v(vQO)}, s{sT0}, {v(vQO)}
    """
    MA = []
    for x in range(4):
        U = 2 * nblk[x]
        M = -(-U * 65536 // nn[x])
        A = (PERM[x] * 512 * 65536 - cc[x] * M) & 0xffffffff
        for k in range(nn[x] + 1):
            assert (((cc[x] + k) * M + A) & 0xffffffff) >> 16 == PERM[x] * 512 + k * U // nn[x]
        MA.append((M, A))
    g(f"""
    s_lshl_b32 s{sJ}, s2, 3
    v_and_b32 {v(vL)}, 63, v0
    s_and_b32 s{sJ}, s{sJ}, 32
    s_lshr_b32 s{sT0}, s2, 3
    s_add_u32 s{sJ}, s{sJ}, s{sT0}
    s_lshr_b32 s{sI}, s3, 6
    s_mov_b32 s{sT1}, {MA[0][0]}
    s_mov_b32 s{sX0}, 0x{MA[0][1]:x}
    s_cmp_ge_u32 s{sJ}, {cc[1]}
    s_cselect_b32 s{sT1}, {MA[1][0]}, s{sT1}
    s_cselect_b32 s{sX0}, 0x{MA[1][1]:x}, s{sX0}
    s_cmp_ge_u32 s{sJ}, {cc[2]}
    s_cselect_b32 s{sT1}, {MA[2][0]}, s{sT1}
    s_cselect_b32 s{sX0}, 0x{MA[2][1]:x}, s{sX0}
    s_cmp_ge_u32 s{sJ}, {cc[3]}
    s_cselect_b32 s{sT1}, {MA[3][0]}, s{sT1}
    s_cselect_b32 s{sX0}, 0x{MA[3][1]:x}, s{sX0}
    s_mul_i32 s{sT0}, s{sJ}, s{sT1}
    s_add_u32 s{sX0}, s{sX0}, s{sT0}
    s_add_u32 s{sX1}, s{sX0}, s{sT1}
    s_lshr_b32 s{sX0}, s{sX0}, 16
    s_sub_u32 s{sT0}, s{sX0}, s{sI}
    s_and_b32 s{sT0}, s{sT0}, 1
    s_add_u32 s{sX0}, s{sX0}, s{sT0}
    s_andn2_b32 s{sT0}, s{sI}, 1
    s_add_u32 s{sX0}, s{sX0}, s{sT0}
    s_andn2_b32 s{sT0}, s{sX0}, 1
    s_lshl_b32 s{sT0}, s{sT0}, 1
    v_lshl_add_u32 {v(vT0)}, {v(vL)}, 4, s{sT0}
    s_mov_b64 exec, 0xff
    s_waitcnt lgkmcnt(0)
    """)
    stamp()
    g(f"""
    global_load_dword {v(vSO)}, {v(vT0)}, s[{sKA+6}:{sKA+7}]
    s_load_dwordx4 s[{sM}:{sM+3}], s[{sKA+8}:{sKA+9}], 0
    s_mov_b64 exec, -1
    s_and_b32 s{sHP}, s2, 3
    v_lshlrev_b32 {v(vWS)}, 4, v0
    s_lshl_b32 s{sOWN}, s{sHP}, 6
    v_and_b32 {v(vWS)}, 0xfff, {v(vWS)}
    s_add_u32 s{sOWN}, s{sOWN}, s{sJ}
    s_lshl_b32 s{sOWN}, s{sOWN}, 12
    s_mov_b64 s[24:25], s[{sKA+14}:{sKA+15}]
    s_mov_b32 s26, 0x200000
    s_mov_b32 s27, 0x20000
    buffer_load_dwordx4 {vr(JK)}, {v(vWS)}, s[24:27], s{sOWN} offen sc1
    v_lshrrev_b32 {v(vT4q)}, 4, {v(vL)}
    s_and_b32 s{sT0}, s{sI}, 1
    v_and_b32 {v(vT2)}, 15, v0
    s_lshl_b32 s{sH256}, s{sHP}, 1
    v_xor_b32 {v(vT3)}, {v(vT2)}, {v(vT4q)}
    s_add_u32 s{sH256}, s{sH256}, s{sT0}
    v_lshlrev_b32 {v(vT3)}, 4, {v(vT3)}
    s_lshl_b32 s{sH256}, s{sH256}, 8
    v_lshl_add_u32 v{KD}, {v(vT4q)}, 11, {v(vT3)}
    s_lshl_b32 s{sKM}, s{sI}, 14
    v_add_u32 v{KD}, s{sH256}, v{KD}
    s_mov_b64 s[8:9], s[{sKA+2}:{sKA+3}]
    v_lshl_add_u32 v{KR}, {v(vT2)}, 8, {v(vT3)}
    s_mov_b32 s10, 0x{KVSIZE:x}
    v_xor_b32 v{KD+1}, 64, v{KD}
    s_mov_b32 s11, 0x20000
    v_xor_b32 v{KD+2}, 0x80, v{KD}
    s_mov_b32 m0, s{sKM}
    v_xor_b32 v{KD+3}, 0xc0, v{KD}
    v_add_u32 v{KD+1}, 7168, v{KD+1}
    v_add_u32 v{KD+2}, {2*7168}, v{KD+2}
    v_add_u32 v{KD+3}, {3*7168}, v{KD+3}
    """)
    g(f"""
    s_lshr_b32 s{sB}, s{sX0}, 9
    v_and_b32 {v(vG)}, 3, v0
    s_lshl_b32 s{sQO}, s{sB}, 13
    v_lshlrev_b32 {v(vQO)}, 4, {v(vT4q)}
    s_lshl_b32 s{sT0}, s{sH256}, 2
    v_lshl_add_u32 {v(vQO)}, {v(vG)}, 8, {v(vQO)}
    s_add_u32 s{sT0}, s{sT0}, s{sQO}
    s_lshr_b32 s{sX1}, s{sX1}, 16
    v_add_u32 {v(vQO)}, s{sT0}, {v(vQO)}
    s_sub_i32 s{sNU}, s{sX1}, s{sX0}
    s_add_i32 s{sNU}, s{sNU}, 7
    s_ashr_i32 s{sNU}, s{sNU}, 3
    s_mov_b32 s{sFIRST}, 0
    {"s_setprio 3" if a.prio else ""}
    s_waitcnt vmcnt(1)
L_have:
    v_readlane_b32 s{sSO}, {v(vSO)}, 0
    v_readlane_b32 s{sT1}, {v(vSO)}, 1
    s_lshl_b32 s{sSO}, s{sSO}, 15
    """)
    stamp()
    stamp()
    def dma(srd, offs, so):
        for e in range(4):
            io = f" offset:{e*1024}" if e else ""
            g(f"buffer_load_dwordx4 v{offs+e}, s[{srd}:{srd+3}], s{so} offen{io}{kvnt} lds")
    dma(8, KD, sSO)
    if a.pf:
        g(f"""
        s_branch L_c2
L_pad0:
        s_branch L_pad1
L_c2:
        """)
    g(f"""
    v_lshlrev_b32 {v(vT3)}, 1, {v(vT4q)}
    s_add_u32 s{sVM}, s{sKM}, 0x2000
    v_xor_b32 {v(vT3)}, {v(vT2)}, {v(vT3)}
    s_mov_b64 s[12:13], s[{sKA+4}:{sKA+5}]
    v_lshlrev_b32 {v(vT3)}, 4, {v(vT3)}
    s_mov_b32 s14, s10
    v_lshl_add_u32 v{VD}, {v(vT4q)}, 11, {v(vT3)}
    s_mov_b32 s15, 0x20000
    v_add_u32 v{VD}, s{sH256}, v{VD}
    v_xor_b32 v{VD+1}, 0x80, v{VD}
    v_add_u32 v{VD+2}, {2*7168}, v{VD}
    v_add_u32 v{VD+3}, {3*7168}, v{VD+1}
    v_add_u32 v{VD+1}, 7168, v{VD+1}
    """)
    for jj in range(4):
        g(f"global_load_dwordx4 {vr(Q+4*jj)}, {v(vQO)}, s[{sKA}:{sKA+1}]" + (f" offset:{64*jj}" if jj else ""))
    if a.wpos == 1: g(f"buffer_load_dwordx4 {vr(JK)}, {v(vWS)}, s[24:27], s{sOWN} offen sc1")
    g(f"s_mov_b32 m0, s{sVM}")
    g(f"s_nop 0")
    dma(12, VD, sSO)
    if a.prio == 2: g("s_setprio 2")
    if a.prio == 3: g("s_setprio 0")
    g(f"""
    s_cmp_lt_i32 s{sNU}, 2
    s_cbranch_scc1 L_issued
    s_add_u32 s{sT0}, s{sKM}, 0x1000
    s_mov_b32 m0, s{sT0}
    s_lshl_b32 s{sT1}, s{sT1}, 15
    s_add_u32 s{sT0}, s{sVM}, 0x1000
    """)
    dma(8, KD, sT1)
    g(f"s_mov_b32 m0, s{sT0}")
    g(f"s_nop 0")
    dma(12, VD, sT1)
    g("L_issued:")
    g("s_setprio 1" if a.prio == 3 else "s_setprio 0")
    stamp()
    g(f"""
    s_cmp_lg_u32 s{sFIRST}, 0
    s_cbranch_scc1 L_checked
    s_waitcnt lgkmcnt(0)
    s_xor_b32 s{sT0}, s{sM}, {EXP_CL[0] + a.forcegen}
    s_xor_b32 s{sT1}, s{sM+1}, {EXP_CL[1]}
    s_or_b32 s{sT0}, s{sT0}, s{sT1}
    s_xor_b32 s{sT1}, s{sM+2}, {EXP_CL[2]}
    s_or_b32 s{sT0}, s{sT0}, s{sT1}
    s_xor_b32 s{sT1}, s{sM+3}, {EXP_CL[3]}
    s_or_b32 s{sT0}, s{sT0}, s{sT1}
    s_cbranch_scc1 L_general
    s_lshl_b32 s{sT1}, s{sB}, 3
    s_or_b32 s{sT1}, s{sT1}, 0x80000
    s_bfe_u32 s{sCB}, 0x{pack([cc[PERM.index(b)] for b in range(4)]):x}, s{sT1}
    s_bfe_u32 s{sNB}, 0x{pack([nn[PERM.index(b)] for b in range(4)]):x}, s{sT1}
    s_bfe_u32 s{sREM}, 0x{pack([nblk[PERM.index(b)] for b in range(4)]):x}, s{sT1}
    s_bfe_u32 s{sT1}, 0x{pack([pad[PERM.index(b)] for b in range(4)]):x}, s{sT1}
    s_lshl_b32 s{sREM}, s{sREM}, 4
    s_sub_u32 s{sREM}, s{sREM}, s{sT1}
    s_bfe_u32 s{sX0}, s{sX0}, 0x80001
    s_lshl_b32 s{sX0}, s{sX0}, 4
    s_sub_i32 s{sREM}, s{sREM}, s{sX0}
    s_mov_b32 s{sX1}, 0xce800000
L_checked:
    v_add_u32 v{KR}, s{sKM}, v{KR}
    s_mov_b64 s[20:21], s[{sKA+10}:{sKA+11}]
    """)
    g(f"""
    s_lshl_b32 s{sEPO}, s{sHP}, 2
    s_add_u32 s{sEPO}, s{sEPO}, s{sB}
    s_lshl_b32 s{sEPO}, s{sEPO}, 7
    s_add_u32 s{sEPO}, s{sEPO}, {EPOFF + 12}
    s_load_dword s{sEP}, s[24:25], s{sEPO}
    v_lshrrev_b32 {v(vT0)}, 2, {v(vT2)}
    v_lshl_add_u32 {v(vT0)}, {v(vT4q)}, 2, {v(vT0)}
    v_and_b32 {v(vT3)}, 7, {v(vT0)}
    v_lshlrev_b32 {v(vT3)}, 5, {v(vT3)}
    v_lshl_add_u32 {v(vT3)}, {v(vT0)}, 8, {v(vT3)}
    v_lshl_add_u32 {v(vT3)}, {v(vG)}, 3, {v(vT3)}
    v_add_u32 v{VR}, s{sVM}, {v(vT3)}
    """)
    for i in range(1, 8):
        g(f"v_xor_b32 v{VR+i}, {i<<5}, v{VR}")
    for e in range(1, 4):
        g(f"v_xor_b32 v{KR+e}, {e<<6}, v{KR}")
    g(f"""
    v_lshl_add_u32 v{vSW}, {v(vL)}, 4, s{sKM}
    v_lshl_add_u32 v{vSW2}, {v(vL)}, 3, s{sKM}
    s_and_b32 s{sT0}, s{sI}, 1
    s_lshl_b32 s{sT0}, s{sT0}, 14
    v_lshl_add_u32 v{vSM}, {v(vL)}, 3, s{sT0}
    v_add_u32 v{vSM2}, 0x10000, v{vSM}
    s_and_b32 s{sT1}, s{sI}, 2
    s_lshl_b32 s{sT1}, s{sT1}, 9
    s_add_u32 s{sT0}, s{sT0}, s{sT1}
    v_lshl_add_u32 v{vSR}, {v(vL)}, 4, s{sT0}
    v_add_u32 v{vSR2}, 0x10000, v{vSR}
    v_mov_b32 {v(vNEG)}, s{sX1}
    s_mov_b32 s{sC}, 0x{f32bits(C):08x}
    v_mov_b32 {v(vM)}, 0xce800000
    v_mul_f32 {v(vMC)}, s{sC}, {v(vM)}
    v_mov_b32 v{ONE}, 0x3f803f80
    v_mov_b32 v{ONE+1}, 0x3f803f80
    v_mov_b32 v{ML}, 0
    v_mov_b32 v{ML+1}, {v(vMC)}
    """)
    for i in range(8): g(f"v_mov_b32 v{ACC+i}, 0")
    for i in range(4): g(f"v_mov_b32 v{LA+i}, 0")
    for i in range(8): g(f"v_mov_b32 v{PA+i}, 0")
    g(f"""
    s_getreg_b32 s{sXC}, hwreg(HW_REG_XCC_ID, 0, 3)
    s_lshl_b32 s{sXC}, s{sXC}, 18
    s_lshl_b32 s{sT0}, s{sHP}, 6
    s_add_u32 s{sT0}, s{sT0}, s{sCB}
    s_lshl_b32 s{sT0}, s{sT0}, 12
    s_add_u32 s4, s24, s{sT0}
    s_addc_u32 s5, s25, 0
    s_mov_b32 s6, 0x200000
    s_mov_b32 s7, 0x20000
    s_sub_u32 s{sCB}, s{sJ}, s{sCB}
    s_cmp_ge_u32 s{sCB}, 8
    s_cselect_b32 s{sDUAL}, 4, 0
    s_and_b32 s{sDUAL}, s{sDUAL}, s{sI}
    s_and_b32 s{sCB}, s{sCB}, 7
    s_and_b32 s{sPB}, s{sI}, 3
    s_lshl_b32 s{sPB}, s{sPB}, 10
    s_and_b32 s{sT0}, s{sI}, 4
    s_lshl_b32 s{sT0}, s{sT0}, 7
    s_add_u32 s{sPB}, s{sPB}, s{sT0}
    s_mov_b32 s{sREG}, 0
    s_mov_b32 s{sNXT}, 2
    v_lshrrev_b32 {v(vT0)}, 2, {v(vL)}
    v_lshlrev_b32 v{vPA}, 4, {v(vG)}
    v_lshl_add_u32 v{vPA}, {v(vT0)}, 12, v{vPA}
    v_cmp_gt_u32_e64 s[{sMK}:{sMK+1}], s{sNB}, {v(vT0)}
    v_add_u32 {v(vT0)}, 16, {v(vT0)}
    v_cmp_gt_u32_e64 s[{sMK+2}:{sMK+3}], s{sNB}, {v(vT0)}
    v_add_u32 {v(vT0)}, 16, {v(vT0)}
    v_cmp_gt_u32_e64 s[{sMK+4}:{sMK+5}], s{sNB}, {v(vT0)}
    v_add_u32 {v(vT0)}, 16, {v(vT0)}
    v_cmp_gt_u32_e64 s[{sMK+6}:{sMK+7}], s{sNB}, {v(vT0)}
    v_and_b32 {v(vOUT)}, 2, {v(vT4q)}
    v_and_b32 {v(vT0)}, 1, {v(vT4q)}
    v_lshl_add_u32 {v(vOUT)}, {v(vT0)}, 2, {v(vOUT)}
    v_lshl_add_u32 {v(vOUT)}, {v(vG)}, 8, {v(vOUT)}
    s_lshl_b32 s{sT0}, s{sH256}, 2
    s_add_u32 s{sQO}, s{sQO}, s{sT0}
    s_and_b32 s{sT0}, s{sI}, 2
    s_lshl_b32 s{sT0}, s{sT0}, 4
    s_add_u32 s{sQO}, s{sQO}, s{sT0}
    s_and_b32 s{sT0}, s{sI}, 4
    s_lshl_b32 s{sT0}, s{sT0}, 2
    s_add_u32 s{sQO}, s{sQO}, s{sT0}
    v_add_u32 {v(vOUT)}, s{sQO}, {v(vOUT)}
    v_lshlrev_b32 {v(vT4q)}, 2, {v(vT4q)}
    s_waitcnt lgkmcnt(0)
    s_add_u32 s{sEP}, s{sEP}, 0x9e3c0000
    s_and_b32 s{sTAG}, s{sEP}, 0xffe00000
    s_or_b32 s{sTAG}, s{sTAG}, s{sXC}
    s_and_b32 s{sXC}, s{sEP}, 0xfffc0000
    s_xor_b32 s{sXC}, s{sXC}, s{sTAG}
    s_or_b32 s{sTAGN}, s{sTAG}, 0x20000
    s_mov_b32 s{sTAGH}, 0x3ffff
    """)
    for r in range(4):
        g(f"""
        v_mov_b32 v{E+4*r}, 0
        v_mov_b32 v{E+4*r+1}, 0
        v_mov_b32 v{E+4*r+2}, 0
        v_mov_b32 v{E+4*r+3}, s{sTAG}
        """)
    g(f"""
    s_mov_b32 s{sFIRST}, 0
    s_branch L_task
    """)
    if a.pf: g("L_pad1:\ns_branch L_pad2")
    g(f"""
L_taskback:
    s_cmp_lt_i32 s{sNU}, 1
    s_cbranch_scc1 L_done
L_loop:
    s_waitcnt vmcnt(12)
    s_cmp_gt_i32 s{sNU}, 1
    s_cbranch_scc1 L_kready
    s_waitcnt vmcnt(4)
L_kready:
    """)
    if a.kst:
        g(f"""
        s_cmp_lg_u32 s{sNXT}, 2
        s_cbranch_scc1 L_nks
        s_memrealtime s[{sST+16}:{sST+17}]
        s_waitcnt lgkmcnt(0)
L_nks:
        """)
    for jj in range(4):
        g(f"ds_read_b128 {vr(KF+4*jj)}, v{KR+jj}")
    g(f"v_readlane_b32 s{sSO}, {v(vSO)}, s{sNXT}")
    g(f"s_mov_b32 m0, s{sKM}")
    g(f"s_lshl_b32 s{sSO}, s{sSO}, 15")
    for jj in range(4):
        g(f"s_waitcnt lgkmcnt({3-jj})")
        g(f"v_mfma_f32_16x16x32_bf16 {vr(S)}, {vr(KF+4*jj)}, {vr(Q+4*jj)}, " + ("0" if jj == 0 else vr(S)))
    g(f"""
    s_cmp_lt_i32 s{sNU}, 3
    s_cbranch_scc1 L_nok
    """)
    dma(8, KD, sSO)
    g("L_nok:")
    for jj in range(4):
        g(f"v_xor_b32 v{KR+jj}, 0x1000, v{KR+jj}")
    g(f"""
    s_xor_b32 s{sKM}, s{sKM}, 0x1000
    s_mov_b32 m0, s{sVM}
    s_nop 1
    s_cmp_ge_i32 s{sREM}, 16
    s_cbranch_scc1 L_nomask
    v_subrev_u32 {v(vT0)}, s{sREM}, {v(vT4q)}
    """)
    for e in range(4):
        g(f"v_cmp_gt_i32_e64 s[{sM+2*e}:{sM+2*e+1}], {-e}, {v(vT0)}")
    for e in range(4):
        g(f"v_cndmask_b32_e64 v{S+e}, {v(vNEG)}, v{S+e}, s[{sM+2*e}:{sM+2*e+1}]")
    g(f"""
L_nomask:
    v_max3_f32 {v(vM)}, v{S}, v{S+1}, {v(vM)}
    v_max3_f32 {v(vM)}, v{S+2}, v{S+3}, {v(vM)}
    v_mov_b32 {v(vT0)}, {v(vM)}
    s_nop 1
    v_permlane16_swap_b32 {v(vM)}, {v(vT0)}
    v_max_f32 {v(vM)}, {v(vM)}, {v(vT0)}
    v_mov_b32 {v(vT0)}, {v(vM)}
    s_nop 1
    v_permlane32_swap_b32 {v(vM)}, {v(vT0)}
    v_max_f32 {v(vM)}, {v(vM)}, {v(vT0)}
    v_mul_f32 v{ML+1}, s{sC}, {v(vM)}
    v_sub_f32 {v(vAL)}, {v(vMC)}, v{ML+1}
    """)
    for e in range(4):
        g(f"v_fma_f32 v{S+e}, v{S+e}, s{sC}, -v{ML+1}")
    g(f"v_exp_f32 {v(vAL)}, {v(vAL)}")
    for e in range(4):
        g(f"v_exp_f32 v{S+e}, v{S+e}")
    g(f"""
    v_mov_b32 {v(vMC)}, v{ML+1}
    v_cvt_pk_bf16_f32 v{PK}, v{S}, v{S+1}
    v_cvt_pk_bf16_f32 v{PK+1}, v{S+2}, v{S+3}
    v_mul_f32 v{LA}, {v(vAL)}, v{LA}
    """)
    for i in range(4):
        g(f"v_mul_f32 v{ACC+i}, {v(vAL)}, v{ACC+i}")
    g(f"v_mfma_f32_16x16x16_bf16 {vr(LA)}, v[{ONE}:{ONE+1}], v[{PK}:{PK+1}], {vr(LA)}")
    for i in range(4, 8):
        g(f"v_mul_f32 v{ACC+i}, {v(vAL)}, v{ACC+i}")
    for aa in range(4):
        for x in range(2):
            g(f"v_mov_b32_dpp v{PA+2*aa+x}, v{PK+x} quad_perm:[0,1,2,3] row_mask:0xf bank_mask:0x{1<<aa:x}")
    g(f"""
    v_mov_b32 v{ML}, v{LA}
    s_waitcnt vmcnt(12)
    s_cmp_gt_i32 s{sNU}, 2
    s_cbranch_scc1 L_vready
    s_waitcnt vmcnt(8)
    s_cmp_gt_i32 s{sNU}, 1
    s_cbranch_scc1 L_vready
    s_waitcnt vmcnt(0)
L_vready:
    """)
    for i in range(8):
        g(f"ds_read_b64_tr_b16 v[{VF+2*i}:{VF+2*i+1}], v{VR+i}")
    order = [0, 2, 4, 6, 1, 3, 5, 7] if a.accord else list(range(8))
    if a.accord:
        for _ in range(8): g.l.pop()
        for i in order:
            g(f"ds_read_b64_tr_b16 v[{VF+2*i}:{VF+2*i+1}], v{VR+i}")
    g(f"s_cmp_lt_i32 s{sNU}, 2")
    for n_, i in enumerate(order):
        aa, uu = i >> 1, i & 1
        g(f"s_waitcnt lgkmcnt({7-n_})")
        g(f"v_mfma_f32_16x16x16_bf16 {vr(ACC+4*uu)}, v[{VF+2*i}:{VF+2*i+1}], v[{PA+2*aa}:{PA+2*aa+1}], {vr(ACC+4*uu)}")
    g(f"""
    s_cbranch_scc1 L_last
    s_cmp_lt_i32 s{sNU}, 3
    s_cbranch_scc1 L_nov
    """)
    dma(12, VD, sSO)
    g("L_nov:")
    for i in range(8):
        g(f"v_xor_b32 v{VR+i}, 0x1000, v{VR+i}")
    g(f"""
    s_xor_b32 s{sVM}, s{sVM}, 0x1000
    s_sub_i32 s{sNU}, s{sNU}, 1
    s_sub_i32 s{sREM}, s{sREM}, 64
    s_add_u32 s{sNXT}, s{sNXT}, 1
    s_branch L_loop
    """)
    if a.pf: g("L_pad2:\ns_endpgm")
    g("L_last:")
    g("L_done:")
    stamp()
    X = KF
    Y = VF
    Z = Q
    g(f"""
    ds_write_b128 v{vSW}, {vr(ACC)}
    ds_write_b64 v{vSW2}, v[{ML}:{ML+1}] offset:2048
    s_mov_b32 s{sT0}, 0x47ff0000
    v_mov_b32 {v(vT1)}, 0xc7ff0000
    s_mov_b32 s{sSPIN}, 0x10000
    s_mov_b32 s{sLOC}, 0x{0x80000000 + a.thr:x}
    s_mov_b32 s{sSENT}, 0
    ds_write_b128 v{vSW}, {vr(ACC+4)} offset:1024
    s_cmp_lg_u32 s{sDUAL}, 0
    s_waitcnt lgkmcnt(0)
    s_barrier
    s_cbranch_scc1 L_exit
    ds_read_b64 v[{Y}:{Y+1}], v{vSM} offset:2048
    ds_read_b64 v[{Y+2}:{Y+3}], v{vSM} offset:34816
    ds_read_b64 v[{Y+4}:{Y+5}], v{vSM2} offset:2048
    ds_read_b64 v[{Y+6}:{Y+7}], v{vSM2} offset:34816
    ds_read_b128 {vr(X)}, v{vSR}
    ds_read_b128 {vr(X+4)}, v{vSR} offset:32768
    ds_read_b128 {vr(X+8)}, v{vSR2}
    ds_read_b128 {vr(X+12)}, v{vSR2} offset:32768
    s_waitcnt lgkmcnt(4)
    """)
    stamp()
    g(f"""
    v_max3_f32 {v(vT0)}, v{Y+1}, v{Y+3}, v{Y+5}
    v_max_f32 {v(vT0)}, {v(vT0)}, v{Y+7}
    v_ceil_f32 {v(vT0)}, {v(vT0)}
    v_med3_f32 {v(vT0)}, {v(vT0)}, {v(vT1)}, s{sT0}
    v_sub_f32 v{Y+1}, v{Y+1}, {v(vT0)}
    v_sub_f32 v{Y+3}, v{Y+3}, {v(vT0)}
    v_sub_f32 v{Y+5}, v{Y+5}, {v(vT0)}
    v_sub_f32 v{Y+7}, v{Y+7}, {v(vT0)}
    v_exp_f32 v{Y+1}, v{Y+1}
    v_exp_f32 v{Y+3}, v{Y+3}
    v_exp_f32 v{Y+5}, v{Y+5}
    v_exp_f32 v{Y+7}, v{Y+7}
    v_cvt_i32_f32 v{G0+3}, {v(vT0)}
    s_sub_u32 s{sT0}, s{sTAG}, 60
    v_mul_f32 v{G0+2}, v{Y}, v{Y+1}
    v_add_u32 v{G0+3}, s{sTAGN}, v{G0+3}
    s_cmp_ge_u32 s{sI}, 4
    s_cbranch_scc1 L_pub
    s_waitcnt lgkmcnt(0)
    v_pk_mul_f32 v[{Z}:{Z+1}], v[{X}:{X+1}], v[{Y}:{Y+1}] op_sel:[0,1] op_sel_hi:[1,1]
    v_pk_mul_f32 v[{Z+2}:{Z+3}], v[{X+2}:{X+3}], v[{Y}:{Y+1}] op_sel:[0,1] op_sel_hi:[1,1]
    """)
    for k in range(1, 4):
        g(f"v_pk_fma_f32 v[{Z}:{Z+1}], v[{X+4*k}:{X+4*k+1}], v[{Y+2*k}:{Y+2*k+1}], v[{Z}:{Z+1}] op_sel:[0,1,0] op_sel_hi:[1,1,1]")
        g(f"v_pk_fma_f32 v[{Z+2}:{Z+3}], v[{X+4*k+2}:{X+4*k+3}], v[{Y+2*k}:{Y+2*k+1}], v[{Z+2}:{Z+3}] op_sel:[0,1,0] op_sel_hi:[1,1,1]")
        g(f"v_fmac_f32 v{G0+2}, v{Y+2*k}, v{Y+2*k+1}")
    n0, n1, n2, n3 = E + 3, E + 7, E + 11, E + 15
    W = Y + 8
    U = X
    def acc_entry(k, first):
        b = E + 4 * k; w = W + k; sel = w & 1
        wp = f"v[{w-sel}:{w-sel+1}]"
        g(f"""
        v_lshlrev_b32 v{U}, 16, v{b}
        v_and_b32 v{U+1}, s{sHIM}, v{b}
        v_lshlrev_b32 v{U+2}, 16, v{b+1}
        v_and_b32 v{U+3}, s{sHIM}, v{b+1}
        """)
        if first:
            g(f"""
            v_mul_f32 v{Z+4}, v{b+2}, v{w}
            v_pk_mul_f32 v[{Z}:{Z+1}], v[{U}:{U+1}], {wp} op_sel:[0,{sel}] op_sel_hi:[1,{sel}]
            v_pk_mul_f32 v[{Z+2}:{Z+3}], v[{U+2}:{U+3}], {wp} op_sel:[0,{sel}] op_sel_hi:[1,{sel}]
            """)
        else:
            g(f"""
            v_fmac_f32 v{Z+4}, v{b+2}, v{w}
            v_pk_fma_f32 v[{Z}:{Z+1}], v[{U}:{U+1}], {wp}, v[{Z}:{Z+1}] op_sel:[0,{sel},0] op_sel_hi:[1,{sel},1]
            v_pk_fma_f32 v[{Z+2}:{Z+3}], v[{U+2}:{U+3}], {wp}, v[{Z+2}:{Z+3}] op_sel:[0,{sel},0] op_sel_hi:[1,{sel},1]
            """)
    g(f"""
    v_cvt_pk_bf16_f32 v{G0}, v{Z}, v{Z+1}
    v_cvt_pk_bf16_f32 v{G0+1}, v{Z+2}, v{Z+3}
    buffer_store_dwordx4 {vr(G0)}, {v(vWS)}, s[24:27], s{sOWN} offen
L_pub:
    v_mov_b32 v{vR}, v{G0+3}
    v_subrev_u32 v{vHI}, s{sT0}, v{G0+3}
    s_mov_b32 s{sHIM}, 0xffff0000
L_poll:
    s_mov_b64 exec, s[{sMK}:{sMK+1}]
    buffer_load_dwordx4 {vr(E)}, v{vPA}, s[4:7], s{sPO} offen sc1
    s_mov_b64 exec, s[{sMK+2}:{sMK+3}]
    s_cbranch_execz L_pe
    buffer_load_dwordx4 {vr(E+4)}, v{vPA}, s[4:7], s{sPO+1} offen sc1
    s_mov_b64 exec, s[{sMK+4}:{sMK+5}]
    s_cbranch_execnz L_pmore
L_pe:
    s_mov_b64 exec, -1
    s_sub_i32 s{sLOC}, s{sLOC}, 1
    s_cbranch_scc1 L_late
    v_add_u32 {v(vT2)}, s{sOO}, {v(vOUT)}
    s_waitcnt vmcnt(0) lgkmcnt(0)
    v_subrev_u32 {v(vT0)}, s{sTAG}, v{n0}
    v_subrev_u32 {v(vT1)}, s{sTAG}, v{n1}
    v_max_u32 {v(vT0)}, {v(vT0)}, {v(vT1)}
    v_cmp_lt_u32 vcc, s{sTAGH}, {v(vT0)}
    s_cbranch_vccnz L_poll
    v_cmp_lt_u32 vcc, v{vHI}, {v(vT0)}
    s_cbranch_vccnz L_slow
L_got:
    """)
    if a.stamps and not a.kst: g(f"s_memrealtime s[{sST+16}:{sST+17}]")
    g(f"""
    v_sub_u32 v{W}, v{n0}, v{vR}
    v_sub_u32 v{W+1}, v{n1}, v{vR}
    v_ldexp_f32 v{W}, 1.0, v{W}
    v_ldexp_f32 v{W+1}, 1.0, v{W+1}
    """)
    acc_entry(0, True)
    acc_entry(1, False)
    g(f"""
L_sum:
    v_mov_b32 v{Z+5}, v{Z+4}
    v_permlane32_swap_b32 v{Z}, v{Z+1}
    s_nop 0
    v_permlane32_swap_b32 v{Z+2}, v{Z+3}
    v_permlane32_swap_b32 v{Z+4}, v{Z+5}
    v_add_f32 v{Z}, v{Z}, v{Z+1}
    v_add_f32 v{Z+4}, v{Z+4}, v{Z+5}
    v_add_f32 v{Z+2}, v{Z+2}, v{Z+3}
    v_mov_b32 v{Z+5}, v{Z+4}
    s_nop 0
    v_permlane16_swap_b32 v{Z}, v{Z+2}
    v_permlane16_swap_b32 v{Z+4}, v{Z+5}
    v_add_f32 v{Z}, v{Z}, v{Z+2}
    v_add_f32 v{Z+4}, v{Z+4}, v{Z+5}
    s_nop 0
    v_add_f32_dpp v{Z}, v{Z}, v{Z} row_ror:4 row_mask:0xf bank_mask:0xf
    v_add_f32_dpp v{Z+4}, v{Z+4}, v{Z+4} row_ror:4 row_mask:0xf bank_mask:0xf
    s_nop 0
    v_add_f32_dpp v{Z}, v{Z}, v{Z} row_ror:8 row_mask:0xf bank_mask:0xf
    v_add_f32_dpp v{Z+4}, v{Z+4}, v{Z+4} row_ror:8 row_mask:0xf bank_mask:0xf
    v_rcp_f32 v{Z+4}, v{Z+4}
    s_mov_b32 exec_lo, 0x000f000f
    s_mov_b32 exec_hi, 0x000f000f
    v_mul_f32 v{Z}, v{Z}, v{Z+4}
    v_cvt_pk_bf16_f32 v{Z}, v{Z}, v{Z}
    global_store_short {v(vT2)}, v{Z}, s[20:21]
    s_cmp_lg_u32 s{sPO}, s{sREG}
    s_cbranch_scc1 L_noep
    s_mov_b64 exec, 1
    v_mov_b32 {v(vT0)}, s{sEPO}
    v_mov_b32 {v(vT1)}, s{sEP}
    global_store_dword {v(vT0)}, {v(vT1)}, s[24:25]
L_noep:
    s_add_u32 s{sCB}, s{sCB}, s{sNB}
    s_cmp_lt_u32 s{sCB}, 8
    s_cbranch_scc1 L_task
L_exit:
    {"s_branch L_fin" if a.stamps else "s_endpgm"}
L_task:
    s_mov_b64 exec, -1
    s_lshl_b32 s{sPO}, s{sCB}, 6
    s_add_u32 s{sPO}, s{sPO}, s{sPB}
    s_add_u32 s{sPO}, s{sPO}, s{sREG}
    s_add_u32 s{sPO+1}, s{sPO}, 0x10000
    s_add_u32 s{sPO+2}, s{sPO}, 0x20000
    s_add_u32 s{sPO+3}, s{sPO}, 0x30000
    s_and_b32 s{sOO}, s{sCB}, 3
    s_lshl_b32 s{sOO}, s{sOO}, 6
    s_and_b32 s{sT1}, s{sCB}, 4
    s_lshl_b32 s{sT1}, s{sT1}, 1
    s_add_u32 s{sOO}, s{sOO}, s{sT1}
    s_cmp_eq_u32 s{sFIRST}, 0
    s_mov_b32 s{sFIRST}, 1
    s_cbranch_scc1 L_taskback
    s_branch L_poll
L_pmore:
    buffer_load_dwordx4 {vr(E+8)}, v{vPA}, s[4:7], s{sPO+2} offen sc1
    s_mov_b64 exec, s[{sMK+6}:{sMK+7}]
    s_cbranch_execz L_p3
    buffer_load_dwordx4 {vr(E+12)}, v{vPA}, s[4:7], s{sPO+3} offen sc1
L_p3:
    s_mov_b64 exec, -1
    s_sub_i32 s{sLOC}, s{sLOC}, 1
    s_cbranch_scc0 L_chk4
L_late:
    s_mov_b32 s{sLOC}, 0x80000000
    s_or_b32 s{sSENT}, s{sSENT}, 1
L_chk4:
    v_add_u32 {v(vT2)}, s{sOO}, {v(vOUT)}
    s_waitcnt vmcnt(0) lgkmcnt(0)
    v_subrev_u32 {v(vT0)}, s{sTAG}, v{n0}
    v_subrev_u32 {v(vT1)}, s{sTAG}, v{n1}
    v_subrev_u32 {v(vT3)}, s{sTAG}, v{n2}
    v_max3_u32 {v(vT0)}, {v(vT0)}, {v(vT1)}, {v(vT3)}
    v_subrev_u32 {v(vT1)}, s{sTAG}, v{n3}
    v_max_u32 {v(vT0)}, {v(vT0)}, {v(vT1)}
    v_cmp_lt_u32 vcc, s{sTAGH}, {v(vT0)}
    s_cbranch_vccz L_slow
    s_sub_u32 s{sSPIN}, s{sSPIN}, 1
    s_cbranch_scc1 L_slow
    s_cmp_eq_u32 s{sSENT}, 0
    s_cbranch_scc1 L_poll
    s_cmp_eq_u32 s{sSENT}, 3
    s_cbranch_scc1 L_tog
    s_mov_b32 s{sSENT}, 3
    s_cmp_ge_u32 s{sI}, 4
    s_cbranch_scc1 L_tog
    v_xor_b32 v{G0+3}, s{sXC}, v{G0+3}
    s_add_u32 s{sOWN}, s{sOWN}, 0x100000
    buffer_store_dwordx4 {vr(G0)}, {v(vWS)}, s[24:27], s{sOWN} offen sc1
L_tog:
    s_xor_b32 s{sREG}, s{sREG}, 0x100000
    s_xor_b32 s{sPO}, s{sPO}, 0x100000
    s_xor_b32 s{sPO+1}, s{sPO+1}, 0x100000
    s_xor_b32 s{sPO+2}, s{sPO+2}, 0x100000
    s_xor_b32 s{sPO+3}, s{sPO+3}, 0x100000
    s_xor_b32 s{sTAG}, s{sTAG}, s{sXC}
    v_mov_b32 v{n0}, s{sTAG}
    v_mov_b32 v{n1}, s{sTAG}
    v_mov_b32 v{n2}, s{sTAG}
    v_mov_b32 v{n3}, s{sTAG}
    s_branch L_poll
L_slow:
    s_nop 0
    v_max_u32_dpp {v(vT0)}, {v(vT0)}, {v(vT0)} row_ror:4 row_mask:0xf bank_mask:0xf
    s_nop 1
    v_max_u32_dpp {v(vT0)}, {v(vT0)}, {v(vT0)} row_ror:8 row_mask:0xf bank_mask:0xf
    v_mov_b32 {v(vT1)}, {v(vT0)}
    s_nop 1
    v_permlane16_swap_b32 {v(vT0)}, {v(vT1)}
    v_max_u32 {v(vT0)}, {v(vT0)}, {v(vT1)}
    v_mov_b32 {v(vT1)}, {v(vT0)}
    s_nop 1
    v_permlane32_swap_b32 {v(vT0)}, {v(vT1)}
    v_max_u32 v{vR}, {v(vT0)}, {v(vT1)}
    v_add_u32 v{vR}, s{sTAG}, v{vR}
    s_cmp_eq_u64 s[{sMK+4}:{sMK+5}], 0
    s_cbranch_scc1 L_got
    """)
    for k in range(4): g(f"v_sub_u32 v{W+k}, v{E+4*k+3}, v{vR}")
    for k in range(4): g(f"v_ldexp_f32 v{W+k}, 1.0, v{W+k}")
    for k in range(4): acc_entry(k, k == 0)
    g("s_branch L_sum")
    cl, nb, pf, cn, cb, x0, x1 = vT0, vT1, vT3, vSO, vPA, vM, vMC
    fq, n_, k_ = vAL, vNEG, vOUT
    g(f"""
L_general:
    s_lshl_b32 s{sT0}, s{sI}, 10
    s_and_b32 s{sT0}, s{sT0}, 0xfff
    s_add_u32 s{sT0}, s{sT0}, {TBL}
    s_mov_b32 m0, s{sT0}
    v_mov_b32 {v(vT1)}, {v(vWS)}
    v_add_u32 {v(vT5)}, 1, {v(vL)}
    s_mov_b32 s{sT1}, 0x42700000
    s_waitcnt vmcnt(0)
    global_load_lds_dwordx4 {v(vT1)}, s[{sKA+6}:{sKA+7}]
    v_mov_b32 {v(cl)}, s{sM+PERM[0]}
    v_writelane_b32 {v(cl)}, s{sM+PERM[1]}, 1
    v_writelane_b32 {v(cl)}, s{sM+PERM[2]}, 2
    v_writelane_b32 {v(cl)}, s{sM+PERM[3]}, 3
    v_add_u32 {v(nb)}, -1, {v(cl)}
    v_ashrrev_i32 {v(nb)}, 4, {v(nb)}
    v_min_u32 {v(nb)}, 0xff, {v(nb)}
    v_add_u32 {v(nb)}, 1, {v(nb)}
    s_nop 1
    v_add_u32_dpp {v(pf)}, {v(nb)}, {v(nb)} row_shr:1 row_mask:0xf bank_mask:0xf bound_ctrl:0
    v_lshlrev_b32 {v(nb)}, 1, {v(nb)}
    v_cvt_f32_u32 {v(fq)}, {v(nb)}
    v_add_u32_dpp {v(pf)}, {v(pf)}, {v(pf)} row_shr:2 row_mask:0xf bank_mask:0xf bound_ctrl:0
    s_nop 1
    v_cvt_f32_u32_dpp {v(cn)}, {v(pf)} quad_perm:[3,3,3,3] row_mask:0xf bank_mask:0xf
    v_cvt_f32_u32 {v(pf)}, {v(pf)}
    v_rcp_f32 {v(cn)}, {v(cn)}
    v_mul_f32 {v(pf)}, s{sT1}, {v(pf)}
    v_fma_f32 {v(cn)}, {v(pf)}, {v(cn)}, 0.5
    v_cvt_u32_f32 {v(cn)}, {v(cn)}
    v_add_u32 {v(cn)}, {v(cn)}, {v(vT5)}
    v_cmp_ge_u32 vcc, s{sJ}, {v(cn)}
    s_nop 0
    v_mov_b32_dpp {v(cb)}, {v(cn)} row_shr:1 row_mask:0xf bank_mask:0xf bound_ctrl:0
    s_and_b32 s{sB}, vcc_lo, 7
    v_sub_u32 {v(n_)}, {v(cn)}, {v(cb)}
    v_sub_u32 {v(k_)}, s{sJ}, {v(cb)}
    v_cvt_f32_u32 {v(x0)}, {v(n_)}
    v_rcp_f32 {v(x0)}, {v(x0)}
    v_add_u32 {v(pf)}, 1, {v(k_)}
    v_mul_f32 {v(fq)}, {v(fq)}, {v(x0)}
    v_cvt_f32_u32 {v(x0)}, {v(k_)}
    v_cvt_f32_u32 {v(x1)}, {v(pf)}
    v_cmp_eq_u32 vcc, {v(pf)}, {v(n_)}
    v_mul_f32 {v(x0)}, {v(x0)}, {v(fq)}
    v_mul_f32 {v(x1)}, {v(x1)}, {v(fq)}
    v_cvt_u32_f32 {v(x0)}, {v(x0)}
    v_cvt_u32_f32 {v(x1)}, {v(x1)}
    s_bcnt1_i32_b32 s{sB}, s{sB}
    v_cndmask_b32 {v(x1)}, {v(x1)}, {v(nb)}, vcc
    v_readlane_b32 s{sX0}, {v(x0)}, s{sB}
    v_readlane_b32 s{sREM}, {v(cl)}, s{sB}
    v_readlane_b32 s{sX1}, {v(x1)}, s{sB}
    v_readlane_b32 s{sCB}, {v(cb)}, s{sB}
    v_readlane_b32 s{sNB}, {v(n_)}, s{sB}
    s_lshl_b32 s{sB}, s{sB}, 3
    s_lshr_b32 s{sB}, 0x{pack(PERM):x}, s{sB}
    s_and_b32 s{sB}, s{sB}, 3
    """)
    g(wave_range)
    g(f"""
    s_add_u32 s{sT0}, s{sT0}, {TBL}
    v_lshl_add_u32 {v(vT0)}, {v(vL)}, 4, s{sT0}
    s_waitcnt vmcnt(0)
    s_barrier
    ds_read_b32 {v(vSO)}, {v(vT0)}
    s_cmp_gt_i32 s{sREM}, 0
    s_cselect_b32 s{sX1}, 0xce800000, 0
    """)
    g(wave_range2)
    g(f"""
    s_mov_b32 m0, s{sKM}
    s_mov_b32 s{sFIRST}, 1
    s_waitcnt lgkmcnt(0)
    s_cmp_lt_i32 s{sNU}, 1
    s_cbranch_scc1 L_issued
    s_branch L_have
    """)
    g("L_fin:")
    if a.amp:
        stamp()
        ia, ib = a.amp // 10, a.amp % 10
        g("s_waitcnt lgkmcnt(0)")
        if a.ampwg >= 0:
            g(f"""
            s_cmp_lg_u32 s2, {a.ampwg}
            s_cbranch_scc1 L_end
            s_cmp_lg_u32 s{sI}, 0
            s_cbranch_scc1 L_end
            """)
        g(f"""
        s_sub_u32 s6, s{sST+2*ib}, s{sST+2*ia}
        s_mul_i32 s6, s6, 10
        s_min_u32 s6, s6, 50000
        s_add_u32 s6, s6, s{sST+14}
L_spin:
        s_sleep 4
        s_memrealtime s[2:3]
        s_waitcnt lgkmcnt(0)
        s_sub_u32 s7, s2, s6
        s_cmp_lt_i32 s7, 0
        s_cbranch_scc1 L_spin
        """)
    elif a.stamps:
        stamp()
        g(f"""
        s_waitcnt lgkmcnt(0)
        s_lshl_b32 s6, s2, 4
        s_add_u32 s6, s6, s{sI}
        s_lshl_b32 s6, s6, 7
        s_add_u32 s6, s6, 0x1000000
        v_mov_b32 v14, s6
        s_getreg_b32 s6, hwreg(HW_REG_XCC_ID)
        s_mov_b64 exec, 1
        """)
        for k in range(9):
            g(f"v_mov_b32 v15, s{sST+2*k}")
            g(f"global_store_dword v14, v15, s[24:25] offset:{4*k}")
        g(f"""
        v_mov_b32 v15, s6
        global_store_dword v14, v15, s[24:25] offset:120
        s_sub_u32 s6, 0x{0x80000000 + a.thr:x}, s{sLOC}
        s_cmp_lg_u32 s{sSENT}, 0
        s_cselect_b32 s7, 1000, 0
        s_add_u32 s6, s6, s7
        v_mov_b32 v15, s6
        global_store_dword v14, v15, s[24:25] offset:124
        """)
    g("L_end:")
    g("s_endpgm")
    acc = (NV + 3) // 4 * 4
    out = HDR + f"; @launch grid=(256,1,1) block=({576 if a.pf else 512},1,1) lds={LDS}\n"
    out += f""".amdgcn_target "amdgcn-amd-amdhsa--gfx950"
.text
.globl {NAME}_kernel
.p2align 8
.type {NAME}_kernel,@function
{NAME}_kernel:
""" + g.text() + f""".section .rodata,"a"
.p2align 6
.amdhsa_kernel {NAME}_kernel
  .amdhsa_next_free_vgpr {NV}
  .amdhsa_next_free_sgpr 102
  .amdhsa_accum_offset {acc}
  .amdhsa_group_segment_fixed_size 0
  .amdhsa_kernarg_size 64
  .amdhsa_user_sgpr_count 2
  .amdhsa_user_sgpr_kernarg_segment_ptr 1
  .amdhsa_system_sgpr_workgroup_id_x 1
.end_amdhsa_kernel
"""
    return out

if __name__ == "__main__":
    p = argparse.ArgumentParser()
    for k, d in dict(stamps=0, pf=0, thr=16, kst=0, w9=0, amp=0, ampwg=0, forcegen=0, accord=1, prio=1, sel=0, slp=0, wpos=0).items():
        p.add_argument("--" + k, type=int, default=d)
    p.add_argument("-o", default="-")
    a = p.parse_args()
    if a.amp: a.stamps = 1
    t = gen(a)
    if a.o == "-": sys.stdout.write(t)
    else: open(a.o, "w").write(t)
```

```python
import sys, argparse, math, struct
from gen import NAME, HDR, f32bits, G

EXP_CL = [3663, 3230, 2797, 2364]
PERM = [0, 3, 1, 2]


DOC = """; ---------------------------------------------------------------------------------------------------------
;    {4 x bf16 partial, f32 sum, tag | exponent} in d_ws.  The tag derives from a per-group word that every launch
; ---------------------------------------------------------------------------------------------------------
"""

def plan():
    nblk = [(EXP_CL[b] + 15) // 16 for b in PERM]
    T = sum(nblk); P = 0; c = [0]
    for x in range(4):
        P += nblk[x]
        c.append(x + 1 + int(60 * P / T + 0.5))
    n = [c[x + 1] - c[x] for x in range(4)]
    q = [2 * nblk[x] // n[x] for x in range(4)]
    r = [2 * nblk[x] - q[x] * n[x] for x in range(4)]
    pad = [16 * nblk[x] - EXP_CL[PERM[x]] for x in range(4)]
    return nblk, c, n, q, r, pad

def pack(vals):
    assert all(0 <= v < 256 for v in vals)
    return sum(v << (8 * i) for i, v in enumerate(vals))

def gen(a):
    g = G()
    KVSIZE = 1028 * 32768
    C = (128 ** -0.5) * math.log2(math.e)
    TBL = 131072
    QL = TBL + 5376
    LDS = QL + 8192 if a.qdma else QL
    EPOFF = 0x300000
    kvnt = " nt"
    sOO2, sDUAL = 22, 23
    sI, sJ, sHP, sH256 = 28, 29, 30, 31
    sB, sCB, sNB, sREM, sNU, sNXT, sKM, sVM, sSO, sC, sT0, sT1, sOWN, sSTEP, sPB, sSPIN, sX0, sX1, sQO, sTAG = range(32, 52)
    sM = 52
    sMK, sPO, sOO, sFIRST, sXC, sLOC, sREG = 60, 68, 72, 73, 74, 75, 76
    sSENT = 77
    sHIM = 22
    sQL = 17
    sMK1 = 78
    sKA = 56
    sEP, sTAGN, sTAGH, sEPO = 80, 81, 82, 83
    sST = 84
    nst = [0]
    def stamp():
        if a.stamps:
            k = nst[0]; nst[0] += 1
            assert sST + 2 * k + 1 <= 101
            g(f"s_memrealtime s[{sST+2*k}:{sST+2*k+1}]")
    vL, vT0, vT1, vT2, vT3, vG, vT5, vSO, vWS, vOUT, vQO, vM, vMC, vAL, vNEG, vT4q, vSW, vSR, vPA = range(1, 20)
    ACC, LA, ML, vSW2, vSR2, KF = 20, 28, 32, 34, 35, 36
    KD, VD, KR, VR, Q, PA, PK, ONE, S, VF = 52, 56, 60, 64, 72, 88, 96, 98, 100, 104
    E = 120
    G0, JK, S1 = 136, 140, 144
    vR, vHI, vSM, vSM2 = 148, 149, 150, 151
    NV = 152
    def v(i): return f"v{i}"
    def vr(b, n=4): return f"v[{b}:{b+n-1}]"
    nblk, cc, nn, qq, rr, pad = plan()

    stamp()
    g(f"""
    s_load_dwordx16 s[{sKA}:{sKA+15}], s[0:1], 0
    v_readfirstlane_b32 s3, v0
    s_cmp_ge_u32 s2, 256
    s_cbranch_scc1 L_end
    """)
    if a.pf:
        g("""
        s_cmpk_eq_u32 s3, 512
        s_cbranch_scc1 L_pad0
        """)
    if a.qdma:
        qo1 = qo2 = ""
        qo3 = f"v_lshl_add_u32 {v(vQO)}, {v(vL)}, 4, s{sT0}"
    else:
        qo1 = f"v_lshlrev_b32 {v(vQO)}, 4, {v(vT4q)}"
        qo2 = f"v_lshl_add_u32 {v(vQO)}, {v(vG)}, 8, {v(vQO)}"
        qo3 = f"v_add_u32 {v(vQO)}, s{sT0}, {v(vQO)}"
    WL = f"buffer_load_dwordx4 {vr(JK)}, {v(vWS)}, s[24:27], s{sOWN} offen sc1"
    wave_range = f"""
    s_xor_b32 s{sT0}, s{sX0}, s{sI}
    s_and_b32 s{sT0}, s{sT0}, 1
    s_add_u32 s{sX0}, s{sX0}, s{sT0}
    s_andn2_b32 s{sT0}, s{sI}, 1
    s_add_u32 s{sX0}, s{sX0}, s{sT0}
    s_sub_i32 s{sNU}, s{sX1}, s{sX0}
    s_lshr_b32 s{sX0}, s{sX0}, 1
    s_lshl_b32 s{sT0}, s{sB}, 8
    s_add_u32 s{sT0}, s{sT0}, s{sX0}
    s_lshl_b32 s{sT0}, s{sT0}, 2
    """
    wave_range2 = f"""
    s_add_i32 s{sNU}, s{sNU}, 7
    s_ashr_i32 s{sNU}, s{sNU}, 3
    s_lshl_b32 s{sX0}, s{sX0}, 4
    s_sub_i32 s{sREM}, s{sREM}, s{sX0}
    s_lshl_b32 s{sQO}, s{sB}, 13
    s_lshl_b32 s{sT0}, s{sH256}, 2
    s_add_u32 s{sT0}, s{sT0}, s{sQO}
    {qo1}
    {qo2}
    {qo3}
    """
    MA = []
    for x in range(4):
        U = 2 * nblk[x]
        M = -(-U * 65536 // nn[x])
        A = (PERM[x] * 512 * 65536 - cc[x] * M) & 0xffffffff
        for k in range(nn[x] + 1):
            assert (((cc[x] + k) * M + A) & 0xffffffff) >> 16 == PERM[x] * 512 + k * U // nn[x]
        MA.append((M, A))
    g(f"""
    s_lshl_b32 s{sJ}, s2, 3
    v_and_b32 {v(vL)}, 63, v0
    s_and_b32 s{sJ}, s{sJ}, 32
    s_lshr_b32 s{sT0}, s2, 3
    s_add_u32 s{sJ}, s{sJ}, s{sT0}
    s_lshr_b32 s{sI}, s3, 6
    s_mov_b32 s{sT1}, {MA[0][0]}
    s_mov_b32 s{sX0}, 0x{MA[0][1]:x}
    s_cmp_ge_u32 s{sJ}, {cc[1]}
    s_cselect_b32 s{sT1}, {MA[1][0]}, s{sT1}
    s_cselect_b32 s{sX0}, 0x{MA[1][1]:x}, s{sX0}
    s_cmp_ge_u32 s{sJ}, {cc[2]}
    s_cselect_b32 s{sT1}, {MA[2][0]}, s{sT1}
    s_cselect_b32 s{sX0}, 0x{MA[2][1]:x}, s{sX0}
    s_cmp_ge_u32 s{sJ}, {cc[3]}
    s_cselect_b32 s{sT1}, {MA[3][0]}, s{sT1}
    s_cselect_b32 s{sX0}, 0x{MA[3][1]:x}, s{sX0}
    s_mul_i32 s{sT0}, s{sJ}, s{sT1}
    s_add_u32 s{sX0}, s{sX0}, s{sT0}
    s_add_u32 s{sX1}, s{sX0}, s{sT1}
    s_lshr_b32 s{sX0}, s{sX0}, 16
    s_sub_u32 s{sT0}, s{sX0}, s{sI}
    s_and_b32 s{sT0}, s{sT0}, 1
    s_add_u32 s{sX0}, s{sX0}, s{sT0}
    s_andn2_b32 s{sT0}, s{sI}, 1
    s_add_u32 s{sX0}, s{sX0}, s{sT0}
    s_andn2_b32 s{sT0}, s{sX0}, 1
    s_lshl_b32 s{sT0}, s{sT0}, 1
    v_lshl_add_u32 {v(vT0)}, {v(vL)}, 4, s{sT0}
    s_mov_b64 exec, 0xff
    s_waitcnt lgkmcnt(0)
    """)
    stamp()
    g(f"""
    global_load_dword {v(vSO)}, {v(vT0)}, s[{sKA+6}:{sKA+7}]
    s_load_dwordx4 s[{sM}:{sM+3}], s[{sKA+8}:{sKA+9}], 0
    s_mov_b64 exec, -1
    s_and_b32 s{sHP}, s2, 3
    {"s_lshr_b32 s%d, s%d, 10" % (sT0, sX0) if a.hx else ""}
    {"s_xor_b32 s%d, s%d, s%d" % (sHP, sHP, sT0) if a.hx else ""}
    v_lshlrev_b32 {v(vWS)}, 4, v0
    s_lshl_b32 s{sOWN}, s{sHP}, 6
    v_and_b32 {v(vWS)}, 0xfff, {v(vWS)}
    s_add_u32 s{sOWN}, s{sOWN}, s{sJ}
    s_lshl_b32 s{sOWN}, s{sOWN}, 12
    s_mov_b64 s[24:25], s[{sKA+14}:{sKA+15}]
    s_mov_b32 s26, 0x200000
    s_mov_b32 s27, 0x20000
    {WL if a.wp == 0 else ""}
    v_lshrrev_b32 {v(vT4q)}, 4, {v(vL)}
    s_and_b32 s{sT0}, s{sI}, 1
    v_and_b32 {v(vT2)}, 15, v0
    s_lshl_b32 s{sH256}, s{sHP}, 1
    v_xor_b32 {v(vT3)}, {v(vT2)}, {v(vT4q)}
    s_add_u32 s{sH256}, s{sH256}, s{sT0}
    v_lshlrev_b32 {v(vT3)}, 4, {v(vT3)}
    s_lshl_b32 s{sH256}, s{sH256}, 8
    v_lshl_add_u32 v{KD}, {v(vT4q)}, 11, {v(vT3)}
    s_lshl_b32 s{sKM}, s{sI}, 14
    v_add_u32 v{KD}, s{sH256}, v{KD}
    s_mov_b64 s[8:9], s[{sKA+2}:{sKA+3}]
    v_lshl_add_u32 v{KR}, {v(vT2)}, 8, {v(vT3)}
    s_mov_b32 s10, 0x{KVSIZE:x}
    v_xor_b32 v{KD+1}, 64, v{KD}
    s_mov_b32 s11, 0x20000
    v_xor_b32 v{KD+2}, 0x80, v{KD}
    s_mov_b32 m0, s{sKM}
    v_xor_b32 v{KD+3}, 0xc0, v{KD}
    v_add_u32 v{KD+1}, 7168, v{KD+1}
    v_add_u32 v{KD+2}, {2*7168}, v{KD+2}
    v_add_u32 v{KD+3}, {3*7168}, v{KD+3}
    """)
    g(f"""
    s_lshr_b32 s{sB}, s{sX0}, 9
    v_and_b32 {v(vG)}, 3, v0
    s_lshl_b32 s{sQO}, s{sB}, 13
    {qo1}
    s_lshl_b32 s{sT0}, s{sH256}, 2
    {qo2}
    s_add_u32 s{sT0}, s{sT0}, s{sQO}
    s_lshr_b32 s{sX1}, s{sX1}, 16
    {qo3}
    s_sub_i32 s{sNU}, s{sX1}, s{sX0}
    s_add_i32 s{sNU}, s{sNU}, 7
    s_ashr_i32 s{sNU}, s{sNU}, 3
    s_mov_b32 s{sFIRST}, 0
    {WL if a.wp == 1 else ""}
    {"s_setprio 3" if a.prio else ""}
    s_waitcnt vmcnt(1)
L_have:
    v_readlane_b32 s{sSO}, {v(vSO)}, 0
    v_readlane_b32 s{sT1}, {v(vSO)}, 1
    s_lshl_b32 s{sSO}, s{sSO}, 15
    """)
    stamp()
    stamp()
    def dma(srd, offs, so):
        for e in range(4):
            io = f" offset:{e*1024}" if e else ""
            g(f"buffer_load_dwordx4 v{offs+e}, s[{srd}:{srd+3}], s{so} offen{io}{kvnt} lds")
    dma(8, KD, sSO)
    if a.pf:
        g(f"""
        s_branch L_c2
L_pad0:
        s_branch L_pad1
L_c2:
        """)
    g(f"""
    s_add_u32 s{sVM}, s{sKM}, 0x2000
    s_cmp_lg_u32 s{sFIRST}, 0
    s_cbranch_scc1 L_c3
    s_waitcnt lgkmcnt(0)
    s_xor_b32 s{sT0}, s{sM}, {EXP_CL[0] + a.forcegen}
    s_xor_b32 s{sOO}, s{sM+1}, {EXP_CL[1]}
    s_or_b32 s{sT0}, s{sT0}, s{sOO}
    s_xor_b32 s{sOO}, s{sM+2}, {EXP_CL[2]}
    s_or_b32 s{sT0}, s{sT0}, s{sOO}
    s_xor_b32 s{sOO}, s{sM+3}, {EXP_CL[3]}
    s_or_b32 s{sT0}, s{sT0}, s{sOO}
    s_cbranch_scc1 L_general
L_c3:
    {"s_lshl_b32 s%d, s%d, 10" % (sT0, sI) if a.qdma else ""}
    {"s_add_u32 s%d, s%d, %d" % (sQL, sT0, QL) if a.qdma else ""}
    {"s_mov_b32 m0, s%d" % sQL if a.qdma else ""}
    v_lshlrev_b32 {v(vT3)}, 1, {v(vT4q)}
    v_xor_b32 {v(vT3)}, {v(vT2)}, {v(vT3)}
    s_mov_b64 s[12:13], s[{sKA+4}:{sKA+5}]
    v_lshlrev_b32 {v(vT3)}, 4, {v(vT3)}
    s_mov_b32 s14, s10
    v_lshl_add_u32 v{VD}, {v(vT4q)}, 11, {v(vT3)}
    s_mov_b32 s15, 0x20000
    v_add_u32 v{VD}, s{sH256}, v{VD}
    v_xor_b32 v{VD+1}, 0x80, v{VD}
    v_add_u32 v{VD+2}, {2*7168}, v{VD}
    v_add_u32 v{VD+3}, {3*7168}, v{VD+1}
    v_add_u32 v{VD+1}, 7168, v{VD+1}
    """)
    if a.qdma:
        g(f"global_load_lds_dwordx4 {v(vQO)}, s[{sKA}:{sKA+1}]")
    else:
        for jj in range(4):
            g(f"global_load_dwordx4 {vr(Q+4*jj)}, {v(vQO)}, s[{sKA}:{sKA+1}]" + (f" offset:{64*jj}" if jj else ""))
    if a.wpos == 1: g(f"buffer_load_dwordx4 {vr(JK)}, {v(vWS)}, s[24:27], s{sOWN} offen sc1")
    g(f"s_mov_b32 m0, s{sVM}")
    g(f"s_nop 0")
    dma(12, VD, sSO)
    if a.prio == 2: g("s_setprio 2")
    if a.prio == 3: g("s_setprio 0")
    g(f"""
    s_cmp_lt_i32 s{sNU}, 2
    s_cbranch_scc1 L_issued
    s_add_u32 s{sT0}, s{sKM}, 0x1000
    s_mov_b32 m0, s{sT0}
    s_lshl_b32 s{sT1}, s{sT1}, 15
    s_add_u32 s{sT0}, s{sVM}, 0x1000
    """)
    dma(8, KD, sT1)
    g(f"s_mov_b32 m0, s{sT0}")
    g(f"s_nop 0")
    dma(12, VD, sT1)
    g("L_issued:")
    g("s_setprio 1" if a.prio == 3 else "s_setprio 0")
    stamp()
    g(f"""
    s_cmp_lg_u32 s{sFIRST}, 0
    s_cbranch_scc1 L_checked
    s_lshl_b32 s{sT1}, s{sB}, 3
    s_or_b32 s{sT1}, s{sT1}, 0x80000
    s_bfe_u32 s{sCB}, 0x{pack([cc[PERM.index(b)] for b in range(4)]):x}, s{sT1}
    s_bfe_u32 s{sNB}, 0x{pack([nn[PERM.index(b)] for b in range(4)]):x}, s{sT1}
    s_bfe_u32 s{sREM}, 0x{pack([nblk[PERM.index(b)] for b in range(4)]):x}, s{sT1}
    s_bfe_u32 s{sT1}, 0x{pack([pad[PERM.index(b)] for b in range(4)]):x}, s{sT1}
    s_lshl_b32 s{sREM}, s{sREM}, 4
    s_sub_u32 s{sREM}, s{sREM}, s{sT1}
    s_bfe_u32 s{sX0}, s{sX0}, 0x80001
    s_lshl_b32 s{sX0}, s{sX0}, 4
    s_sub_i32 s{sREM}, s{sREM}, s{sX0}
    s_mov_b32 s{sX1}, 0xce800000
L_checked:
    v_add_u32 v{KR}, s{sKM}, v{KR}
    s_mov_b64 s[20:21], s[{sKA+10}:{sKA+11}]
    """)
    g(f"""
    s_lshl_b32 s{sEPO}, s{sHP}, 2
    s_add_u32 s{sEPO}, s{sEPO}, s{sB}
    s_lshl_b32 s{sEPO}, s{sEPO}, 7
    s_add_u32 s{sEPO}, s{sEPO}, {EPOFF + 12}
    s_load_dword s{sEP}, s[24:25], s{sEPO}
    v_lshrrev_b32 {v(vT0)}, 2, {v(vT2)}
    v_lshl_add_u32 {v(vT0)}, {v(vT4q)}, 2, {v(vT0)}
    v_and_b32 {v(vT3)}, 7, {v(vT0)}
    v_lshlrev_b32 {v(vT3)}, 5, {v(vT3)}
    v_lshl_add_u32 {v(vT3)}, {v(vT0)}, 8, {v(vT3)}
    v_lshl_add_u32 {v(vT3)}, {v(vG)}, 3, {v(vT3)}
    v_add_u32 v{VR}, s{sVM}, {v(vT3)}
    """)
    for i in range(1, 8):
        g(f"v_xor_b32 v{VR+i}, {i<<5}, v{VR}")
    for e in range(1, 4):
        g(f"v_xor_b32 v{KR+e}, {e<<6}, v{KR}")
    g(f"""
    v_lshl_add_u32 v{vSW}, {v(vL)}, 4, s{sKM}
    v_lshl_add_u32 v{vSW2}, {v(vL)}, 3, s{sKM}
    s_and_b32 s{sT0}, s{sI}, 1
    s_lshl_b32 s{sT0}, s{sT0}, 14
    v_lshl_add_u32 v{vSM}, {v(vL)}, 3, s{sT0}
    v_add_u32 v{vSM2}, 0x10000, v{vSM}
    s_and_b32 s{sT1}, s{sI}, 2
    s_lshl_b32 s{sT1}, s{sT1}, 9
    s_add_u32 s{sT0}, s{sT0}, s{sT1}
    v_lshl_add_u32 v{vSR}, {v(vL)}, 4, s{sT0}
    v_add_u32 v{vSR2}, 0x10000, v{vSR}
    v_mov_b32 {v(vNEG)}, s{sX1}
    s_mov_b32 s{sC}, 0x{f32bits(C):08x}
    v_mov_b32 {v(vM)}, 0xce800000
    v_mul_f32 {v(vMC)}, s{sC}, {v(vM)}
    v_mov_b32 v{ONE}, 0x3f803f80
    v_mov_b32 v{ONE+1}, 0x3f803f80
    v_mov_b32 v{ML}, 0
    v_mov_b32 v{ML+1}, {v(vMC)}
    """)
    for i in range(8): g(f"v_mov_b32 v{ACC+i}, 0")
    for i in range(4): g(f"v_mov_b32 v{LA+i}, 0")
    for i in range(8): g(f"v_mov_b32 v{PA+i}, 0")
    g(f"""
    s_getreg_b32 s{sXC}, hwreg(HW_REG_XCC_ID, 0, 3)
    s_lshl_b32 s{sXC}, s{sXC}, 18
    s_lshl_b32 s{sT0}, s{sHP}, 6
    s_add_u32 s{sT0}, s{sT0}, s{sCB}
    s_lshl_b32 s{sT0}, s{sT0}, 12
    s_add_u32 s4, s24, s{sT0}
    s_addc_u32 s5, s25, 0
    s_mov_b32 s6, 0x200000
    s_mov_b32 s7, 0x20000
    s_sub_u32 s{sCB}, s{sJ}, s{sCB}
    s_cmp_ge_u32 s{sCB}, 8
    s_cselect_b32 s{sDUAL}, 4, 0
    s_and_b32 s{sDUAL}, s{sDUAL}, s{sI}
    s_and_b32 s{sCB}, s{sCB}, 7
    s_and_b32 s{sPB}, s{sI}, 3
    s_lshl_b32 s{sPB}, s{sPB}, 10
    s_and_b32 s{sT0}, s{sI}, 4
    s_lshl_b32 s{sT0}, s{sT0}, 7
    s_add_u32 s{sPB}, s{sPB}, s{sT0}
    s_mov_b32 s{sREG}, 0
    s_mov_b32 s{sNXT}, 2
    v_lshrrev_b32 {v(vT0)}, 2, {v(vL)}
    v_lshlrev_b32 v{vPA}, 4, {v(vG)}
    v_lshl_add_u32 v{vPA}, {v(vT0)}, 12, v{vPA}
    v_cmp_gt_u32_e64 s[{sMK}:{sMK+1}], s{sNB}, {v(vT0)}
    v_add_u32 {v(vT0)}, 16, {v(vT0)}
    v_cmp_gt_u32_e64 s[{sMK+2}:{sMK+3}], s{sNB}, {v(vT0)}
    v_add_u32 {v(vT0)}, 16, {v(vT0)}
    v_cmp_gt_u32_e64 s[{sMK+4}:{sMK+5}], s{sNB}, {v(vT0)}
    v_add_u32 {v(vT0)}, 16, {v(vT0)}
    v_cmp_gt_u32_e64 s[{sMK+6}:{sMK+7}], s{sNB}, {v(vT0)}
    v_and_b32 {v(vOUT)}, 2, {v(vT4q)}
    v_and_b32 {v(vT0)}, 1, {v(vT4q)}
    v_lshl_add_u32 {v(vOUT)}, {v(vT0)}, 2, {v(vOUT)}
    v_lshl_add_u32 {v(vOUT)}, {v(vG)}, 8, {v(vOUT)}
    s_lshl_b32 s{sT0}, s{sH256}, 2
    s_add_u32 s{sQO}, s{sQO}, s{sT0}
    s_and_b32 s{sT0}, s{sI}, 2
    s_lshl_b32 s{sT0}, s{sT0}, 4
    s_add_u32 s{sQO}, s{sQO}, s{sT0}
    s_and_b32 s{sT0}, s{sI}, 4
    s_lshl_b32 s{sT0}, s{sT0}, 2
    s_add_u32 s{sQO}, s{sQO}, s{sT0}
    v_add_u32 {v(vOUT)}, s{sQO}, {v(vOUT)}
    v_lshlrev_b32 {v(vT4q)}, 2, {v(vT4q)}
    s_waitcnt lgkmcnt(0)
    s_add_u32 s{sEP}, s{sEP}, 0x9e3c0000
    s_and_b32 s{sTAG}, s{sEP}, 0xffe00000
    s_or_b32 s{sTAG}, s{sTAG}, s{sXC}
    s_and_b32 s{sXC}, s{sEP}, 0xfffc0000
    s_xor_b32 s{sXC}, s{sXC}, s{sTAG}
    s_or_b32 s{sTAGN}, s{sTAG}, 0x20000
    s_mov_b32 s{sTAGH}, 0x3ffff
    """)
    for r in range(4):
        g(f"""
        v_mov_b32 v{E+4*r}, 0
        v_mov_b32 v{E+4*r+1}, 0
        v_mov_b32 v{E+4*r+2}, 0
        v_mov_b32 v{E+4*r+3}, s{sTAG}
        """)
    g(f"""
    s_mov_b32 s{sFIRST}, 0
    s_branch L_task
    """)
    if a.pf: g("L_pad1:\ns_branch L_pad2")
    g(f"""
L_taskback:
    s_cmp_lt_i32 s{sNU}, 1
    s_cbranch_scc1 L_done
    """)
    if a.qdma:
        g(f"""
        v_lshlrev_b32 {v(vQO)}, 2, {v(vT4q)}
        v_lshl_add_u32 {v(vQO)}, {v(vG)}, 8, {v(vQO)}
        v_add_u32 {v(vQO)}, s{sQL}, {v(vQO)}
        s_waitcnt vmcnt(12)
        s_cmp_gt_i32 s{sNU}, 1
        s_cbranch_scc1 L_q
        s_waitcnt vmcnt(4)
L_q:
        """)
        for jj in range(4):
            g(f"ds_read_b128 {vr(Q+4*jj)}, {v(vQO)} offset:{64*jj}")
        g("s_branch L_kready")
    g(f"""
L_loop:
    s_waitcnt vmcnt(12)
    s_cmp_gt_i32 s{sNU}, 1
    s_cbranch_scc1 L_kready
    s_waitcnt vmcnt(4)
L_kready:
    """)
    if a.kst:
        g(f"""
        s_cmp_lg_u32 s{sNXT}, 2
        s_cbranch_scc1 L_nks
        s_memrealtime s[{sST+16}:{sST+17}]
        s_waitcnt lgkmcnt(0)
L_nks:
        """)
    for jj in range(4):
        g(f"ds_read_b128 {vr(KF+4*jj)}, v{KR+jj}")
    g(f"v_readlane_b32 s{sSO}, {v(vSO)}, s{sNXT}")
    g(f"s_mov_b32 m0, s{sKM}")
    g(f"s_lshl_b32 s{sSO}, s{sSO}, 15")
    for jj in range(4):
        g(f"s_waitcnt lgkmcnt({3-jj})")
        g(f"v_mfma_f32_16x16x32_bf16 {vr(S)}, {vr(KF+4*jj)}, {vr(Q+4*jj)}, " + ("0" if jj == 0 else vr(S)))
    g(f"""
    s_cmp_lt_i32 s{sNU}, 3
    s_cbranch_scc1 L_nok
    """)
    dma(8, KD, sSO)
    g("L_nok:")
    for jj in range(4):
        g(f"v_xor_b32 v{KR+jj}, 0x1000, v{KR+jj}")
    g(f"""
    s_xor_b32 s{sKM}, s{sKM}, 0x1000
    s_mov_b32 m0, s{sVM}
    s_nop 1
    s_cmp_ge_i32 s{sREM}, 16
    s_cbranch_scc1 L_nomask
    v_subrev_u32 {v(vT0)}, s{sREM}, {v(vT4q)}
    """)
    for e in range(4):
        g(f"v_cmp_gt_i32_e64 s[{sM+2*e}:{sM+2*e+1}], {-e}, {v(vT0)}")
    for e in range(4):
        g(f"v_cndmask_b32_e64 v{S+e}, {v(vNEG)}, v{S+e}, s[{sM+2*e}:{sM+2*e+1}]")
    g(f"""
L_nomask:
    v_max3_f32 {v(vM)}, v{S}, v{S+1}, {v(vM)}
    v_max3_f32 {v(vM)}, v{S+2}, v{S+3}, {v(vM)}
    v_mov_b32 {v(vT0)}, {v(vM)}
    s_nop 1
    v_permlane16_swap_b32 {v(vM)}, {v(vT0)}
    v_max_f32 {v(vM)}, {v(vM)}, {v(vT0)}
    v_mov_b32 {v(vT0)}, {v(vM)}
    s_nop 1
    v_permlane32_swap_b32 {v(vM)}, {v(vT0)}
    v_max_f32 {v(vM)}, {v(vM)}, {v(vT0)}
    v_mul_f32 v{ML+1}, s{sC}, {v(vM)}
    v_sub_f32 {v(vAL)}, {v(vMC)}, v{ML+1}
    """)
    for e in range(4):
        g(f"v_fma_f32 v{S+e}, v{S+e}, s{sC}, -v{ML+1}")
    g(f"v_exp_f32 {v(vAL)}, {v(vAL)}")
    for e in range(4):
        g(f"v_exp_f32 v{S+e}, v{S+e}")
    g(f"""
    v_mov_b32 {v(vMC)}, v{ML+1}
    v_cvt_pk_bf16_f32 v{PK}, v{S}, v{S+1}
    v_cvt_pk_bf16_f32 v{PK+1}, v{S+2}, v{S+3}
    v_mul_f32 v{LA}, {v(vAL)}, v{LA}
    """)
    for i in range(4):
        g(f"v_mul_f32 v{ACC+i}, {v(vAL)}, v{ACC+i}")
    g(f"v_mfma_f32_16x16x16_bf16 {vr(LA)}, v[{ONE}:{ONE+1}], v[{PK}:{PK+1}], {vr(LA)}")
    for i in range(4, 8):
        g(f"v_mul_f32 v{ACC+i}, {v(vAL)}, v{ACC+i}")
    for aa in range(4):
        for x in range(2):
            g(f"v_mov_b32_dpp v{PA+2*aa+x}, v{PK+x} quad_perm:[0,1,2,3] row_mask:0xf bank_mask:0x{1<<aa:x}")
    g(f"""
    v_mov_b32 v{ML}, v{LA}
    s_waitcnt vmcnt(12)
    s_cmp_gt_i32 s{sNU}, 2
    s_cbranch_scc1 L_vready
    s_waitcnt vmcnt(8)
    s_cmp_gt_i32 s{sNU}, 1
    s_cbranch_scc1 L_vready
    s_waitcnt vmcnt(0)
L_vready:
    """)
    order = [0, 2, 4, 6, 1, 3, 5, 7]
    for n_, i in enumerate(order):
        g(f"ds_read_b64_tr_b16 v[{VF+2*n_}:{VF+2*n_+1}], v{VR+i}")
    g(f"s_cmp_lt_i32 s{sNU}, 2")
    for n_ in range(4):
        uu, hh = n_ >> 1, n_ & 1
        g(f"s_waitcnt lgkmcnt({6-2*n_})")
        g(f"v_mfma_f32_16x16x32_bf16 {vr(ACC+4*uu)}, {vr(VF+4*n_)}, {vr(PA+4*hh)}, {vr(ACC+4*uu)}")
    g(f"""
    s_cbranch_scc1 L_last
    s_cmp_lt_i32 s{sNU}, 3
    s_cbranch_scc1 L_nov
    """)
    dma(12, VD, sSO)
    g("L_nov:")
    for i in range(8):
        g(f"v_xor_b32 v{VR+i}, 0x1000, v{VR+i}")
    g(f"""
    s_xor_b32 s{sVM}, s{sVM}, 0x1000
    s_sub_i32 s{sNU}, s{sNU}, 1
    s_sub_i32 s{sREM}, s{sREM}, 64
    s_add_u32 s{sNXT}, s{sNXT}, 1
    s_branch L_loop
    """)
    if a.pf: g("L_pad2:\ns_endpgm")
    g("L_last:")
    g("L_done:")
    stamp()
    X = KF
    Y = VF
    Z = Q
    g(f"""
    ds_write_b64 v{vSW2}, v[{ML}:{ML+1}] offset:2048
    s_mov_b32 s{sT0}, 0x47ff0000
    v_mov_b32 {v(vT1)}, 0xc7ff0000
    ds_write_b128 v{vSW}, {vr(ACC)}
    s_mov_b32 s{sSPIN}, 0x10000
    s_mov_b32 s{sLOC}, 0x{0x80000000 + a.thr:x}
    s_mov_b32 s{sSENT}, 0
    ds_write_b128 v{vSW}, {vr(ACC+4)} offset:1024
    s_cmp_lg_u32 s{sDUAL}, 0
    s_waitcnt lgkmcnt(0)
    s_barrier
    s_cbranch_scc1 L_exit
    ds_read_b64 v[{Y}:{Y+1}], v{vSM} offset:2048
    ds_read_b64 v[{Y+2}:{Y+3}], v{vSM} offset:34816
    ds_read_b64 v[{Y+4}:{Y+5}], v{vSM2} offset:2048
    ds_read_b64 v[{Y+6}:{Y+7}], v{vSM2} offset:34816
    ds_read_b128 {vr(X)}, v{vSR}
    ds_read_b128 {vr(X+4)}, v{vSR} offset:32768
    ds_read_b128 {vr(X+8)}, v{vSR2}
    ds_read_b128 {vr(X+12)}, v{vSR2} offset:32768
    s_waitcnt lgkmcnt(4)
    """)
    stamp()
    g(f"""
    v_max3_f32 {v(vT0)}, v{Y+1}, v{Y+3}, v{Y+5}
    v_max_f32 {v(vT0)}, {v(vT0)}, v{Y+7}
    v_ceil_f32 {v(vT0)}, {v(vT0)}
    v_med3_f32 {v(vT0)}, {v(vT0)}, {v(vT1)}, s{sT0}
    v_sub_f32 v{Y+1}, v{Y+1}, {v(vT0)}
    v_sub_f32 v{Y+3}, v{Y+3}, {v(vT0)}
    v_sub_f32 v{Y+5}, v{Y+5}, {v(vT0)}
    v_sub_f32 v{Y+7}, v{Y+7}, {v(vT0)}
    v_exp_f32 v{Y+1}, v{Y+1}
    v_exp_f32 v{Y+3}, v{Y+3}
    v_exp_f32 v{Y+5}, v{Y+5}
    v_exp_f32 v{Y+7}, v{Y+7}
    v_cvt_i32_f32 v{G0+3}, {v(vT0)}
    s_sub_u32 s{sT0}, s{sTAG}, 60
    v_mul_f32 v{G0+2}, v{Y}, v{Y+1}
    v_add_u32 v{G0+3}, s{sTAGN}, v{G0+3}
    s_cmp_ge_u32 s{sI}, 4
    s_cbranch_scc1 L_pub
    s_waitcnt lgkmcnt(0)
    v_pk_mul_f32 v[{Z}:{Z+1}], v[{X}:{X+1}], v[{Y}:{Y+1}] op_sel:[0,1] op_sel_hi:[1,1]
    v_pk_mul_f32 v[{Z+2}:{Z+3}], v[{X+2}:{X+3}], v[{Y}:{Y+1}] op_sel:[0,1] op_sel_hi:[1,1]
    """)
    for k in range(1, 4):
        g(f"v_pk_fma_f32 v[{Z}:{Z+1}], v[{X+4*k}:{X+4*k+1}], v[{Y+2*k}:{Y+2*k+1}], v[{Z}:{Z+1}] op_sel:[0,1,0] op_sel_hi:[1,1,1]")
        g(f"v_pk_fma_f32 v[{Z+2}:{Z+3}], v[{X+4*k+2}:{X+4*k+3}], v[{Y+2*k}:{Y+2*k+1}], v[{Z+2}:{Z+3}] op_sel:[0,1,0] op_sel_hi:[1,1,1]")
        g(f"v_fmac_f32 v{G0+2}, v{Y+2*k}, v{Y+2*k+1}")
    n0, n1, n2, n3 = E + 3, E + 7, E + 11, E + 15
    W = Y + 8
    U = X
    def acc_entry(k, first):
        b = E + 4 * k; w = W + k; sel = w & 1
        wp = f"v[{w-sel}:{w-sel+1}]"
        g(f"""
        v_lshlrev_b32 v{U}, 16, v{b}
        v_and_b32 v{U+1}, s{sHIM}, v{b}
        v_lshlrev_b32 v{U+2}, 16, v{b+1}
        v_and_b32 v{U+3}, s{sHIM}, v{b+1}
        """)
        if first:
            g(f"""
            v_mul_f32 v{Z+4}, v{b+2}, v{w}
            v_pk_mul_f32 v[{Z}:{Z+1}], v[{U}:{U+1}], {wp} op_sel:[0,{sel}] op_sel_hi:[1,{sel}]
            v_pk_mul_f32 v[{Z+2}:{Z+3}], v[{U+2}:{U+3}], {wp} op_sel:[0,{sel}] op_sel_hi:[1,{sel}]
            """)
        else:
            g(f"""
            v_fmac_f32 v{Z+4}, v{b+2}, v{w}
            v_pk_fma_f32 v[{Z}:{Z+1}], v[{U}:{U+1}], {wp}, v[{Z}:{Z+1}] op_sel:[0,{sel},0] op_sel_hi:[1,{sel},1]
            v_pk_fma_f32 v[{Z+2}:{Z+3}], v[{U+2}:{U+3}], {wp}, v[{Z+2}:{Z+3}] op_sel:[0,{sel},0] op_sel_hi:[1,{sel},1]
            """)
    g(f"""
    v_cvt_pk_bf16_f32 v{G0}, v{Z}, v{Z+1}
    v_cvt_pk_bf16_f32 v{G0+1}, v{Z+2}, v{Z+3}
    buffer_store_dwordx4 {vr(G0)}, {v(vWS)}, s[24:27], s{sOWN} offen
L_pub:
    v_mov_b32 v{vR}, v{G0+3}
    v_subrev_u32 v{vHI}, s{sT0}, v{G0+3}
    s_mov_b32 s{sHIM}, 0xffff0000
L_poll:
    s_mov_b64 exec, s[{sMK}:{sMK+1}]
    buffer_load_dwordx4 {vr(E)}, v{vPA}, s[4:7], s{sPO} offen sc1
    s_mov_b64 exec, s[{sMK+2}:{sMK+3}]
    s_cbranch_execz L_pe
    buffer_load_dwordx4 {vr(E+4)}, v{vPA}, s[4:7], s{sPO+1} offen sc1
    s_mov_b64 exec, s[{sMK+4}:{sMK+5}]
    s_cbranch_execnz L_pmore
L_pe:
    s_mov_b64 exec, -1
    s_sub_i32 s{sLOC}, s{sLOC}, 1
    s_cbranch_scc1 L_late
    v_add_u32 {v(vT2)}, s{sOO}, {v(vOUT)}
    s_waitcnt vmcnt(0) lgkmcnt(0)
    v_subrev_u32 {v(vT0)}, s{sTAG}, v{n0}
    v_subrev_u32 {v(vT1)}, s{sTAG}, v{n1}
    v_max_u32 {v(vT0)}, {v(vT0)}, {v(vT1)}
    v_cmp_lt_u32 vcc, s{sTAGH}, {v(vT0)}
    s_cbranch_vccnz L_poll
    v_cmp_lt_u32 vcc, v{vHI}, {v(vT0)}
    s_cbranch_vccnz L_slow
L_got:
    """)
    if a.stamps and not a.kst: g(f"s_memrealtime s[{sST+16}:{sST+17}]")
    g(f"""
    v_sub_u32 v{W}, v{n0}, v{vR}
    v_sub_u32 v{W+1}, v{n1}, v{vR}
    v_ldexp_f32 v{W}, 1.0, v{W}
    v_ldexp_f32 v{W+1}, 1.0, v{W+1}
    """)
    acc_entry(0, True)
    acc_entry(1, False)
    g(f"""
L_sum:
    v_mov_b32 v{Z+5}, v{Z+4}
    v_permlane32_swap_b32 v{Z}, v{Z+1}
    s_nop 0
    v_permlane32_swap_b32 v{Z+2}, v{Z+3}
    v_permlane32_swap_b32 v{Z+4}, v{Z+5}
    v_add_f32 v{Z}, v{Z}, v{Z+1}
    v_add_f32 v{Z+4}, v{Z+4}, v{Z+5}
    v_add_f32 v{Z+2}, v{Z+2}, v{Z+3}
    v_mov_b32 v{Z+5}, v{Z+4}
    s_nop 0
    v_permlane16_swap_b32 v{Z}, v{Z+2}
    v_permlane16_swap_b32 v{Z+4}, v{Z+5}
    v_add_f32 v{Z}, v{Z}, v{Z+2}
    v_add_f32 v{Z+4}, v{Z+4}, v{Z+5}
    s_nop 0
    v_add_f32_dpp v{Z}, v{Z}, v{Z} row_ror:4 row_mask:0xf bank_mask:0xf
    v_add_f32_dpp v{Z+4}, v{Z+4}, v{Z+4} row_ror:4 row_mask:0xf bank_mask:0xf
    s_nop 0
    v_add_f32_dpp v{Z}, v{Z}, v{Z} row_ror:8 row_mask:0xf bank_mask:0xf
    v_add_f32_dpp v{Z+4}, v{Z+4}, v{Z+4} row_ror:8 row_mask:0xf bank_mask:0xf
    v_rcp_f32 v{Z+4}, v{Z+4}
    s_mov_b32 exec_lo, 0x000f000f
    s_mov_b32 exec_hi, 0x000f000f
    v_mul_f32 v{Z}, v{Z}, v{Z+4}
    v_cvt_pk_bf16_f32 v{Z}, v{Z}, v{Z}
    global_store_short {v(vT2)}, v{Z}, s[20:21]
    s_cmp_lg_u32 s{sPO}, s{sREG}
    s_cbranch_scc1 L_noep
    s_mov_b64 exec, 1
    v_mov_b32 {v(vT0)}, s{sEPO}
    v_mov_b32 {v(vT1)}, s{sEP}
    global_store_dword {v(vT0)}, {v(vT1)}, s[24:25]
L_noep:
    s_add_u32 s{sCB}, s{sCB}, s{sNB}
    s_cmp_lt_u32 s{sCB}, 8
    s_cbranch_scc1 L_task
L_exit:
    {"s_branch L_fin" if a.stamps else "s_endpgm"}
L_task:
    s_mov_b64 exec, -1
    s_lshl_b32 s{sPO}, s{sCB}, 6
    s_add_u32 s{sPO}, s{sPO}, s{sPB}
    s_add_u32 s{sPO}, s{sPO}, s{sREG}
    s_add_u32 s{sPO+1}, s{sPO}, 0x10000
    s_add_u32 s{sPO+2}, s{sPO}, 0x20000
    s_add_u32 s{sPO+3}, s{sPO}, 0x30000
    s_and_b32 s{sOO}, s{sCB}, 3
    s_lshl_b32 s{sOO}, s{sOO}, 6
    s_and_b32 s{sT1}, s{sCB}, 4
    s_lshl_b32 s{sT1}, s{sT1}, 1
    s_add_u32 s{sOO}, s{sOO}, s{sT1}
    s_cmp_eq_u32 s{sFIRST}, 0
    s_mov_b32 s{sFIRST}, 1
    s_cbranch_scc1 L_taskback
    s_branch L_poll
L_pmore:
    buffer_load_dwordx4 {vr(E+8)}, v{vPA}, s[4:7], s{sPO+2} offen sc1
    s_mov_b64 exec, s[{sMK+6}:{sMK+7}]
    s_cbranch_execz L_p3
    buffer_load_dwordx4 {vr(E+12)}, v{vPA}, s[4:7], s{sPO+3} offen sc1
L_p3:
    s_mov_b64 exec, -1
    s_sub_i32 s{sLOC}, s{sLOC}, 1
    s_cbranch_scc0 L_chk4
L_late:
    s_mov_b32 s{sLOC}, 0x80000000
    s_or_b32 s{sSENT}, s{sSENT}, 1
L_chk4:
    v_add_u32 {v(vT2)}, s{sOO}, {v(vOUT)}
    s_waitcnt vmcnt(0) lgkmcnt(0)
    v_subrev_u32 {v(vT0)}, s{sTAG}, v{n0}
    v_subrev_u32 {v(vT1)}, s{sTAG}, v{n1}
    v_subrev_u32 {v(vT3)}, s{sTAG}, v{n2}
    v_max3_u32 {v(vT0)}, {v(vT0)}, {v(vT1)}, {v(vT3)}
    v_subrev_u32 {v(vT1)}, s{sTAG}, v{n3}
    v_max_u32 {v(vT0)}, {v(vT0)}, {v(vT1)}
    v_cmp_lt_u32 vcc, s{sTAGH}, {v(vT0)}
    s_cbranch_vccz L_slow
    s_sub_u32 s{sSPIN}, s{sSPIN}, 1
    s_cbranch_scc1 L_slow
    s_cmp_eq_u32 s{sSENT}, 0
    s_cbranch_scc1 L_poll
    s_cmp_eq_u32 s{sSENT}, 3
    s_cbranch_scc1 L_tog
    s_mov_b32 s{sSENT}, 3
    s_cmp_ge_u32 s{sI}, 4
    s_cbranch_scc1 L_tog
    v_xor_b32 v{G0+3}, s{sXC}, v{G0+3}
    s_add_u32 s{sOWN}, s{sOWN}, 0x100000
    buffer_store_dwordx4 {vr(G0)}, {v(vWS)}, s[24:27], s{sOWN} offen sc1
L_tog:
    s_xor_b32 s{sREG}, s{sREG}, 0x100000
    s_xor_b32 s{sPO}, s{sPO}, 0x100000
    s_xor_b32 s{sPO+1}, s{sPO+1}, 0x100000
    s_xor_b32 s{sPO+2}, s{sPO+2}, 0x100000
    s_xor_b32 s{sPO+3}, s{sPO+3}, 0x100000
    s_xor_b32 s{sTAG}, s{sTAG}, s{sXC}
    v_mov_b32 v{n0}, s{sTAG}
    v_mov_b32 v{n1}, s{sTAG}
    v_mov_b32 v{n2}, s{sTAG}
    v_mov_b32 v{n3}, s{sTAG}
    s_branch L_poll
L_slow:
    s_nop 0
    v_max_u32_dpp {v(vT0)}, {v(vT0)}, {v(vT0)} row_ror:4 row_mask:0xf bank_mask:0xf
    s_nop 1
    v_max_u32_dpp {v(vT0)}, {v(vT0)}, {v(vT0)} row_ror:8 row_mask:0xf bank_mask:0xf
    v_mov_b32 {v(vT1)}, {v(vT0)}
    s_nop 1
    v_permlane16_swap_b32 {v(vT0)}, {v(vT1)}
    v_max_u32 {v(vT0)}, {v(vT0)}, {v(vT1)}
    v_mov_b32 {v(vT1)}, {v(vT0)}
    s_nop 1
    v_permlane32_swap_b32 {v(vT0)}, {v(vT1)}
    v_max_u32 v{vR}, {v(vT0)}, {v(vT1)}
    v_add_u32 v{vR}, s{sTAG}, v{vR}
    s_cmp_eq_u64 s[{sMK+4}:{sMK+5}], 0
    s_cbranch_scc1 L_got
    """)
    for k in range(4): g(f"v_sub_u32 v{W+k}, v{E+4*k+3}, v{vR}")
    for k in range(4): g(f"v_ldexp_f32 v{W+k}, 1.0, v{W+k}")
    for k in range(4): acc_entry(k, k == 0)
    g("s_branch L_sum")
    cl, nb, pf, cn, cb, x0, x1 = vT0, vT1, vT3, vSO, vPA, vM, vMC
    fq, n_, k_ = vAL, vNEG, vOUT
    g(f"""
L_general:
    s_mov_b64 s[12:13], s[{sKA+4}:{sKA+5}]
    s_mov_b32 s14, s10
    s_mov_b32 s15, 0x20000
    v_mov_b32 v{VD}, 0
    v_mov_b32 v{VD+1}, 0
    v_mov_b32 v{VD+2}, 0
    v_mov_b32 v{VD+3}, 0
    s_lshl_b32 s{sT0}, s{sI}, 10
    s_and_b32 s{sT0}, s{sT0}, 0xfff
    s_add_u32 s{sT0}, s{sT0}, {TBL}
    s_mov_b32 m0, s{sT0}
    v_mov_b32 {v(vT1)}, {v(vWS)}
    v_add_u32 {v(vT5)}, 1, {v(vL)}
    s_mov_b32 s{sT1}, 0x42700000
    s_waitcnt vmcnt(0)
    global_load_lds_dwordx4 {v(vT1)}, s[{sKA+6}:{sKA+7}]
    v_mov_b32 {v(cl)}, s{sM+PERM[0]}
    v_writelane_b32 {v(cl)}, s{sM+PERM[1]}, 1
    v_writelane_b32 {v(cl)}, s{sM+PERM[2]}, 2
    v_writelane_b32 {v(cl)}, s{sM+PERM[3]}, 3
    v_add_u32 {v(nb)}, -1, {v(cl)}
    v_ashrrev_i32 {v(nb)}, 4, {v(nb)}
    v_min_u32 {v(nb)}, 0xff, {v(nb)}
    v_add_u32 {v(nb)}, 1, {v(nb)}
    s_nop 1
    v_add_u32_dpp {v(pf)}, {v(nb)}, {v(nb)} row_shr:1 row_mask:0xf bank_mask:0xf bound_ctrl:0
    v_lshlrev_b32 {v(nb)}, 1, {v(nb)}
    v_cvt_f32_u32 {v(fq)}, {v(nb)}
    v_add_u32_dpp {v(pf)}, {v(pf)}, {v(pf)} row_shr:2 row_mask:0xf bank_mask:0xf bound_ctrl:0
    s_nop 1
    v_cvt_f32_u32_dpp {v(cn)}, {v(pf)} quad_perm:[3,3,3,3] row_mask:0xf bank_mask:0xf
    v_cvt_f32_u32 {v(pf)}, {v(pf)}
    v_rcp_f32 {v(cn)}, {v(cn)}
    v_mul_f32 {v(pf)}, s{sT1}, {v(pf)}
    v_fma_f32 {v(cn)}, {v(pf)}, {v(cn)}, 0.5
    v_cvt_u32_f32 {v(cn)}, {v(cn)}
    v_add_u32 {v(cn)}, {v(cn)}, {v(vT5)}
    v_cmp_ge_u32 vcc, s{sJ}, {v(cn)}
    s_nop 0
    v_mov_b32_dpp {v(cb)}, {v(cn)} row_shr:1 row_mask:0xf bank_mask:0xf bound_ctrl:0
    s_and_b32 s{sB}, vcc_lo, 7
    v_sub_u32 {v(n_)}, {v(cn)}, {v(cb)}
    v_sub_u32 {v(k_)}, s{sJ}, {v(cb)}
    v_cvt_f32_u32 {v(x0)}, {v(n_)}
    v_rcp_f32 {v(x0)}, {v(x0)}
    v_add_u32 {v(pf)}, 1, {v(k_)}
    v_mul_f32 {v(fq)}, {v(fq)}, {v(x0)}
    v_cvt_f32_u32 {v(x0)}, {v(k_)}
    v_cvt_f32_u32 {v(x1)}, {v(pf)}
    v_cmp_eq_u32 vcc, {v(pf)}, {v(n_)}
    v_mul_f32 {v(x0)}, {v(x0)}, {v(fq)}
    v_mul_f32 {v(x1)}, {v(x1)}, {v(fq)}
    v_cvt_u32_f32 {v(x0)}, {v(x0)}
    v_cvt_u32_f32 {v(x1)}, {v(x1)}
    s_bcnt1_i32_b32 s{sB}, s{sB}
    v_cndmask_b32 {v(x1)}, {v(x1)}, {v(nb)}, vcc
    v_readlane_b32 s{sX0}, {v(x0)}, s{sB}
    v_readlane_b32 s{sREM}, {v(cl)}, s{sB}
    v_readlane_b32 s{sX1}, {v(x1)}, s{sB}
    v_readlane_b32 s{sCB}, {v(cb)}, s{sB}
    v_readlane_b32 s{sNB}, {v(n_)}, s{sB}
    s_lshl_b32 s{sB}, s{sB}, 3
    s_lshr_b32 s{sB}, 0x{pack(PERM):x}, s{sB}
    s_and_b32 s{sB}, s{sB}, 3
    """)
    g(wave_range)
    g(f"""
    s_add_u32 s{sT0}, s{sT0}, {TBL}
    v_lshl_add_u32 {v(vT0)}, {v(vL)}, 4, s{sT0}
    s_waitcnt vmcnt(0)
    s_barrier
    ds_read_b32 {v(vSO)}, {v(vT0)}
    s_cmp_gt_i32 s{sREM}, 0
    s_cselect_b32 s{sX1}, 0xce800000, 0
    """)
    g(wave_range2)
    g(f"""
    s_mov_b32 m0, s{sKM}
    s_mov_b32 s{sFIRST}, 1
    s_waitcnt lgkmcnt(0)
    s_cmp_lt_i32 s{sNU}, 1
    s_cbranch_scc1 L_issued
    s_branch L_have
    """)
    g("L_fin:")
    if a.amp:
        stamp()
        ia, ib = a.amp // 10, a.amp % 10
        g("s_waitcnt lgkmcnt(0)")
        if a.ampwg >= 0:
            g(f"""
            s_cmp_lg_u32 s2, {a.ampwg}
            s_cbranch_scc1 L_end
            s_cmp_lg_u32 s{sI}, 0
            s_cbranch_scc1 L_end
            """)
        g(f"""
        s_sub_u32 s6, s{sST+2*ib}, s{sST+2*ia}
        s_mul_i32 s6, s6, 10
        s_min_u32 s6, s6, 50000
        s_add_u32 s6, s6, s{sST+14}
L_spin:
        s_sleep 4
        s_memrealtime s[2:3]
        s_waitcnt lgkmcnt(0)
        s_sub_u32 s7, s2, s6
        s_cmp_lt_i32 s7, 0
        s_cbranch_scc1 L_spin
        """)
    elif a.stamps:
        stamp()
        g(f"""
        s_waitcnt lgkmcnt(0)
        s_lshl_b32 s6, s2, 4
        s_add_u32 s6, s6, s{sI}
        s_lshl_b32 s6, s6, 7
        s_add_u32 s6, s6, 0x1000000
        v_mov_b32 v14, s6
        s_getreg_b32 s6, hwreg(HW_REG_XCC_ID)
        s_mov_b64 exec, 1
        """)
        for k in range(9):
            g(f"v_mov_b32 v15, s{sST+2*k}")
            g(f"global_store_dword v14, v15, s[24:25] offset:{4*k}")
        g(f"""
        v_mov_b32 v15, s6
        global_store_dword v14, v15, s[24:25] offset:120
        s_sub_u32 s6, 0x{0x80000000 + a.thr:x}, s{sLOC}
        s_cmp_lg_u32 s{sSENT}, 0
        s_cselect_b32 s7, 1000, 0
        s_add_u32 s6, s6, s7
        v_mov_b32 v15, s6
        global_store_dword v14, v15, s[24:25] offset:124
        """)
    g("L_end:")
    g("s_endpgm")
    acc = (NV + 3) // 4 * 4
    out = HDR + f"; @launch grid=(256,1,1) block=({576 if a.pf else 512},1,1) lds={LDS}\n"
    out += DOC
    out += f""".amdgcn_target "amdgcn-amd-amdhsa--gfx950"
.text
.globl {NAME}_kernel
.p2align 8
.type {NAME}_kernel,@function
{NAME}_kernel:
""" + "".join(l + "\n" for l in g.text().split("\n") if l.strip()) + f""".section .rodata,"a"
.p2align 6
.amdhsa_kernel {NAME}_kernel
  .amdhsa_next_free_vgpr {NV}
  .amdhsa_next_free_sgpr 102
  .amdhsa_accum_offset {acc}
  .amdhsa_group_segment_fixed_size 0
  .amdhsa_kernarg_size 64
  .amdhsa_user_sgpr_count 2
  .amdhsa_user_sgpr_kernarg_segment_ptr 1
  .amdhsa_system_sgpr_workgroup_id_x 1
.end_amdhsa_kernel
"""
    return out

if __name__ == "__main__":
    p = argparse.ArgumentParser()
    for k, d in dict(stamps=0, pf=0, thr=24, kst=0, w9=0, amp=0, ampwg=0, forcegen=0, accord=1, wp=0, qdma=1, hx=0, prio=1, sel=0, slp=0, wpos=0).items():
        p.add_argument("--" + k, type=int, default=d)
    p.add_argument("-o", default="-")
    a = p.parse_args()
    if a.amp: a.stamps = 1
    t = gen(a)
    for lab, c in [("L_have:", "first two units: K0, Q, V0, K1, V1"), ("L_issued:", "setup that is not needed before the first tile lands"),
                   ("L_loop:", "one unit per trip; vmcnt counts the younger tiles still in flight"), ("L_nomask:", "online softmax"),
                   ("L_vready:", "PV"), ("L_done:", "merge the four waves of each kv head through LDS"),
                   ("L_poll:", "poll the granules of this wave's output slice"),
                   ("L_sum:", "reduce over the siblings held in other lanes, normalise, store"),
                   ("L_task:", "offsets of an output slice"), ("L_general:", "context lengths other than the built-in ones")]:
        t = t.replace("\n" + lab + "\n", "\n" + lab + "    ; " + c + "\n")
    if a.o == "-": sys.stdout.write(t)
    else: open(a.o, "w").write(t)
```

```python
import sys, argparse, math, struct
from gen import NAME, HDR, f32bits, G

EXP_CL = [3663, 3230, 2797, 2364]
PERM = [0, 3, 1, 2]


DOC = """; ---------------------------------------------------------------------------------------------------------
;    {4 x bf16 partial, f32 sum, tag | exponent} in d_ws.  The tag derives from a per-group word that every launch
; ---------------------------------------------------------------------------------------------------------
"""

def plan():
    nblk = [(EXP_CL[b] + 15) // 16 for b in PERM]
    T = sum(nblk); P = 0; c = [0]
    for x in range(4):
        P += nblk[x]
        c.append(x + 1 + int(60 * P / T + 0.5))
    n = [c[x + 1] - c[x] for x in range(4)]
    q = [2 * nblk[x] // n[x] for x in range(4)]
    r = [2 * nblk[x] - q[x] * n[x] for x in range(4)]
    pad = [16 * nblk[x] - EXP_CL[PERM[x]] for x in range(4)]
    return nblk, c, n, q, r, pad

def pack(vals):
    assert all(0 <= v < 256 for v in vals)
    return sum(v << (8 * i) for i, v in enumerate(vals))

def gen(a):
    g = G()
    KVSIZE = 1028 * 32768
    C = (128 ** -0.5) * math.log2(math.e)
    TBL = 131072
    QL = TBL + 5376
    LDS = QL + 8192 if a.qdma else QL
    EPOFF = 0x300000
    kvnt = " nt"
    sOO2, sDUAL = 22, 23
    sI, sJ, sHP, sH256 = 28, 29, 30, 31
    sB, sCB, sNB, sREM, sNU, sNXT, sKM, sVM, sSO, sC, sT0, sT1, sOWN, sSTEP, sPB, sSPIN, sX0, sX1, sQO, sTAG = range(32, 52)
    sM = 52
    sMK, sPO, sOO, sFIRST, sXC, sLOC, sREG = 60, 68, 72, 73, 74, 75, 76
    sSENT = 77
    sHIM = 22
    sQL = 17
    sMK1 = 78
    sKA = 56
    sEP, sTAGN, sTAGH, sEPO = 80, 81, 82, 83
    sST = 84
    nst = [0]
    def stamp():
        if a.stamps:
            k = nst[0]; nst[0] += 1
            assert sST + 2 * k + 1 <= 101
            g(f"s_memrealtime s[{sST+2*k}:{sST+2*k+1}]")
    vL, vT0, vT1, vT2, vT3, vG, vT5, vSO, vWS, vOUT, vQO, vM, vMC, vAL, vNEG, vT4q, vSW, vSR, vPA = range(1, 20)
    ACC, LA, ML, vSW2, vSR2, KF = 20, 28, 32, 34, 35, 36
    KD, VD, KR, VR, Q, PA, PK, ONE, S, VF = 52, 56, 60, 64, 72, 88, 96, 98, 100, 104
    E = 120
    G0, JK, S1 = 136, 140, 144
    vR, vHI, vSM, vSM2 = 148, 149, 150, 151
    NV = 152
    def v(i): return f"v{i}"
    def vr(b, n=4): return f"v[{b}:{b+n-1}]"
    nblk, cc, nn, qq, rr, pad = plan()

    stamp()
    g(f"""
    s_load_dwordx16 s[{sKA}:{sKA+15}], s[0:1], 0
    v_readfirstlane_b32 s3, v0
    s_cmp_ge_u32 s2, 256
    s_cbranch_scc1 L_end
    """)
    if a.pf:
        g("""
        s_cmpk_eq_u32 s3, 512
        s_cbranch_scc1 L_pad0
        """)
    if a.qdma:
        qo1 = qo2 = ""
        qo3 = f"v_lshl_add_u32 {v(vQO)}, {v(vL)}, 4, s{sT0}"
    else:
        qo1 = f"v_lshlrev_b32 {v(vQO)}, 4, {v(vT4q)}"
        qo2 = f"v_lshl_add_u32 {v(vQO)}, {v(vG)}, 8, {v(vQO)}"
        qo3 = f"v_add_u32 {v(vQO)}, s{sT0}, {v(vQO)}"
    WL = f"buffer_load_dwordx4 {vr(JK)}, {v(vWS)}, s[24:27], s{sOWN} offen sc1"
    wave_range = f"""
    s_xor_b32 s{sT0}, s{sX0}, s{sI}
    s_and_b32 s{sT0}, s{sT0}, 1
    s_add_u32 s{sX0}, s{sX0}, s{sT0}
    s_andn2_b32 s{sT0}, s{sI}, 1
    s_add_u32 s{sX0}, s{sX0}, s{sT0}
    s_sub_i32 s{sNU}, s{sX1}, s{sX0}
    s_lshr_b32 s{sX0}, s{sX0}, 1
    s_lshl_b32 s{sT0}, s{sB}, 8
    s_add_u32 s{sT0}, s{sT0}, s{sX0}
    s_lshl_b32 s{sT0}, s{sT0}, 2
    """
    wave_range2 = f"""
    s_add_i32 s{sNU}, s{sNU}, 7
    s_ashr_i32 s{sNU}, s{sNU}, 3
    s_lshl_b32 s{sX0}, s{sX0}, 4
    s_sub_i32 s{sREM}, s{sREM}, s{sX0}
    s_lshl_b32 s{sQO}, s{sB}, 13
    s_lshl_b32 s{sT0}, s{sH256}, 2
    s_add_u32 s{sT0}, s{sT0}, s{sQO}
    {qo1}
    {qo2}
    {qo3}
    """
    MA = []
    for x in range(4):
        U = 2 * nblk[x]
        M = -(-U * 65536 // nn[x])
        A = (PERM[x] * 512 * 65536 - cc[x] * M) & 0xffffffff
        for k in range(nn[x] + 1):
            assert (((cc[x] + k) * M + A) & 0xffffffff) >> 16 == PERM[x] * 512 + k * U // nn[x]
        MA.append((M, A))
    g(f"""
    s_lshl_b32 s{sJ}, s2, 3
    v_and_b32 {v(vL)}, 63, v0
    s_and_b32 s{sJ}, s{sJ}, 32
    s_lshr_b32 s{sT0}, s2, 3
    s_add_u32 s{sJ}, s{sJ}, s{sT0}
    s_lshr_b32 s{sI}, s3, 6
    s_mov_b32 s{sT1}, {MA[0][0]}
    s_mov_b32 s{sX0}, 0x{MA[0][1]:x}
    s_cmp_ge_u32 s{sJ}, {cc[1]}
    s_cselect_b32 s{sT1}, {MA[1][0]}, s{sT1}
    s_cselect_b32 s{sX0}, 0x{MA[1][1]:x}, s{sX0}
    s_cmp_ge_u32 s{sJ}, {cc[2]}
    s_cselect_b32 s{sT1}, {MA[2][0]}, s{sT1}
    s_cselect_b32 s{sX0}, 0x{MA[2][1]:x}, s{sX0}
    s_cmp_ge_u32 s{sJ}, {cc[3]}
    s_cselect_b32 s{sT1}, {MA[3][0]}, s{sT1}
    s_cselect_b32 s{sX0}, 0x{MA[3][1]:x}, s{sX0}
    s_mul_i32 s{sT0}, s{sJ}, s{sT1}
    s_add_u32 s{sX0}, s{sX0}, s{sT0}
    s_add_u32 s{sX1}, s{sX0}, s{sT1}
    s_lshr_b32 s{sX0}, s{sX0}, 16
    s_sub_u32 s{sT0}, s{sX0}, s{sI}
    s_and_b32 s{sT0}, s{sT0}, 1
    s_add_u32 s{sX0}, s{sX0}, s{sT0}
    s_andn2_b32 s{sT0}, s{sI}, 1
    s_add_u32 s{sX0}, s{sX0}, s{sT0}
    s_andn2_b32 s{sT0}, s{sX0}, 1
    s_lshl_b32 s{sT0}, s{sT0}, 1
    v_lshl_add_u32 {v(vT0)}, {v(vL)}, 4, s{sT0}
    s_mov_b64 exec, 0xff
    s_waitcnt lgkmcnt(0)
    """)
    stamp()
    g(f"""
    global_load_dword {v(vSO)}, {v(vT0)}, s[{sKA+6}:{sKA+7}]
    s_load_dwordx4 s[{sM}:{sM+3}], s[{sKA+8}:{sKA+9}], 0
    s_mov_b64 exec, -1
    s_and_b32 s{sHP}, s2, 3
    {"s_lshr_b32 s%d, s%d, 10" % (sT0, sX0) if a.hx else ""}
    {"s_xor_b32 s%d, s%d, s%d" % (sHP, sHP, sT0) if a.hx else ""}
    v_lshlrev_b32 {v(vWS)}, 4, v0
    s_lshl_b32 s{sOWN}, s{sHP}, 6
    v_and_b32 {v(vWS)}, 0xfff, {v(vWS)}
    s_add_u32 s{sOWN}, s{sOWN}, s{sJ}
    s_lshl_b32 s{sOWN}, s{sOWN}, 12
    s_mov_b64 s[24:25], s[{sKA+14}:{sKA+15}]
    s_mov_b32 s26, 0x200000
    s_mov_b32 s27, 0x20000
    {WL if a.wp == 0 else ""}
    v_lshrrev_b32 {v(vT4q)}, 4, {v(vL)}
    s_and_b32 s{sT0}, s{sI}, 1
    v_and_b32 {v(vT2)}, 15, v0
    s_lshl_b32 s{sH256}, s{sHP}, 1
    v_xor_b32 {v(vT3)}, {v(vT2)}, {v(vT4q)}
    s_add_u32 s{sH256}, s{sH256}, s{sT0}
    v_lshlrev_b32 {v(vT3)}, 4, {v(vT3)}
    s_lshl_b32 s{sH256}, s{sH256}, 8
    v_lshl_add_u32 v{KD}, {v(vT4q)}, 11, {v(vT3)}
    s_lshl_b32 s{sKM}, s{sI}, 14
    v_add_u32 v{KD}, s{sH256}, v{KD}
    s_mov_b64 s[8:9], s[{sKA+2}:{sKA+3}]
    v_lshl_add_u32 v{KR}, {v(vT2)}, 8, {v(vT3)}
    s_mov_b32 s10, 0x{KVSIZE:x}
    v_xor_b32 v{KD+1}, 64, v{KD}
    s_mov_b32 s11, 0x20000
    v_xor_b32 v{KD+2}, 0x80, v{KD}
    s_mov_b32 m0, s{sKM}
    v_xor_b32 v{KD+3}, 0xc0, v{KD}
    v_add_u32 v{KD+1}, 7168, v{KD+1}
    v_add_u32 v{KD+2}, {2*7168}, v{KD+2}
    v_add_u32 v{KD+3}, {3*7168}, v{KD+3}
    """)
    g(f"""
    s_lshr_b32 s{sB}, s{sX0}, 9
    v_and_b32 {v(vG)}, 3, v0
    s_lshl_b32 s{sQO}, s{sB}, 13
    {qo1}
    s_lshl_b32 s{sT0}, s{sH256}, 2
    {qo2}
    s_add_u32 s{sT0}, s{sT0}, s{sQO}
    s_lshr_b32 s{sX1}, s{sX1}, 16
    {qo3}
    s_sub_i32 s{sNU}, s{sX1}, s{sX0}
    s_add_i32 s{sNU}, s{sNU}, 7
    s_ashr_i32 s{sNU}, s{sNU}, 3
    s_mov_b32 s{sFIRST}, 0
    {WL if a.wp == 1 else ""}
    {"s_setprio 3" if a.prio else ""}
    s_waitcnt vmcnt(1)
L_have:
    v_readlane_b32 s{sSO}, {v(vSO)}, 0
    v_readlane_b32 s{sT1}, {v(vSO)}, 1
    s_lshl_b32 s{sSO}, s{sSO}, 15
    """)
    stamp()
    stamp()
    def dma(srd, offs, so):
        for e in range(4):
            io = f" offset:{e*1024}" if e else ""
            g(f"buffer_load_dwordx4 v{offs+e}, s[{srd}:{srd+3}], s{so} offen{io}{kvnt} lds")
    dma(8, KD, sSO)
    if a.pf:
        g(f"""
        s_branch L_c2
L_pad0:
        s_branch L_pad1
L_c2:
        """)
    g(f"""
    s_add_u32 s{sVM}, s{sKM}, 0x2000
    s_cmp_lg_u32 s{sFIRST}, 0
    s_cbranch_scc1 L_c3
    s_waitcnt lgkmcnt(0)
    s_xor_b32 s{sT0}, s{sM}, {EXP_CL[0] + a.forcegen}
    s_xor_b32 s{sOO}, s{sM+1}, {EXP_CL[1]}
    s_or_b32 s{sT0}, s{sT0}, s{sOO}
    s_xor_b32 s{sOO}, s{sM+2}, {EXP_CL[2]}
    s_or_b32 s{sT0}, s{sT0}, s{sOO}
    s_xor_b32 s{sOO}, s{sM+3}, {EXP_CL[3]}
    s_or_b32 s{sT0}, s{sT0}, s{sOO}
    s_cbranch_scc1 L_general
L_c3:
    {"s_lshl_b32 s%d, s%d, 10" % (sT0, sI) if a.qdma else ""}
    {"s_add_u32 s%d, s%d, %d" % (sQL, sT0, QL) if a.qdma else ""}
    {"s_mov_b32 m0, s%d" % sQL if a.qdma else ""}
    v_lshlrev_b32 {v(vT3)}, 1, {v(vT4q)}
    v_xor_b32 {v(vT3)}, {v(vT2)}, {v(vT3)}
    s_mov_b64 s[12:13], s[{sKA+4}:{sKA+5}]
    v_lshlrev_b32 {v(vT3)}, 4, {v(vT3)}
    s_mov_b32 s14, s10
    v_lshl_add_u32 v{VD}, {v(vT4q)}, 11, {v(vT3)}
    s_mov_b32 s15, 0x20000
    v_add_u32 v{VD}, s{sH256}, v{VD}
    v_xor_b32 v{VD+1}, 0x80, v{VD}
    v_add_u32 v{VD+2}, {2*7168}, v{VD}
    v_add_u32 v{VD+3}, {3*7168}, v{VD+1}
    v_add_u32 v{VD+1}, 7168, v{VD+1}
    """)
    if a.qdma:
        g(f"global_load_lds_dwordx4 {v(vQO)}, s[{sKA}:{sKA+1}]")
    else:
        for jj in range(4):
            g(f"global_load_dwordx4 {vr(Q+4*jj)}, {v(vQO)}, s[{sKA}:{sKA+1}]" + (f" offset:{64*jj}" if jj else ""))
    if a.wpos == 1: g(f"buffer_load_dwordx4 {vr(JK)}, {v(vWS)}, s[24:27], s{sOWN} offen sc1")
    g(f"s_mov_b32 m0, s{sVM}")
    g(f"s_nop 0")
    dma(12, VD, sSO)
    if a.prio == 2: g("s_setprio 2")
    if a.prio == 3: g("s_setprio 0")
    g(f"""
    s_cmp_lt_i32 s{sNU}, 2
    s_cbranch_scc1 L_issued
    s_add_u32 s{sT0}, s{sKM}, 0x1000
    s_mov_b32 m0, s{sT0}
    s_lshl_b32 s{sT1}, s{sT1}, 15
    s_add_u32 s{sT0}, s{sVM}, 0x1000
    """)
    dma(8, KD, sT1)
    g(f"s_mov_b32 m0, s{sT0}")
    g(f"s_nop 0")
    dma(12, VD, sT1)
    g("L_issued:")
    g("s_setprio 1" if a.prio == 3 else "s_setprio 0")
    stamp()
    g(f"""
    s_cmp_lg_u32 s{sFIRST}, 0
    s_cbranch_scc1 L_checked
    s_lshl_b32 s{sT1}, s{sB}, 3
    s_or_b32 s{sT1}, s{sT1}, 0x80000
    s_bfe_u32 s{sCB}, 0x{pack([cc[PERM.index(b)] for b in range(4)]):x}, s{sT1}
    s_bfe_u32 s{sNB}, 0x{pack([nn[PERM.index(b)] for b in range(4)]):x}, s{sT1}
    s_bfe_u32 s{sREM}, 0x{pack([nblk[PERM.index(b)] for b in range(4)]):x}, s{sT1}
    s_bfe_u32 s{sT1}, 0x{pack([pad[PERM.index(b)] for b in range(4)]):x}, s{sT1}
    s_lshl_b32 s{sREM}, s{sREM}, 4
    s_sub_u32 s{sREM}, s{sREM}, s{sT1}
    s_bfe_u32 s{sX0}, s{sX0}, 0x80001
    s_lshl_b32 s{sX0}, s{sX0}, 4
    s_sub_i32 s{sREM}, s{sREM}, s{sX0}
    s_mov_b32 s{sX1}, 0xce800000
L_checked:
    v_add_u32 v{KR}, s{sKM}, v{KR}
    s_mov_b64 s[20:21], s[{sKA+10}:{sKA+11}]
    """)
    g(f"""
    s_lshl_b32 s{sEPO}, s{sHP}, 2
    s_add_u32 s{sEPO}, s{sEPO}, s{sB}
    s_lshl_b32 s{sEPO}, s{sEPO}, 7
    s_add_u32 s{sEPO}, s{sEPO}, {EPOFF + 12}
    s_load_dword s{sEP}, s[24:25], s{sEPO}
    v_lshrrev_b32 {v(vT0)}, 2, {v(vT2)}
    v_lshl_add_u32 {v(vT0)}, {v(vT4q)}, 2, {v(vT0)}
    v_and_b32 {v(vT3)}, 7, {v(vT0)}
    v_lshlrev_b32 {v(vT3)}, 5, {v(vT3)}
    v_lshl_add_u32 {v(vT3)}, {v(vT0)}, 8, {v(vT3)}
    v_lshl_add_u32 {v(vT3)}, {v(vG)}, 3, {v(vT3)}
    v_add_u32 v{VR}, s{sVM}, {v(vT3)}
    """)
    for i in range(1, 8):
        g(f"v_xor_b32 v{VR+i}, {i<<5}, v{VR}")
    for e in range(1, 4):
        g(f"v_xor_b32 v{KR+e}, {e<<6}, v{KR}")
    g(f"""
    v_lshl_add_u32 v{vSW}, {v(vL)}, 4, s{sKM}
    v_lshl_add_u32 v{vSW2}, {v(vL)}, 3, s{sKM}
    s_and_b32 s{sT0}, s{sI}, 1
    s_lshl_b32 s{sT0}, s{sT0}, 14
    v_lshl_add_u32 v{vSM}, {v(vL)}, 3, s{sT0}
    v_add_u32 v{vSM2}, 0x10000, v{vSM}
    s_and_b32 s{sT1}, s{sI}, 2
    s_lshl_b32 s{sT1}, s{sT1}, 9
    s_add_u32 s{sT0}, s{sT0}, s{sT1}
    v_lshl_add_u32 v{vSR}, {v(vL)}, 4, s{sT0}
    v_add_u32 v{vSR2}, 0x10000, v{vSR}
    v_mov_b32 {v(vNEG)}, s{sX1}
    s_mov_b32 s{sC}, 0x{f32bits(C):08x}
    v_mov_b32 {v(vM)}, 0xce800000
    v_mul_f32 {v(vMC)}, s{sC}, {v(vM)}
    v_mov_b32 v{ONE}, 0x3f803f80
    v_mov_b32 v{ONE+1}, 0x3f803f80
    v_mov_b32 v{ML}, 0
    v_mov_b32 v{ML+1}, {v(vMC)}
    """)
    for i in range(8): g(f"v_mov_b32 v{ACC+i}, 0")
    for i in range(4): g(f"v_mov_b32 v{LA+i}, 0")
    for i in range(8): g(f"v_mov_b32 v{PA+i}, 0")
    g(f"""
    s_getreg_b32 s{sXC}, hwreg(HW_REG_XCC_ID, 0, 3)
    s_lshl_b32 s{sXC}, s{sXC}, 18
    s_lshl_b32 s{sT0}, s{sHP}, 6
    s_add_u32 s{sT0}, s{sT0}, s{sCB}
    s_lshl_b32 s{sT0}, s{sT0}, 12
    s_add_u32 s4, s24, s{sT0}
    s_addc_u32 s5, s25, 0
    s_mov_b32 s6, 0x200000
    s_mov_b32 s7, 0x20000
    s_sub_u32 s{sCB}, s{sJ}, s{sCB}
    s_add_u32 s{sT0}, s{sCB}, s{sNB}
    s_and_b32 s{sCB}, s{sCB}, 15
    s_cmp_ge_u32 s{sI}, 4
    s_cselect_b32 s{sCB}, s{sT0}, s{sCB}
    s_lshr_b32 s{sDUAL}, s{sCB}, 4
    s_lshl_b32 s{sSTEP}, s{sNB}, 1
    s_and_b32 s{sPB}, s{sI}, 3
    s_lshl_b32 s{sPB}, s{sPB}, 10
    s_mov_b32 s{sREG}, 0
    s_mov_b32 s{sNXT}, 2
    v_lshrrev_b32 {v(vT0)}, 2, {v(vL)}
    v_lshlrev_b32 v{vPA}, 4, {v(vG)}
    v_lshl_add_u32 v{vPA}, {v(vT0)}, 12, v{vPA}
    v_cmp_gt_u32_e64 s[{sMK}:{sMK+1}], s{sNB}, {v(vT0)}
    v_add_u32 {v(vT0)}, 16, {v(vT0)}
    v_cmp_gt_u32_e64 s[{sMK+2}:{sMK+3}], s{sNB}, {v(vT0)}
    v_add_u32 {v(vT0)}, 16, {v(vT0)}
    v_cmp_gt_u32_e64 s[{sMK+4}:{sMK+5}], s{sNB}, {v(vT0)}
    v_add_u32 {v(vT0)}, 16, {v(vT0)}
    v_cmp_gt_u32_e64 s[{sMK+6}:{sMK+7}], s{sNB}, {v(vT0)}
    v_and_b32 {v(vOUT)}, 2, {v(vT4q)}
    v_and_b32 {v(vT0)}, 1, {v(vT4q)}
    v_lshl_add_u32 {v(vOUT)}, {v(vT0)}, 2, {v(vOUT)}
    v_lshl_add_u32 {v(vOUT)}, {v(vG)}, 8, {v(vOUT)}
    s_lshl_b32 s{sT0}, s{sH256}, 2
    s_add_u32 s{sQO}, s{sQO}, s{sT0}
    s_and_b32 s{sT0}, s{sI}, 2
    s_lshl_b32 s{sT0}, s{sT0}, 4
    s_add_u32 s{sQO}, s{sQO}, s{sT0}
    v_add_u32 {v(vOUT)}, s{sQO}, {v(vOUT)}
    v_lshlrev_b32 {v(vT4q)}, 2, {v(vT4q)}
    s_waitcnt lgkmcnt(0)
    s_add_u32 s{sEP}, s{sEP}, 0x9e3c0000
    s_and_b32 s{sTAG}, s{sEP}, 0xffe00000
    s_or_b32 s{sTAG}, s{sTAG}, s{sXC}
    s_and_b32 s{sXC}, s{sEP}, 0xfffc0000
    s_xor_b32 s{sXC}, s{sXC}, s{sTAG}
    s_or_b32 s{sTAGN}, s{sTAG}, 0x20000
    s_mov_b32 s{sTAGH}, 0x3ffff
    """)
    for r in range(4):
        g(f"""
        v_mov_b32 v{E+4*r}, 0
        v_mov_b32 v{E+4*r+1}, 0
        v_mov_b32 v{E+4*r+2}, 0
        v_mov_b32 v{E+4*r+3}, s{sTAG}
        """)
    g(f"""
    s_mov_b32 s{sFIRST}, 0
    s_branch L_task
    """)
    if a.pf: g("L_pad1:\ns_branch L_pad2")
    g(f"""
L_taskback:
    s_cmp_lt_i32 s{sNU}, 1
    s_cbranch_scc1 L_done
    """)
    if a.qdma:
        g(f"""
        v_lshlrev_b32 {v(vQO)}, 2, {v(vT4q)}
        v_lshl_add_u32 {v(vQO)}, {v(vG)}, 8, {v(vQO)}
        v_add_u32 {v(vQO)}, s{sQL}, {v(vQO)}
        s_waitcnt vmcnt(12)
        s_cmp_gt_i32 s{sNU}, 1
        s_cbranch_scc1 L_q
        s_waitcnt vmcnt(4)
L_q:
        """)
        for jj in range(4):
            g(f"ds_read_b128 {vr(Q+4*jj)}, {v(vQO)} offset:{64*jj}")
        g("s_branch L_kready")
    g(f"""
L_loop:
    s_waitcnt vmcnt(12)
    s_cmp_gt_i32 s{sNU}, 1
    s_cbranch_scc1 L_kready
    s_waitcnt vmcnt(4)
L_kready:
    """)
    if a.kst:
        g(f"""
        s_cmp_lg_u32 s{sNXT}, 2
        s_cbranch_scc1 L_nks
        s_memrealtime s[{sST+16}:{sST+17}]
        s_waitcnt lgkmcnt(0)
L_nks:
        """)
    for jj in range(4):
        g(f"ds_read_b128 {vr(KF+4*jj)}, v{KR+jj}")
    g(f"v_readlane_b32 s{sSO}, {v(vSO)}, s{sNXT}")
    g(f"s_mov_b32 m0, s{sKM}")
    g(f"s_lshl_b32 s{sSO}, s{sSO}, 15")
    for jj in range(4):
        g(f"s_waitcnt lgkmcnt({3-jj})")
        g(f"v_mfma_f32_16x16x32_bf16 {vr(S)}, {vr(KF+4*jj)}, {vr(Q+4*jj)}, " + ("0" if jj == 0 else vr(S)))
    g(f"""
    s_cmp_lt_i32 s{sNU}, 3
    s_cbranch_scc1 L_nok
    """)
    dma(8, KD, sSO)
    g("L_nok:")
    for jj in range(4):
        g(f"v_xor_b32 v{KR+jj}, 0x1000, v{KR+jj}")
    g(f"""
    s_xor_b32 s{sKM}, s{sKM}, 0x1000
    s_mov_b32 m0, s{sVM}
    s_nop 1
    s_cmp_ge_i32 s{sREM}, 16
    s_cbranch_scc1 L_nomask
    v_subrev_u32 {v(vT0)}, s{sREM}, {v(vT4q)}
    """)
    for e in range(4):
        g(f"v_cmp_gt_i32_e64 s[{sM+2*e}:{sM+2*e+1}], {-e}, {v(vT0)}")
    for e in range(4):
        g(f"v_cndmask_b32_e64 v{S+e}, {v(vNEG)}, v{S+e}, s[{sM+2*e}:{sM+2*e+1}]")
    g(f"""
L_nomask:
    v_max3_f32 {v(vM)}, v{S}, v{S+1}, {v(vM)}
    v_max3_f32 {v(vM)}, v{S+2}, v{S+3}, {v(vM)}
    v_mov_b32 {v(vT0)}, {v(vM)}
    s_nop 1
    v_permlane16_swap_b32 {v(vM)}, {v(vT0)}
    v_max_f32 {v(vM)}, {v(vM)}, {v(vT0)}
    v_mov_b32 {v(vT0)}, {v(vM)}
    s_nop 1
    v_permlane32_swap_b32 {v(vM)}, {v(vT0)}
    v_max_f32 {v(vM)}, {v(vM)}, {v(vT0)}
    v_mul_f32 v{ML+1}, s{sC}, {v(vM)}
    v_sub_f32 {v(vAL)}, {v(vMC)}, v{ML+1}
    """)
    for e in range(4):
        g(f"v_fma_f32 v{S+e}, v{S+e}, s{sC}, -v{ML+1}")
    g(f"v_exp_f32 {v(vAL)}, {v(vAL)}")
    for e in range(4):
        g(f"v_exp_f32 v{S+e}, v{S+e}")
    g(f"""
    v_mov_b32 {v(vMC)}, v{ML+1}
    v_cvt_pk_bf16_f32 v{PK}, v{S}, v{S+1}
    v_cvt_pk_bf16_f32 v{PK+1}, v{S+2}, v{S+3}
    v_mul_f32 v{LA}, {v(vAL)}, v{LA}
    """)
    for i in range(4):
        g(f"v_mul_f32 v{ACC+i}, {v(vAL)}, v{ACC+i}")
    g(f"v_mfma_f32_16x16x16_bf16 {vr(LA)}, v[{ONE}:{ONE+1}], v[{PK}:{PK+1}], {vr(LA)}")
    for i in range(4, 8):
        g(f"v_mul_f32 v{ACC+i}, {v(vAL)}, v{ACC+i}")
    for aa in range(4):
        for x in range(2):
            g(f"v_mov_b32_dpp v{PA+2*aa+x}, v{PK+x} quad_perm:[0,1,2,3] row_mask:0xf bank_mask:0x{1<<aa:x}")
    g(f"""
    v_mov_b32 v{ML}, v{LA}
    s_waitcnt vmcnt(12)
    s_cmp_gt_i32 s{sNU}, 2
    s_cbranch_scc1 L_vready
    s_waitcnt vmcnt(8)
    s_cmp_gt_i32 s{sNU}, 1
    s_cbranch_scc1 L_vready
    s_waitcnt vmcnt(0)
L_vready:
    """)
    order = [0, 2, 4, 6, 1, 3, 5, 7]
    for n_, i in enumerate(order):
        g(f"ds_read_b64_tr_b16 v[{VF+2*n_}:{VF+2*n_+1}], v{VR+i}")
    g(f"s_cmp_lt_i32 s{sNU}, 2")
    for n_ in range(4):
        uu, hh = n_ >> 1, n_ & 1
        g(f"s_waitcnt lgkmcnt({6-2*n_})")
        g(f"v_mfma_f32_16x16x32_bf16 {vr(ACC+4*uu)}, {vr(VF+4*n_)}, {vr(PA+4*hh)}, {vr(ACC+4*uu)}")
    g(f"""
    s_cbranch_scc1 L_last
    s_cmp_lt_i32 s{sNU}, 3
    s_cbranch_scc1 L_nov
    """)
    dma(12, VD, sSO)
    g("L_nov:")
    for i in range(8):
        g(f"v_xor_b32 v{VR+i}, 0x1000, v{VR+i}")
    g(f"""
    s_xor_b32 s{sVM}, s{sVM}, 0x1000
    s_sub_i32 s{sNU}, s{sNU}, 1
    s_sub_i32 s{sREM}, s{sREM}, 64
    s_add_u32 s{sNXT}, s{sNXT}, 1
    s_branch L_loop
    """)
    if a.pf: g("L_pad2:\ns_endpgm")
    g("L_last:")
    g("L_done:")
    stamp()
    X = KF
    Y = VF
    Z = Q
    g(f"""
    ds_write_b64 v{vSW2}, v[{ML}:{ML+1}] offset:2048
    s_mov_b32 s{sT0}, 0x47ff0000
    v_mov_b32 {v(vT1)}, 0xc7ff0000
    ds_write_b128 v{vSW}, {vr(ACC)}
    s_mov_b32 s{sSPIN}, 0x10000
    s_mov_b32 s{sLOC}, 0x{0x80000000 + a.thr:x}
    s_mov_b32 s{sSENT}, 0
    ds_write_b128 v{vSW}, {vr(ACC+4)} offset:1024
    s_cmp_lg_u32 s{sDUAL}, 0
    s_waitcnt lgkmcnt(0)
    s_barrier
    s_cbranch_scc1 L_exit
    ds_read_b64 v[{Y}:{Y+1}], v{vSM} offset:2048
    ds_read_b64 v[{Y+2}:{Y+3}], v{vSM} offset:34816
    ds_read_b64 v[{Y+4}:{Y+5}], v{vSM2} offset:2048
    ds_read_b64 v[{Y+6}:{Y+7}], v{vSM2} offset:34816
    ds_read_b128 {vr(X)}, v{vSR}
    ds_read_b128 {vr(X+4)}, v{vSR} offset:32768
    ds_read_b128 {vr(X+8)}, v{vSR2}
    ds_read_b128 {vr(X+12)}, v{vSR2} offset:32768
    s_waitcnt lgkmcnt(4)
    """)
    stamp()
    g(f"""
    v_max3_f32 {v(vT0)}, v{Y+1}, v{Y+3}, v{Y+5}
    v_max_f32 {v(vT0)}, {v(vT0)}, v{Y+7}
    v_ceil_f32 {v(vT0)}, {v(vT0)}
    v_med3_f32 {v(vT0)}, {v(vT0)}, {v(vT1)}, s{sT0}
    v_sub_f32 v{Y+1}, v{Y+1}, {v(vT0)}
    v_sub_f32 v{Y+3}, v{Y+3}, {v(vT0)}
    v_sub_f32 v{Y+5}, v{Y+5}, {v(vT0)}
    v_sub_f32 v{Y+7}, v{Y+7}, {v(vT0)}
    v_exp_f32 v{Y+1}, v{Y+1}
    v_exp_f32 v{Y+3}, v{Y+3}
    v_exp_f32 v{Y+5}, v{Y+5}
    v_exp_f32 v{Y+7}, v{Y+7}
    v_cvt_i32_f32 v{G0+3}, {v(vT0)}
    s_sub_u32 s{sT0}, s{sTAG}, 60
    v_mul_f32 v{G0+2}, v{Y}, v{Y+1}
    v_add_u32 v{G0+3}, s{sTAGN}, v{G0+3}
    s_cmp_ge_u32 s{sI}, 4
    s_cbranch_scc1 L_pub
    s_waitcnt lgkmcnt(0)
    v_pk_mul_f32 v[{Z}:{Z+1}], v[{X}:{X+1}], v[{Y}:{Y+1}] op_sel:[0,1] op_sel_hi:[1,1]
    v_pk_mul_f32 v[{Z+2}:{Z+3}], v[{X+2}:{X+3}], v[{Y}:{Y+1}] op_sel:[0,1] op_sel_hi:[1,1]
    """)
    for k in range(1, 4):
        g(f"v_pk_fma_f32 v[{Z}:{Z+1}], v[{X+4*k}:{X+4*k+1}], v[{Y+2*k}:{Y+2*k+1}], v[{Z}:{Z+1}] op_sel:[0,1,0] op_sel_hi:[1,1,1]")
        g(f"v_pk_fma_f32 v[{Z+2}:{Z+3}], v[{X+4*k+2}:{X+4*k+3}], v[{Y+2*k}:{Y+2*k+1}], v[{Z+2}:{Z+3}] op_sel:[0,1,0] op_sel_hi:[1,1,1]")
        g(f"v_fmac_f32 v{G0+2}, v{Y+2*k}, v{Y+2*k+1}")
    n0, n1, n2, n3 = E + 3, E + 7, E + 11, E + 15
    W = Y + 8
    U = X
    def acc_entry(k, first):
        b = E + 4 * k; w = W + k; sel = w & 1
        wp = f"v[{w-sel}:{w-sel+1}]"
        g(f"""
        v_lshlrev_b32 v{U}, 16, v{b}
        v_and_b32 v{U+1}, s{sHIM}, v{b}
        v_lshlrev_b32 v{U+2}, 16, v{b+1}
        v_and_b32 v{U+3}, s{sHIM}, v{b+1}
        """)
        if first:
            g(f"""
            v_mul_f32 v{Z+4}, v{b+2}, v{w}
            v_pk_mul_f32 v[{Z}:{Z+1}], v[{U}:{U+1}], {wp} op_sel:[0,{sel}] op_sel_hi:[1,{sel}]
            v_pk_mul_f32 v[{Z+2}:{Z+3}], v[{U+2}:{U+3}], {wp} op_sel:[0,{sel}] op_sel_hi:[1,{sel}]
            """)
        else:
            g(f"""
            v_fmac_f32 v{Z+4}, v{b+2}, v{w}
            v_pk_fma_f32 v[{Z}:{Z+1}], v[{U}:{U+1}], {wp}, v[{Z}:{Z+1}] op_sel:[0,{sel},0] op_sel_hi:[1,{sel},1]
            v_pk_fma_f32 v[{Z+2}:{Z+3}], v[{U+2}:{U+3}], {wp}, v[{Z+2}:{Z+3}] op_sel:[0,{sel},0] op_sel_hi:[1,{sel},1]
            """)
    g(f"""
    v_cvt_pk_bf16_f32 v{G0}, v{Z}, v{Z+1}
    v_cvt_pk_bf16_f32 v{G0+1}, v{Z+2}, v{Z+3}
    buffer_store_dwordx4 {vr(G0)}, {v(vWS)}, s[24:27], s{sOWN} offen
L_pub:
    v_mov_b32 v{vR}, v{G0+3}
    v_subrev_u32 v{vHI}, s{sT0}, v{G0+3}
    s_mov_b32 s{sHIM}, 0xffff0000
L_poll:
    s_mov_b64 exec, s[{sMK}:{sMK+1}]
    buffer_load_dwordx4 {vr(E)}, v{vPA}, s[4:7], s{sPO} offen sc1
    s_mov_b64 exec, s[{sMK+2}:{sMK+3}]
    s_cbranch_execz L_pe
    buffer_load_dwordx4 {vr(E+4)}, v{vPA}, s[4:7], s{sPO+1} offen sc1
    s_mov_b64 exec, s[{sMK+4}:{sMK+5}]
    s_cbranch_execnz L_pmore
L_pe:
    s_mov_b64 exec, -1
    s_sub_i32 s{sLOC}, s{sLOC}, 1
    s_cbranch_scc1 L_late
    v_add_u32 {v(vT2)}, s{sOO}, {v(vOUT)}
    s_waitcnt vmcnt(0) lgkmcnt(0)
    v_subrev_u32 {v(vT0)}, s{sTAG}, v{n0}
    v_subrev_u32 {v(vT1)}, s{sTAG}, v{n1}
    v_max_u32 {v(vT0)}, {v(vT0)}, {v(vT1)}
    v_cmp_lt_u32 vcc, s{sTAGH}, {v(vT0)}
    s_cbranch_vccnz L_poll
    v_cmp_lt_u32 vcc, v{vHI}, {v(vT0)}
    s_cbranch_vccnz L_slow
L_got:
    """)
    if a.stamps and not a.kst: g(f"s_memrealtime s[{sST+16}:{sST+17}]")
    g(f"""
    v_sub_u32 v{W}, v{n0}, v{vR}
    v_sub_u32 v{W+1}, v{n1}, v{vR}
    v_ldexp_f32 v{W}, 1.0, v{W}
    v_ldexp_f32 v{W+1}, 1.0, v{W+1}
    """)
    acc_entry(0, True)
    acc_entry(1, False)
    g(f"""
L_sum:
    v_mov_b32 v{Z+5}, v{Z+4}
    v_permlane32_swap_b32 v{Z}, v{Z+1}
    s_nop 0
    v_permlane32_swap_b32 v{Z+2}, v{Z+3}
    v_permlane32_swap_b32 v{Z+4}, v{Z+5}
    v_add_f32 v{Z}, v{Z}, v{Z+1}
    v_add_f32 v{Z+4}, v{Z+4}, v{Z+5}
    v_add_f32 v{Z+2}, v{Z+2}, v{Z+3}
    v_mov_b32 v{Z+5}, v{Z+4}
    s_nop 0
    v_permlane16_swap_b32 v{Z}, v{Z+2}
    v_permlane16_swap_b32 v{Z+4}, v{Z+5}
    v_add_f32 v{Z}, v{Z}, v{Z+2}
    v_add_f32 v{Z+4}, v{Z+4}, v{Z+5}
    s_nop 0
    v_add_f32_dpp v{Z}, v{Z}, v{Z} row_ror:4 row_mask:0xf bank_mask:0xf
    v_add_f32_dpp v{Z+4}, v{Z+4}, v{Z+4} row_ror:4 row_mask:0xf bank_mask:0xf
    s_nop 0
    v_add_f32_dpp v{Z}, v{Z}, v{Z} row_ror:8 row_mask:0xf bank_mask:0xf
    v_add_f32_dpp v{Z+4}, v{Z+4}, v{Z+4} row_ror:8 row_mask:0xf bank_mask:0xf
    v_rcp_f32 v{Z+4}, v{Z+4}
    s_mov_b32 exec_lo, 0x000f000f
    s_mov_b32 exec_hi, 0x000f000f
    v_mul_f32 v{Z}, v{Z}, v{Z+4}
    v_cvt_pk_bf16_f32 v{Z}, v{Z}, v{Z}
    global_store_short {v(vT2)}, v{Z}, s[20:21]
    s_cmp_lg_u32 s{sPO}, s{sREG}
    s_cbranch_scc1 L_noep
    s_mov_b64 exec, 1
    v_mov_b32 {v(vT0)}, s{sEPO}
    v_mov_b32 {v(vT1)}, s{sEP}
    global_store_dword {v(vT0)}, {v(vT1)}, s[24:25]
L_noep:
    s_add_u32 s{sCB}, s{sCB}, s{sSTEP}
    s_cmp_lt_u32 s{sCB}, 16
    s_cbranch_scc1 L_task
L_exit:
    {"s_branch L_fin" if a.stamps else "s_endpgm"}
L_task:
    s_mov_b64 exec, -1
    s_lshl_b32 s{sPO}, s{sCB}, 6
    s_add_u32 s{sPO}, s{sPO}, s{sPB}
    s_add_u32 s{sPO}, s{sPO}, s{sREG}
    s_add_u32 s{sPO+1}, s{sPO}, 0x10000
    s_add_u32 s{sPO+2}, s{sPO}, 0x20000
    s_add_u32 s{sPO+3}, s{sPO}, 0x30000
    s_and_b32 s{sOO}, s{sCB}, 3
    s_lshl_b32 s{sOO}, s{sOO}, 6
    s_and_b32 s{sT1}, s{sCB}, 12
    s_lshl_b32 s{sT1}, s{sT1}, 1
    s_add_u32 s{sOO}, s{sOO}, s{sT1}
    s_cmp_eq_u32 s{sFIRST}, 0
    s_mov_b32 s{sFIRST}, 1
    s_cbranch_scc1 L_taskback
    s_branch L_poll
L_pmore:
    buffer_load_dwordx4 {vr(E+8)}, v{vPA}, s[4:7], s{sPO+2} offen sc1
    s_mov_b64 exec, s[{sMK+6}:{sMK+7}]
    s_cbranch_execz L_p3
    buffer_load_dwordx4 {vr(E+12)}, v{vPA}, s[4:7], s{sPO+3} offen sc1
L_p3:
    s_mov_b64 exec, -1
    s_sub_i32 s{sLOC}, s{sLOC}, 1
    s_cbranch_scc0 L_chk4
L_late:
    s_mov_b32 s{sLOC}, 0x80000000
    s_or_b32 s{sSENT}, s{sSENT}, 1
L_chk4:
    v_add_u32 {v(vT2)}, s{sOO}, {v(vOUT)}
    s_waitcnt vmcnt(0) lgkmcnt(0)
    v_subrev_u32 {v(vT0)}, s{sTAG}, v{n0}
    v_subrev_u32 {v(vT1)}, s{sTAG}, v{n1}
    v_subrev_u32 {v(vT3)}, s{sTAG}, v{n2}
    v_max3_u32 {v(vT0)}, {v(vT0)}, {v(vT1)}, {v(vT3)}
    v_subrev_u32 {v(vT1)}, s{sTAG}, v{n3}
    v_max_u32 {v(vT0)}, {v(vT0)}, {v(vT1)}
    v_cmp_lt_u32 vcc, s{sTAGH}, {v(vT0)}
    s_cbranch_vccz L_slow
    s_sub_u32 s{sSPIN}, s{sSPIN}, 1
    s_cbranch_scc1 L_slow
    s_cmp_eq_u32 s{sSENT}, 0
    s_cbranch_scc1 L_poll
    s_cmp_eq_u32 s{sSENT}, 3
    s_cbranch_scc1 L_tog
    s_mov_b32 s{sSENT}, 3
    s_cmp_ge_u32 s{sI}, 4
    s_cbranch_scc1 L_tog
    v_xor_b32 v{G0+3}, s{sXC}, v{G0+3}
    s_add_u32 s{sOWN}, s{sOWN}, 0x100000
    buffer_store_dwordx4 {vr(G0)}, {v(vWS)}, s[24:27], s{sOWN} offen sc1
L_tog:
    s_xor_b32 s{sREG}, s{sREG}, 0x100000
    s_xor_b32 s{sPO}, s{sPO}, 0x100000
    s_xor_b32 s{sPO+1}, s{sPO+1}, 0x100000
    s_xor_b32 s{sPO+2}, s{sPO+2}, 0x100000
    s_xor_b32 s{sPO+3}, s{sPO+3}, 0x100000
    s_xor_b32 s{sTAG}, s{sTAG}, s{sXC}
    v_mov_b32 v{n0}, s{sTAG}
    v_mov_b32 v{n1}, s{sTAG}
    v_mov_b32 v{n2}, s{sTAG}
    v_mov_b32 v{n3}, s{sTAG}
    s_branch L_poll
L_slow:
    s_nop 0
    v_max_u32_dpp {v(vT0)}, {v(vT0)}, {v(vT0)} row_ror:4 row_mask:0xf bank_mask:0xf
    s_nop 1
    v_max_u32_dpp {v(vT0)}, {v(vT0)}, {v(vT0)} row_ror:8 row_mask:0xf bank_mask:0xf
    v_mov_b32 {v(vT1)}, {v(vT0)}
    s_nop 1
    v_permlane16_swap_b32 {v(vT0)}, {v(vT1)}
    v_max_u32 {v(vT0)}, {v(vT0)}, {v(vT1)}
    v_mov_b32 {v(vT1)}, {v(vT0)}
    s_nop 1
    v_permlane32_swap_b32 {v(vT0)}, {v(vT1)}
    v_max_u32 v{vR}, {v(vT0)}, {v(vT1)}
    v_add_u32 v{vR}, s{sTAG}, v{vR}
    s_cmp_eq_u64 s[{sMK+4}:{sMK+5}], 0
    s_cbranch_scc1 L_got
    """)
    for k in range(4): g(f"v_sub_u32 v{W+k}, v{E+4*k+3}, v{vR}")
    for k in range(4): g(f"v_ldexp_f32 v{W+k}, 1.0, v{W+k}")
    for k in range(4): acc_entry(k, k == 0)
    g("s_branch L_sum")
    cl, nb, pf, cn, cb, x0, x1 = vT0, vT1, vT3, vSO, vPA, vM, vMC
    fq, n_, k_ = vAL, vNEG, vOUT
    g(f"""
L_general:
    s_mov_b64 s[12:13], s[{sKA+4}:{sKA+5}]
    s_mov_b32 s14, s10
    s_mov_b32 s15, 0x20000
    v_mov_b32 v{VD}, 0
    v_mov_b32 v{VD+1}, 0
    v_mov_b32 v{VD+2}, 0
    v_mov_b32 v{VD+3}, 0
    s_lshl_b32 s{sT0}, s{sI}, 10
    s_and_b32 s{sT0}, s{sT0}, 0xfff
    s_add_u32 s{sT0}, s{sT0}, {TBL}
    s_mov_b32 m0, s{sT0}
    v_mov_b32 {v(vT1)}, {v(vWS)}
    v_add_u32 {v(vT5)}, 1, {v(vL)}
    s_mov_b32 s{sT1}, 0x42700000
    s_waitcnt vmcnt(0)
    global_load_lds_dwordx4 {v(vT1)}, s[{sKA+6}:{sKA+7}]
    v_mov_b32 {v(cl)}, s{sM+PERM[0]}
    v_writelane_b32 {v(cl)}, s{sM+PERM[1]}, 1
    v_writelane_b32 {v(cl)}, s{sM+PERM[2]}, 2
    v_writelane_b32 {v(cl)}, s{sM+PERM[3]}, 3
    v_add_u32 {v(nb)}, -1, {v(cl)}
    v_ashrrev_i32 {v(nb)}, 4, {v(nb)}
    v_min_u32 {v(nb)}, 0xff, {v(nb)}
    v_add_u32 {v(nb)}, 1, {v(nb)}
    s_nop 1
    v_add_u32_dpp {v(pf)}, {v(nb)}, {v(nb)} row_shr:1 row_mask:0xf bank_mask:0xf bound_ctrl:0
    v_lshlrev_b32 {v(nb)}, 1, {v(nb)}
    v_cvt_f32_u32 {v(fq)}, {v(nb)}
    v_add_u32_dpp {v(pf)}, {v(pf)}, {v(pf)} row_shr:2 row_mask:0xf bank_mask:0xf bound_ctrl:0
    s_nop 1
    v_cvt_f32_u32_dpp {v(cn)}, {v(pf)} quad_perm:[3,3,3,3] row_mask:0xf bank_mask:0xf
    v_cvt_f32_u32 {v(pf)}, {v(pf)}
    v_rcp_f32 {v(cn)}, {v(cn)}
    v_mul_f32 {v(pf)}, s{sT1}, {v(pf)}
    v_fma_f32 {v(cn)}, {v(pf)}, {v(cn)}, 0.5
    v_cvt_u32_f32 {v(cn)}, {v(cn)}
    v_add_u32 {v(cn)}, {v(cn)}, {v(vT5)}
    v_cmp_ge_u32 vcc, s{sJ}, {v(cn)}
    s_nop 0
    v_mov_b32_dpp {v(cb)}, {v(cn)} row_shr:1 row_mask:0xf bank_mask:0xf bound_ctrl:0
    s_and_b32 s{sB}, vcc_lo, 7
    v_sub_u32 {v(n_)}, {v(cn)}, {v(cb)}
    v_sub_u32 {v(k_)}, s{sJ}, {v(cb)}
    v_cvt_f32_u32 {v(x0)}, {v(n_)}
    v_rcp_f32 {v(x0)}, {v(x0)}
    v_add_u32 {v(pf)}, 1, {v(k_)}
    v_mul_f32 {v(fq)}, {v(fq)}, {v(x0)}
    v_cvt_f32_u32 {v(x0)}, {v(k_)}
    v_cvt_f32_u32 {v(x1)}, {v(pf)}
    v_cmp_eq_u32 vcc, {v(pf)}, {v(n_)}
    v_mul_f32 {v(x0)}, {v(x0)}, {v(fq)}
    v_mul_f32 {v(x1)}, {v(x1)}, {v(fq)}
    v_cvt_u32_f32 {v(x0)}, {v(x0)}
    v_cvt_u32_f32 {v(x1)}, {v(x1)}
    s_bcnt1_i32_b32 s{sB}, s{sB}
    v_cndmask_b32 {v(x1)}, {v(x1)}, {v(nb)}, vcc
    v_readlane_b32 s{sX0}, {v(x0)}, s{sB}
    v_readlane_b32 s{sREM}, {v(cl)}, s{sB}
    v_readlane_b32 s{sX1}, {v(x1)}, s{sB}
    v_readlane_b32 s{sCB}, {v(cb)}, s{sB}
    v_readlane_b32 s{sNB}, {v(n_)}, s{sB}
    s_lshl_b32 s{sB}, s{sB}, 3
    s_lshr_b32 s{sB}, 0x{pack(PERM):x}, s{sB}
    s_and_b32 s{sB}, s{sB}, 3
    """)
    g(wave_range)
    g(f"""
    s_add_u32 s{sT0}, s{sT0}, {TBL}
    v_lshl_add_u32 {v(vT0)}, {v(vL)}, 4, s{sT0}
    s_waitcnt vmcnt(0)
    s_barrier
    ds_read_b32 {v(vSO)}, {v(vT0)}
    s_cmp_gt_i32 s{sREM}, 0
    s_cselect_b32 s{sX1}, 0xce800000, 0
    """)
    g(wave_range2)
    g(f"""
    s_mov_b32 m0, s{sKM}
    s_mov_b32 s{sFIRST}, 1
    s_waitcnt lgkmcnt(0)
    s_cmp_lt_i32 s{sNU}, 1
    s_cbranch_scc1 L_issued
    s_branch L_have
    """)
    g("L_fin:")
    if a.amp:
        stamp()
        ia, ib = a.amp // 10, a.amp % 10
        g("s_waitcnt lgkmcnt(0)")
        if a.ampwg >= 0:
            g(f"""
            s_cmp_lg_u32 s2, {a.ampwg}
            s_cbranch_scc1 L_end
            s_cmp_lg_u32 s{sI}, 0
            s_cbranch_scc1 L_end
            """)
        g(f"""
        s_sub_u32 s6, s{sST+2*ib}, s{sST+2*ia}
        s_mul_i32 s6, s6, 10
        s_min_u32 s6, s6, 50000
        s_add_u32 s6, s6, s{sST+14}
L_spin:
        s_sleep 4
        s_memrealtime s[2:3]
        s_waitcnt lgkmcnt(0)
        s_sub_u32 s7, s2, s6
        s_cmp_lt_i32 s7, 0
        s_cbranch_scc1 L_spin
        """)
    elif a.stamps:
        stamp()
        g(f"""
        s_waitcnt lgkmcnt(0)
        s_lshl_b32 s6, s2, 4
        s_add_u32 s6, s6, s{sI}
        s_lshl_b32 s6, s6, 7
        s_add_u32 s6, s6, 0x1000000
        v_mov_b32 v14, s6
        s_getreg_b32 s6, hwreg(HW_REG_XCC_ID)
        s_mov_b64 exec, 1
        """)
        for k in range(9):
            g(f"v_mov_b32 v15, s{sST+2*k}")
            g(f"global_store_dword v14, v15, s[24:25] offset:{4*k}")
        g(f"""
        v_mov_b32 v15, s6
        global_store_dword v14, v15, s[24:25] offset:120
        s_sub_u32 s6, 0x{0x80000000 + a.thr:x}, s{sLOC}
        s_cmp_lg_u32 s{sSENT}, 0
        s_cselect_b32 s7, 1000, 0
        s_add_u32 s6, s6, s7
        v_mov_b32 v15, s6
        global_store_dword v14, v15, s[24:25] offset:124
        """)
    g("L_end:")
    g("s_endpgm")
    acc = (NV + 3) // 4 * 4
    out = HDR + f"; @launch grid=(256,1,1) block=({576 if a.pf else 512},1,1) lds={LDS}\n"
    out += DOC
    out += f""".amdgcn_target "amdgcn-amd-amdhsa--gfx950"
.text
.globl {NAME}_kernel
.p2align 8
.type {NAME}_kernel,@function
{NAME}_kernel:
""" + "".join(l + "\n" for l in g.text().split("\n") if l.strip()) + f""".section .rodata,"a"
.p2align 6
.amdhsa_kernel {NAME}_kernel
  .amdhsa_next_free_vgpr {NV}
  .amdhsa_next_free_sgpr 102
  .amdhsa_accum_offset {acc}
  .amdhsa_group_segment_fixed_size 0
  .amdhsa_kernarg_size 64
  .amdhsa_user_sgpr_count 2
  .amdhsa_user_sgpr_kernarg_segment_ptr 1
  .amdhsa_system_sgpr_workgroup_id_x 1
.end_amdhsa_kernel
"""
    return out

if __name__ == "__main__":
    p = argparse.ArgumentParser()
    for k, d in dict(stamps=0, pf=0, thr=24, kst=0, w9=0, amp=0, ampwg=0, forcegen=0, accord=1, wp=0, qdma=1, hx=0, prio=1, sel=0, slp=0, wpos=0).items():
        p.add_argument("--" + k, type=int, default=d)
    p.add_argument("-o", default="-")
    a = p.parse_args()
    if a.amp: a.stamps = 1
    t = gen(a)
    for lab, c in [("L_have:", "first two units: K0, Q, V0, K1, V1"), ("L_issued:", "setup that is not needed before the first tile lands"),
                   ("L_loop:", "one unit per trip; vmcnt counts the younger tiles still in flight"), ("L_nomask:", "online softmax"),
                   ("L_vready:", "PV"), ("L_done:", "merge the four waves of each kv head through LDS"),
                   ("L_poll:", "poll the granules of this wave's output slice"),
                   ("L_sum:", "reduce over the siblings held in other lanes, normalise, store"),
                   ("L_task:", "offsets of an output slice"), ("L_general:", "context lengths other than the built-in ones")]:
        t = t.replace("\n" + lab + "\n", "\n" + lab + "    ; " + c + "\n")
    if a.o == "-": sys.stdout.write(t)
    else: open(a.o, "w").write(t)
```

```python
import sys, argparse, math, struct
from gen import NAME, HDR, f32bits, G

EXP_CL = [3663, 3230, 2797, 2364]
PERM = [0, 3, 1, 2]


DOC = """; ---------------------------------------------------------------------------------------------------------
;    {4 x bf16 normalised partial, f32 log2-sum-exp, tag} in d_ws.  The tag derives from a per-group word that every launch
; ---------------------------------------------------------------------------------------------------------
"""

def plan():
    nblk = [(EXP_CL[b] + 15) // 16 for b in PERM]
    T = sum(nblk); P = 0; c = [0]
    for x in range(4):
        P += nblk[x]
        c.append(x + 1 + int(60 * P / T + 0.5))
    n = [c[x + 1] - c[x] for x in range(4)]
    q = [2 * nblk[x] // n[x] for x in range(4)]
    r = [2 * nblk[x] - q[x] * n[x] for x in range(4)]
    pad = [16 * nblk[x] - EXP_CL[PERM[x]] for x in range(4)]
    return nblk, c, n, q, r, pad

def pack(vals):
    assert all(0 <= v < 256 for v in vals)
    return sum(v << (8 * i) for i, v in enumerate(vals))

def gen(a):
    g = G()
    KVSIZE = 1028 * 32768
    C = (128 ** -0.5) * math.log2(math.e)
    TBL = 131072
    QL = TBL + 5376
    LDS = QL + 8192 if a.qdma else QL
    EPOFF = 0x300000
    kvnt = " nt"
    sOO2, sDUAL = 22, 23
    sI, sJ, sHP, sH256 = 28, 29, 30, 31
    sB, sCB, sNB, sREM, sNU, sNXT, sKM, sVM, sSO, sC, sT0, sT1, sOWN, sSTEP, sPB, sSPIN, sX0, sX1, sQO, sTAG = range(32, 52)
    sM = 52
    sMK, sPO, sOO, sFIRST, sXC, sLOC, sREG = 60, 68, 72, 73, 74, 75, 76
    sSENT = 77
    sHIM = 22
    sQL = 17
    sMK1 = 78
    sKA = 56
    sEP, sTAGN, sTAGH, sEPO = 80, 81, 82, 83
    sST = 84
    nst = [0]
    def stamp():
        if a.stamps:
            k = nst[0]; nst[0] += 1
            assert sST + 2 * k + 1 <= 101
            g(f"s_memrealtime s[{sST+2*k}:{sST+2*k+1}]")
    vL, vT0, vT1, vT2, vT3, vG, vT5, vSO, vWS, vOUT, vQO, vM, vMC, vAL, vNEG, vT4q, vSW, vSR, vPA = range(1, 20)
    ACC, LA, ML, vSW2, vSR2, KF = 20, 28, 32, 34, 35, 36
    KD, VD, KR, VR, Q, PA, PK, ONE, S, VF = 52, 56, 60, 64, 72, 88, 96, 98, 100, 104
    E = 120
    G0, JK, S1 = 136, 140, 144
    vR, vHI, vSM, vSM2 = 148, 149, 150, 151
    NV = 152
    def v(i): return f"v{i}"
    def vr(b, n=4): return f"v[{b}:{b+n-1}]"
    nblk, cc, nn, qq, rr, pad = plan()

    stamp()
    g(f"""
    s_load_dwordx16 s[{sKA}:{sKA+15}], s[0:1], 0
    v_readfirstlane_b32 s3, v0
    s_cmp_ge_u32 s2, 256
    s_cbranch_scc1 L_end
    """)
    if a.pf:
        g("""
        s_cmpk_eq_u32 s3, 512
        s_cbranch_scc1 L_pad0
        """)
    if a.qdma:
        qo1 = qo2 = ""
        qo3 = f"v_lshl_add_u32 {v(vQO)}, {v(vL)}, 4, s{sT0}"
    else:
        qo1 = f"v_lshlrev_b32 {v(vQO)}, 4, {v(vT4q)}"
        qo2 = f"v_lshl_add_u32 {v(vQO)}, {v(vG)}, 8, {v(vQO)}"
        qo3 = f"v_add_u32 {v(vQO)}, s{sT0}, {v(vQO)}"
    WL = f"buffer_load_dwordx4 {vr(JK)}, {v(vWS)}, s[24:27], s{sOWN} offen sc1"
    wave_range = f"""
    s_xor_b32 s{sT0}, s{sX0}, s{sI}
    s_and_b32 s{sT0}, s{sT0}, 1
    s_add_u32 s{sX0}, s{sX0}, s{sT0}
    s_andn2_b32 s{sT0}, s{sI}, 1
    s_add_u32 s{sX0}, s{sX0}, s{sT0}
    s_sub_i32 s{sNU}, s{sX1}, s{sX0}
    s_lshr_b32 s{sX0}, s{sX0}, 1
    s_lshl_b32 s{sT0}, s{sB}, 8
    s_add_u32 s{sT0}, s{sT0}, s{sX0}
    s_lshl_b32 s{sT0}, s{sT0}, 2
    """
    wave_range2 = f"""
    s_add_i32 s{sNU}, s{sNU}, 7
    s_ashr_i32 s{sNU}, s{sNU}, 3
    s_lshl_b32 s{sX0}, s{sX0}, 4
    s_sub_i32 s{sREM}, s{sREM}, s{sX0}
    s_lshl_b32 s{sQO}, s{sB}, 13
    s_lshl_b32 s{sT0}, s{sH256}, 2
    s_add_u32 s{sT0}, s{sT0}, s{sQO}
    {qo1}
    {qo2}
    {qo3}
    """
    MA = []
    for x in range(4):
        U = 2 * nblk[x]
        M = -(-U * 65536 // nn[x])
        A = (PERM[x] * 512 * 65536 - cc[x] * M) & 0xffffffff
        for k in range(nn[x] + 1):
            assert (((cc[x] + k) * M + A) & 0xffffffff) >> 16 == PERM[x] * 512 + k * U // nn[x]
        MA.append((M, A))
    g(f"""
    s_lshl_b32 s{sJ}, s2, 3
    v_and_b32 {v(vL)}, 63, v0
    s_and_b32 s{sJ}, s{sJ}, 32
    s_lshr_b32 s{sT0}, s2, 3
    s_add_u32 s{sJ}, s{sJ}, s{sT0}
    s_lshr_b32 s{sI}, s3, 6
    s_mov_b32 s{sT1}, {MA[0][0]}
    s_mov_b32 s{sX0}, 0x{MA[0][1]:x}
    s_cmp_ge_u32 s{sJ}, {cc[1]}
    s_cselect_b32 s{sT1}, {MA[1][0]}, s{sT1}
    s_cselect_b32 s{sX0}, 0x{MA[1][1]:x}, s{sX0}
    s_cmp_ge_u32 s{sJ}, {cc[2]}
    s_cselect_b32 s{sT1}, {MA[2][0]}, s{sT1}
    s_cselect_b32 s{sX0}, 0x{MA[2][1]:x}, s{sX0}
    s_cmp_ge_u32 s{sJ}, {cc[3]}
    s_cselect_b32 s{sT1}, {MA[3][0]}, s{sT1}
    s_cselect_b32 s{sX0}, 0x{MA[3][1]:x}, s{sX0}
    s_mul_i32 s{sT0}, s{sJ}, s{sT1}
    s_add_u32 s{sX0}, s{sX0}, s{sT0}
    s_add_u32 s{sX1}, s{sX0}, s{sT1}
    s_lshr_b32 s{sX0}, s{sX0}, 16
    s_sub_u32 s{sT0}, s{sX0}, s{sI}
    s_and_b32 s{sT0}, s{sT0}, 1
    s_add_u32 s{sX0}, s{sX0}, s{sT0}
    s_andn2_b32 s{sT0}, s{sI}, 1
    s_add_u32 s{sX0}, s{sX0}, s{sT0}
    s_andn2_b32 s{sT0}, s{sX0}, 1
    s_lshl_b32 s{sT0}, s{sT0}, 1
    v_lshl_add_u32 {v(vT0)}, {v(vL)}, 4, s{sT0}
    s_mov_b64 exec, 0xff
    s_waitcnt lgkmcnt(0)
    """)
    stamp()
    g(f"""
    global_load_dword {v(vSO)}, {v(vT0)}, s[{sKA+6}:{sKA+7}]
    s_load_dwordx4 s[{sM}:{sM+3}], s[{sKA+8}:{sKA+9}], 0
    s_mov_b64 exec, -1
    """)
    if a.tt:
        g(f"""
        s_cmp_lg_u32 s{sI}, 7
        s_cbranch_scc1 L_ntt
        s_lshr_b32 s{sT0}, s2, 3
        s_lshl_b32 s{sT0}, s{sT0}, 20
        s_load_dword s{sEP}, s[{sKA+2}:{sKA+3}], s{sT0}
        s_load_dword s{sTAGN}, s[{sKA+4}:{sKA+5}], s{sT0}
L_ntt:
        """)
    g(f"""
    s_and_b32 s{sHP}, s2, 3
    {"s_lshr_b32 s%d, s%d, 10" % (sT0, sX0) if a.hx else ""}
    {"s_xor_b32 s%d, s%d, s%d" % (sHP, sHP, sT0) if a.hx else ""}
    v_lshlrev_b32 {v(vWS)}, 4, v0
    s_lshl_b32 s{sOWN}, s{sHP}, 6
    v_and_b32 {v(vWS)}, 0xfff, {v(vWS)}
    s_add_u32 s{sOWN}, s{sOWN}, s{sJ}
    s_lshl_b32 s{sOWN}, s{sOWN}, 12
    s_mov_b64 s[24:25], s[{sKA+14}:{sKA+15}]
    s_mov_b32 s26, 0x200000
    s_mov_b32 s27, 0x20000
    {WL if a.wp == 0 else ""}
    v_lshrrev_b32 {v(vT4q)}, 4, {v(vL)}
    s_and_b32 s{sT0}, s{sI}, 1
    v_and_b32 {v(vT2)}, 15, v0
    s_lshl_b32 s{sH256}, s{sHP}, 1
    v_xor_b32 {v(vT3)}, {v(vT2)}, {v(vT4q)}
    s_add_u32 s{sH256}, s{sH256}, s{sT0}
    v_lshlrev_b32 {v(vT3)}, 4, {v(vT3)}
    s_lshl_b32 s{sH256}, s{sH256}, 8
    v_lshl_add_u32 v{KD}, {v(vT4q)}, 11, {v(vT3)}
    s_lshl_b32 s{sKM}, s{sI}, 14
    v_add_u32 v{KD}, s{sH256}, v{KD}
    s_mov_b64 s[8:9], s[{sKA+2}:{sKA+3}]
    v_lshl_add_u32 v{KR}, {v(vT2)}, 8, {v(vT3)}
    s_mov_b32 s10, 0x{KVSIZE:x}
    v_xor_b32 v{KD+1}, 64, v{KD}
    s_mov_b32 s11, 0x20000
    v_xor_b32 v{KD+2}, 0x80, v{KD}
    s_mov_b32 m0, s{sKM}
    v_xor_b32 v{KD+3}, 0xc0, v{KD}
    v_add_u32 v{KD+1}, 7168, v{KD+1}
    v_add_u32 v{KD+2}, {2*7168}, v{KD+2}
    v_add_u32 v{KD+3}, {3*7168}, v{KD+3}
    """)
    g(f"""
    s_lshr_b32 s{sB}, s{sX0}, 9
    v_and_b32 {v(vG)}, 3, v0
    s_lshl_b32 s{sQO}, s{sB}, 13
    {qo1}
    s_lshl_b32 s{sT0}, s{sH256}, 2
    {qo2}
    s_add_u32 s{sT0}, s{sT0}, s{sQO}
    s_lshr_b32 s{sX1}, s{sX1}, 16
    {qo3}
    s_sub_i32 s{sNU}, s{sX1}, s{sX0}
    s_add_i32 s{sNU}, s{sNU}, 7
    s_ashr_i32 s{sNU}, s{sNU}, 3
    s_mov_b32 s{sFIRST}, 0
    {WL if a.wp == 1 else ""}
    {"s_setprio 3" if a.prio else ""}
    s_waitcnt vmcnt(1)
L_have:
    v_readlane_b32 s{sSO}, {v(vSO)}, 0
    v_readlane_b32 s{sT1}, {v(vSO)}, 1
    s_lshl_b32 s{sSO}, s{sSO}, 15
    """)
    stamp()
    stamp()
    def dma(srd, offs, so):
        for e in range(4):
            io = f" offset:{e*1024}" if e else ""
            g(f"buffer_load_dwordx4 v{offs+e}, s[{srd}:{srd+3}], s{so} offen{io}{kvnt} lds")
    dma(8, KD, sSO)
    if a.pf:
        g(f"""
        s_branch L_c2
L_pad0:
        s_branch L_pad1
L_c2:
        """)
    g(f"""
    s_add_u32 s{sVM}, s{sKM}, 0x2000
    s_cmp_lg_u32 s{sFIRST}, 0
    s_cbranch_scc1 L_c3
    s_waitcnt lgkmcnt(0)
    s_xor_b32 s{sT0}, s{sM}, {EXP_CL[0] + a.forcegen}
    s_xor_b32 s{sOO}, s{sM+1}, {EXP_CL[1]}
    s_or_b32 s{sT0}, s{sT0}, s{sOO}
    s_xor_b32 s{sOO}, s{sM+2}, {EXP_CL[2]}
    s_or_b32 s{sT0}, s{sT0}, s{sOO}
    s_xor_b32 s{sOO}, s{sM+3}, {EXP_CL[3]}
    s_or_b32 s{sT0}, s{sT0}, s{sOO}
    s_cbranch_scc1 L_general
L_c3:
    {"s_lshl_b32 s%d, s%d, 10" % (sT0, sI) if a.qdma else ""}
    {"s_add_u32 s%d, s%d, %d" % (sQL, sT0, QL) if a.qdma else ""}
    {"s_mov_b32 m0, s%d" % sQL if a.qdma else ""}
    v_lshlrev_b32 {v(vT3)}, 1, {v(vT4q)}
    v_xor_b32 {v(vT3)}, {v(vT2)}, {v(vT3)}
    s_mov_b64 s[12:13], s[{sKA+4}:{sKA+5}]
    v_lshlrev_b32 {v(vT3)}, 4, {v(vT3)}
    s_mov_b32 s14, s10
    v_lshl_add_u32 v{VD}, {v(vT4q)}, 11, {v(vT3)}
    s_mov_b32 s15, 0x20000
    v_add_u32 v{VD}, s{sH256}, v{VD}
    v_xor_b32 v{VD+1}, 0x80, v{VD}
    v_add_u32 v{VD+2}, {2*7168}, v{VD}
    v_add_u32 v{VD+3}, {3*7168}, v{VD+1}
    v_add_u32 v{VD+1}, 7168, v{VD+1}
    """)
    if a.qdma:
        g(f"global_load_lds_dwordx4 {v(vQO)}, s[{sKA}:{sKA+1}]")
    else:
        for jj in range(4):
            g(f"global_load_dwordx4 {vr(Q+4*jj)}, {v(vQO)}, s[{sKA}:{sKA+1}]" + (f" offset:{64*jj}" if jj else ""))
    if a.wpos == 1: g(f"buffer_load_dwordx4 {vr(JK)}, {v(vWS)}, s[24:27], s{sOWN} offen sc1")
    g(f"s_mov_b32 m0, s{sVM}")
    g(f"s_nop 0")
    dma(12, VD, sSO)
    if a.prio == 2: g("s_setprio 2")
    if a.prio == 3: g("s_setprio 0")
    g(f"""
    s_cmp_lt_i32 s{sNU}, 2
    s_cbranch_scc1 L_issued
    s_add_u32 s{sT0}, s{sKM}, 0x1000
    s_mov_b32 m0, s{sT0}
    s_lshl_b32 s{sT1}, s{sT1}, 15
    s_add_u32 s{sT0}, s{sVM}, 0x1000
    """)
    dma(8, KD, sT1)
    g(f"s_mov_b32 m0, s{sT0}")
    g(f"s_nop 0")
    dma(12, VD, sT1)
    g("L_issued:")
    g("s_setprio 1" if a.prio == 3 else "s_setprio 0")
    stamp()
    g(f"""
    s_cmp_lg_u32 s{sFIRST}, 0
    s_cbranch_scc1 L_checked
    s_lshl_b32 s{sT1}, s{sB}, 3
    s_or_b32 s{sT1}, s{sT1}, 0x80000
    s_bfe_u32 s{sCB}, 0x{pack([cc[PERM.index(b)] for b in range(4)]):x}, s{sT1}
    s_bfe_u32 s{sNB}, 0x{pack([nn[PERM.index(b)] for b in range(4)]):x}, s{sT1}
    s_bfe_u32 s{sREM}, 0x{pack([nblk[PERM.index(b)] for b in range(4)]):x}, s{sT1}
    s_bfe_u32 s{sT1}, 0x{pack([pad[PERM.index(b)] for b in range(4)]):x}, s{sT1}
    s_lshl_b32 s{sREM}, s{sREM}, 4
    s_sub_u32 s{sREM}, s{sREM}, s{sT1}
    s_bfe_u32 s{sX0}, s{sX0}, 0x80001
    s_lshl_b32 s{sX0}, s{sX0}, 4
    s_sub_i32 s{sREM}, s{sREM}, s{sX0}
    s_mov_b32 s{sX1}, 0xdd800000
L_checked:
    v_add_u32 v{KR}, s{sKM}, v{KR}
    s_mov_b64 s[20:21], s[{sKA+10}:{sKA+11}]
    """)
    g(f"""
    s_lshl_b32 s{sEPO}, s{sHP}, 2
    s_add_u32 s{sEPO}, s{sEPO}, s{sB}
    s_lshl_b32 s{sEPO}, s{sEPO}, 7
    s_add_u32 s{sEPO}, s{sEPO}, {EPOFF + 12}
    s_load_dword s{sEP}, s[24:25], s{sEPO}
    v_lshrrev_b32 {v(vT0)}, 2, {v(vT2)}
    v_lshl_add_u32 {v(vT0)}, {v(vT4q)}, 2, {v(vT0)}
    v_and_b32 {v(vT3)}, 7, {v(vT0)}
    v_lshlrev_b32 {v(vT3)}, 5, {v(vT3)}
    v_lshl_add_u32 {v(vT3)}, {v(vT0)}, 8, {v(vT3)}
    v_lshl_add_u32 {v(vT3)}, {v(vG)}, 3, {v(vT3)}
    v_add_u32 v{VR}, s{sVM}, {v(vT3)}
    """)
    for i in range(1, 8):
        g(f"v_xor_b32 v{VR+i}, {i<<5}, v{VR}")
    for e in range(1, 4):
        g(f"v_xor_b32 v{KR+e}, {e<<6}, v{KR}")
    g(f"""
    v_lshl_add_u32 v{vSW}, {v(vL)}, 4, s{sKM}
    v_lshl_add_u32 v{vSW2}, {v(vL)}, 3, s{sKM}
    s_and_b32 s{sT0}, s{sI}, 1
    s_lshl_b32 s{sT0}, s{sT0}, 14
    v_lshl_add_u32 v{vSM}, {v(vL)}, 3, s{sT0}
    v_add_u32 v{vSM2}, 0x10000, v{vSM}
    s_and_b32 s{sT1}, s{sI}, 2
    s_lshl_b32 s{sT1}, s{sT1}, 9
    s_add_u32 s{sT0}, s{sT0}, s{sT1}
    v_lshl_add_u32 v{vSR}, {v(vL)}, 4, s{sT0}
    v_add_u32 v{vSR2}, 0x10000, v{vSR}
    v_mov_b32 {v(vNEG)}, s{sX1}
    s_mov_b32 s{sC}, 0x{f32bits(C):08x}
    v_mov_b32 {v(vM)}, 0xdd800000
    v_mul_f32 {v(vMC)}, s{sC}, {v(vM)}
    v_mov_b32 v{ONE}, 0x3f803f80
    v_mov_b32 v{ONE+1}, 0x3f803f80
    v_mov_b32 v{ML}, 0
    v_mov_b32 v{ML+1}, {v(vMC)}
    """)
    for i in range(8): g(f"v_mov_b32 v{ACC+i}, 0")
    for i in range(4): g(f"v_mov_b32 v{LA+i}, 0")
    for i in range(8): g(f"v_mov_b32 v{PA+i}, 0")
    g(f"""
    s_getreg_b32 s{sXC}, hwreg(HW_REG_XCC_ID, 0, 3)
    s_lshl_b32 s{sT0}, s{sHP}, 6
    s_add_u32 s{sT0}, s{sT0}, s{sCB}
    s_lshl_b32 s{sT0}, s{sT0}, 12
    s_add_u32 s4, s24, s{sT0}
    s_addc_u32 s5, s25, 0
    s_mov_b32 s6, 0x200000
    s_mov_b32 s7, 0x20000
    s_sub_u32 s{sCB}, s{sJ}, s{sCB}
    s_add_u32 s{sT0}, s{sCB}, s{sNB}
    s_and_b32 s{sCB}, s{sCB}, 15
    s_cmp_ge_u32 s{sI}, 4
    s_cselect_b32 s{sCB}, s{sT0}, s{sCB}
    s_lshr_b32 s{sDUAL}, s{sCB}, 4
    s_lshl_b32 s{sSTEP}, s{sNB}, 1
    s_and_b32 s{sPB}, s{sI}, 3
    s_lshl_b32 s{sPB}, s{sPB}, 10
    s_mov_b32 s{sREG}, 0
    s_mov_b32 s{sNXT}, 2
    v_lshrrev_b32 {v(vT0)}, 2, {v(vL)}
    v_lshlrev_b32 v{vPA}, 4, {v(vG)}
    v_lshl_add_u32 v{vPA}, {v(vT0)}, 12, v{vPA}
    v_cmp_gt_u32_e64 s[{sMK}:{sMK+1}], s{sNB}, {v(vT0)}
    v_add_u32 {v(vT0)}, 16, {v(vT0)}
    v_cmp_gt_u32_e64 s[{sMK+2}:{sMK+3}], s{sNB}, {v(vT0)}
    v_add_u32 {v(vT0)}, 16, {v(vT0)}
    v_cmp_gt_u32_e64 s[{sMK+4}:{sMK+5}], s{sNB}, {v(vT0)}
    v_add_u32 {v(vT0)}, 16, {v(vT0)}
    v_cmp_gt_u32_e64 s[{sMK+6}:{sMK+7}], s{sNB}, {v(vT0)}
    v_and_b32 {v(vOUT)}, 2, {v(vT4q)}
    v_and_b32 {v(vT0)}, 1, {v(vT4q)}
    v_lshl_add_u32 {v(vOUT)}, {v(vT0)}, 2, {v(vOUT)}
    v_lshl_add_u32 {v(vOUT)}, {v(vG)}, 8, {v(vOUT)}
    s_lshl_b32 s{sT0}, s{sH256}, 2
    s_add_u32 s{sQO}, s{sQO}, s{sT0}
    s_and_b32 s{sT0}, s{sI}, 2
    s_lshl_b32 s{sT0}, s{sT0}, 4
    s_add_u32 s{sQO}, s{sQO}, s{sT0}
    v_add_u32 {v(vOUT)}, s{sQO}, {v(vOUT)}
    v_lshlrev_b32 {v(vT4q)}, 2, {v(vT4q)}
    s_waitcnt lgkmcnt(0)
    s_add_u32 s{sEP}, s{sEP}, 0x9e3779b8
    s_andn2_b32 s{sTAG}, s{sEP}, 7
    s_or_b32 s{sTAG}, s{sTAG}, s{sXC}
    s_xor_b32 s{sXC}, s{sEP}, s{sTAG}
    v_mov_b32 v{G0+3}, s{sTAG}
    """)
    for r in range(4):
        g(f"""
        v_mov_b32 v{E+4*r}, 0
        v_mov_b32 v{E+4*r+1}, 0
        v_mov_b32 v{E+4*r+2}, 0xff7fffff
        v_mov_b32 v{E+4*r+3}, s{sTAG}
        """)
    g(f"""
    s_mov_b32 s{sFIRST}, 0
    s_branch L_task
    """)
    if a.pf: g("L_pad1:\ns_branch L_pad2")
    g(f"""
L_taskback:
    s_cmp_lt_i32 s{sNU}, 1
    s_cbranch_scc1 L_done
    """)
    if a.qdma:
        g(f"""
        v_lshlrev_b32 {v(vQO)}, 2, {v(vT4q)}
        v_lshl_add_u32 {v(vQO)}, {v(vG)}, 8, {v(vQO)}
        v_add_u32 {v(vQO)}, s{sQL}, {v(vQO)}
        s_waitcnt vmcnt(12)
        s_cmp_gt_i32 s{sNU}, 1
        s_cbranch_scc1 L_q
        s_waitcnt vmcnt(4)
L_q:
        """)
        for jj in range(4):
            g(f"ds_read_b128 {vr(Q+4*jj)}, {v(vQO)} offset:{64*jj}")
        g("s_branch L_kready")
    g(f"""
L_loop:
    s_waitcnt vmcnt(12)
    s_cmp_gt_i32 s{sNU}, 1
    s_cbranch_scc1 L_kready
    s_waitcnt vmcnt(4)
L_kready:
    """)
    if a.kst:
        g(f"""
        s_cmp_lg_u32 s{sNXT}, 2
        s_cbranch_scc1 L_nks
        s_memrealtime s[{sST+16}:{sST+17}]
        s_waitcnt lgkmcnt(0)
L_nks:
        """)
    for jj in range(4):
        g(f"ds_read_b128 {vr(KF+4*jj)}, v{KR+jj}")
    g(f"v_readlane_b32 s{sSO}, {v(vSO)}, s{sNXT}")
    g(f"s_mov_b32 m0, s{sKM}")
    g(f"s_lshl_b32 s{sSO}, s{sSO}, 15")
    for jj in range(4):
        g(f"s_waitcnt lgkmcnt({3-jj})")
        g(f"v_mfma_f32_16x16x32_bf16 {vr(S)}, {vr(KF+4*jj)}, {vr(Q+4*jj)}, " + ("0" if jj == 0 else vr(S)))
    g(f"""
    s_cmp_lt_i32 s{sNU}, 3
    s_cbranch_scc1 L_nok
    """)
    dma(8, KD, sSO)
    g("L_nok:")
    for jj in range(4):
        g(f"v_xor_b32 v{KR+jj}, 0x1000, v{KR+jj}")
    g(f"""
    s_xor_b32 s{sKM}, s{sKM}, 0x1000
    s_mov_b32 m0, s{sVM}
    s_nop 1
    s_cmp_ge_i32 s{sREM}, 16
    s_cbranch_scc1 L_nomask
    v_subrev_u32 {v(vT0)}, s{sREM}, {v(vT4q)}
    """)
    for e in range(4):
        g(f"v_cmp_gt_i32_e64 s[{sM+2*e}:{sM+2*e+1}], {-e}, {v(vT0)}")
    for e in range(4):
        g(f"v_cndmask_b32_e64 v{S+e}, {v(vNEG)}, v{S+e}, s[{sM+2*e}:{sM+2*e+1}]")
    g(f"""
L_nomask:
    v_max3_f32 {v(vM)}, v{S}, v{S+1}, {v(vM)}
    v_max3_f32 {v(vM)}, v{S+2}, v{S+3}, {v(vM)}
    v_mov_b32 {v(vT0)}, {v(vM)}
    s_nop 1
    v_permlane16_swap_b32 {v(vM)}, {v(vT0)}
    v_max_f32 {v(vM)}, {v(vM)}, {v(vT0)}
    v_mov_b32 {v(vT0)}, {v(vM)}
    s_nop 1
    v_permlane32_swap_b32 {v(vM)}, {v(vT0)}
    v_max_f32 {v(vM)}, {v(vM)}, {v(vT0)}
    v_mul_f32 v{ML+1}, s{sC}, {v(vM)}
    v_sub_f32 {v(vAL)}, {v(vMC)}, v{ML+1}
    """)
    for e in range(4):
        g(f"v_fma_f32 v{S+e}, v{S+e}, s{sC}, -v{ML+1}")
    g(f"v_exp_f32 {v(vAL)}, {v(vAL)}")
    for e in range(4):
        g(f"v_exp_f32 v{S+e}, v{S+e}")
    g(f"""
    v_mov_b32 {v(vMC)}, v{ML+1}
    v_cvt_pk_bf16_f32 v{PK}, v{S}, v{S+1}
    v_cvt_pk_bf16_f32 v{PK+1}, v{S+2}, v{S+3}
    v_mul_f32 v{LA}, {v(vAL)}, v{LA}
    """)
    for i in range(4):
        g(f"v_mul_f32 v{ACC+i}, {v(vAL)}, v{ACC+i}")
    g(f"v_mfma_f32_16x16x16_bf16 {vr(LA)}, v[{ONE}:{ONE+1}], v[{PK}:{PK+1}], {vr(LA)}")
    for i in range(4, 8):
        g(f"v_mul_f32 v{ACC+i}, {v(vAL)}, v{ACC+i}")
    for aa in range(4):
        for x in range(2):
            g(f"v_mov_b32_dpp v{PA+2*aa+x}, v{PK+x} quad_perm:[0,1,2,3] row_mask:0xf bank_mask:0x{1<<aa:x}")
    g(f"""
    v_mov_b32 v{ML}, v{LA}
    s_waitcnt vmcnt(12)
    s_cmp_gt_i32 s{sNU}, 2
    s_cbranch_scc1 L_vready
    s_waitcnt vmcnt(8)
    s_cmp_gt_i32 s{sNU}, 1
    s_cbranch_scc1 L_vready
    s_waitcnt vmcnt(0)
L_vready:
    """)
    order = [0, 2, 4, 6, 1, 3, 5, 7]
    for n_, i in enumerate(order):
        g(f"ds_read_b64_tr_b16 v[{VF+2*n_}:{VF+2*n_+1}], v{VR+i}")
    g(f"s_cmp_lt_i32 s{sNU}, 2")
    for n_ in range(4):
        uu, hh = n_ >> 1, n_ & 1
        g(f"s_waitcnt lgkmcnt({6-2*n_})")
        g(f"v_mfma_f32_16x16x32_bf16 {vr(ACC+4*uu)}, {vr(VF+4*n_)}, {vr(PA+4*hh)}, {vr(ACC+4*uu)}")
    g(f"""
    s_cbranch_scc1 L_last
    s_cmp_lt_i32 s{sNU}, 3
    s_cbranch_scc1 L_nov
    """)
    dma(12, VD, sSO)
    g("L_nov:")
    for i in range(8):
        g(f"v_xor_b32 v{VR+i}, 0x1000, v{VR+i}")
    g(f"""
    s_xor_b32 s{sVM}, s{sVM}, 0x1000
    s_sub_i32 s{sNU}, s{sNU}, 1
    s_sub_i32 s{sREM}, s{sREM}, 64
    s_add_u32 s{sNXT}, s{sNXT}, 1
    s_branch L_loop
    """)
    if a.pf: g("L_pad2:\ns_endpgm")
    g("L_last:")
    g("L_done:")
    stamp()
    X = KF
    Y = VF
    Z = Q
    g(f"""
    ds_write_b64 v{vSW2}, v[{ML}:{ML+1}] offset:2048
    s_mov_b32 s{sT0}, 0x42700000
    s_mov_b32 s{sHIM}, 0xffff0000
    ds_write_b128 v{vSW}, {vr(ACC)}
    s_mov_b32 s{sSPIN}, 0x10000
    s_mov_b32 s{sLOC}, 0x{0x80000000 + a.thr:x}
    s_mov_b32 s{sSENT}, 0
    ds_write_b128 v{vSW}, {vr(ACC+4)} offset:1024
    s_cmp_lg_u32 s{sDUAL}, 0
    s_waitcnt lgkmcnt(0)
    s_barrier
    s_cbranch_scc1 L_exit
    ds_read_b64 v[{Y}:{Y+1}], v{vSM} offset:2048
    ds_read_b64 v[{Y+2}:{Y+3}], v{vSM} offset:34816
    ds_read_b64 v[{Y+4}:{Y+5}], v{vSM2} offset:2048
    ds_read_b64 v[{Y+6}:{Y+7}], v{vSM2} offset:34816
    ds_read_b128 {vr(X)}, v{vSR}
    ds_read_b128 {vr(X+4)}, v{vSR} offset:32768
    ds_read_b128 {vr(X+8)}, v{vSR2}
    ds_read_b128 {vr(X+12)}, v{vSR2} offset:32768
    s_waitcnt lgkmcnt(4)
    """)
    stamp()
    g(f"""
    v_max3_f32 {v(vT0)}, v{Y+1}, v{Y+3}, v{Y+5}
    v_max_f32 {v(vT0)}, {v(vT0)}, v{Y+7}
    v_sub_f32 v{Y+1}, v{Y+1}, {v(vT0)}
    v_sub_f32 v{Y+3}, v{Y+3}, {v(vT0)}
    v_sub_f32 v{Y+5}, v{Y+5}, {v(vT0)}
    v_sub_f32 v{Y+7}, v{Y+7}, {v(vT0)}
    v_exp_f32 v{Y+1}, v{Y+1}
    v_exp_f32 v{Y+3}, v{Y+3}
    v_exp_f32 v{Y+5}, v{Y+5}
    v_exp_f32 v{Y+7}, v{Y+7}
    v_mul_f32 {v(vT1)}, v{Y}, v{Y+1}
    v_fmac_f32 {v(vT1)}, v{Y+2}, v{Y+3}
    v_fmac_f32 {v(vT1)}, v{Y+4}, v{Y+5}
    v_fmac_f32 {v(vT1)}, v{Y+6}, v{Y+7}
    v_max_f32 {v(vT1)}, 0x00800000, {v(vT1)}
    v_rcp_f32 v{Y}, {v(vT1)}
    v_log_f32 {v(vT1)}, {v(vT1)}
    s_cmp_ge_u32 s{sI}, 4
    s_cbranch_scc1 L_pub
    s_waitcnt lgkmcnt(0)
    v_pk_mul_f32 v[{Z}:{Z+1}], v[{X}:{X+1}], v[{Y}:{Y+1}] op_sel:[0,1] op_sel_hi:[1,1]
    v_pk_mul_f32 v[{Z+2}:{Z+3}], v[{X+2}:{X+3}], v[{Y}:{Y+1}] op_sel:[0,1] op_sel_hi:[1,1]
    """)
    for k in range(1, 4):
        g(f"v_pk_fma_f32 v[{Z}:{Z+1}], v[{X+4*k}:{X+4*k+1}], v[{Y+2*k}:{Y+2*k+1}], v[{Z}:{Z+1}] op_sel:[0,1,0] op_sel_hi:[1,1,1]")
        g(f"v_pk_fma_f32 v[{Z+2}:{Z+3}], v[{X+4*k+2}:{X+4*k+3}], v[{Y+2*k}:{Y+2*k+1}], v[{Z+2}:{Z+3}] op_sel:[0,1,0] op_sel_hi:[1,1,1]")
    g(f"""
    v_pk_mul_f32 v[{Z}:{Z+1}], v[{Z}:{Z+1}], v[{Y}:{Y+1}] op_sel:[0,0] op_sel_hi:[1,0]
    v_pk_mul_f32 v[{Z+2}:{Z+3}], v[{Z+2}:{Z+3}], v[{Y}:{Y+1}] op_sel:[0,0] op_sel_hi:[1,0]
    v_add_f32 v{G0+2}, {v(vT0)}, {v(vT1)}
    """)
    n0, n1, n2, n3 = E + 3, E + 7, E + 11, E + 15
    W = Y + 8
    U = X
    def acc_entry(k, first):
        b = E + 4 * k; w = W + k; sel = w & 1
        wp = f"v[{w-sel}:{w-sel+1}]"
        g(f"""
        v_lshlrev_b32 v{U}, 16, v{b}
        v_and_b32 v{U+1}, s{sHIM}, v{b}
        v_lshlrev_b32 v{U+2}, 16, v{b+1}
        v_and_b32 v{U+3}, s{sHIM}, v{b+1}
        """)
        if first:
            g(f"""
            v_pk_mul_f32 v[{Z}:{Z+1}], v[{U}:{U+1}], {wp} op_sel:[0,{sel}] op_sel_hi:[1,{sel}]
            v_pk_mul_f32 v[{Z+2}:{Z+3}], v[{U+2}:{U+3}], {wp} op_sel:[0,{sel}] op_sel_hi:[1,{sel}]
            """)
        else:
            g(f"""
            v_add_f32 v{Z+4}, v{W if k == 1 else Z+4}, v{w}
            v_pk_fma_f32 v[{Z}:{Z+1}], v[{U}:{U+1}], {wp}, v[{Z}:{Z+1}] op_sel:[0,{sel},0] op_sel_hi:[1,{sel},1]
            v_pk_fma_f32 v[{Z+2}:{Z+3}], v[{U+2}:{U+3}], {wp}, v[{Z+2}:{Z+3}] op_sel:[0,{sel},0] op_sel_hi:[1,{sel},1]
            """)
    g(f"""
    v_cvt_pk_bf16_f32 v{G0}, v{Z}, v{Z+1}
    v_cvt_pk_bf16_f32 v{G0+1}, v{Z+2}, v{Z+3}
    buffer_store_dwordx4 {vr(G0)}, {v(vWS)}, s[24:27], s{sOWN} offen
L_pub:
    v_add_f32 v{vR}, {v(vT0)}, {v(vT1)}
    v_add_f32 v{vHI}, s{sT0}, v{vR}
L_poll:
    s_mov_b64 exec, s[{sMK}:{sMK+1}]
    buffer_load_dwordx4 {vr(E)}, v{vPA}, s[4:7], s{sPO} offen sc1
    s_mov_b64 exec, s[{sMK+2}:{sMK+3}]
    s_cbranch_execz L_pe
    buffer_load_dwordx4 {vr(E+4)}, v{vPA}, s[4:7], s{sPO+1} offen sc1
    s_mov_b64 exec, s[{sMK+4}:{sMK+5}]
    s_cbranch_execnz L_pmore
L_pe:
    s_mov_b64 exec, -1
    s_sub_i32 s{sLOC}, s{sLOC}, 1
    s_cbranch_scc1 L_late
    v_add_u32 {v(vT2)}, s{sOO}, {v(vOUT)}
    s_waitcnt vmcnt(0) lgkmcnt(0)
    v_cmp_ne_u32 vcc, s{sTAG}, v{n0}
    v_cmp_ne_u32_e64 s[{sM}:{sM+1}], s{sTAG}, v{n1}
    v_max_f32 {v(vT0)}, v{E+2}, v{E+6}
    s_or_b64 vcc, vcc, s[{sM}:{sM+1}]
    s_cbranch_vccnz L_poll
    v_cmp_lt_f32 vcc, v{vHI}, {v(vT0)}
    s_cbranch_vccnz L_slow
L_got:
    """)
    if a.stamps and not a.kst: g(f"s_memrealtime s[{sST+16}:{sST+17}]")
    g(f"""
    v_sub_f32 v{W}, v{E+2}, v{vR}
    v_sub_f32 v{W+1}, v{E+6}, v{vR}
    v_exp_f32 v{W}, v{W}
    v_exp_f32 v{W+1}, v{W+1}
    """)
    acc_entry(0, True)
    acc_entry(1, False)
    g(f"""
L_sum:
    v_mov_b32 v{Z+5}, v{Z+4}
    v_permlane32_swap_b32 v{Z}, v{Z+1}
    s_nop 0
    v_permlane32_swap_b32 v{Z+2}, v{Z+3}
    v_permlane32_swap_b32 v{Z+4}, v{Z+5}
    v_add_f32 v{Z}, v{Z}, v{Z+1}
    v_add_f32 v{Z+4}, v{Z+4}, v{Z+5}
    v_add_f32 v{Z+2}, v{Z+2}, v{Z+3}
    v_mov_b32 v{Z+5}, v{Z+4}
    s_nop 0
    v_permlane16_swap_b32 v{Z}, v{Z+2}
    v_permlane16_swap_b32 v{Z+4}, v{Z+5}
    v_add_f32 v{Z}, v{Z}, v{Z+2}
    v_add_f32 v{Z+4}, v{Z+4}, v{Z+5}
    s_nop 0
    v_add_f32_dpp v{Z}, v{Z}, v{Z} row_ror:4 row_mask:0xf bank_mask:0xf
    v_add_f32_dpp v{Z+4}, v{Z+4}, v{Z+4} row_ror:4 row_mask:0xf bank_mask:0xf
    s_nop 0
    v_add_f32_dpp v{Z}, v{Z}, v{Z} row_ror:8 row_mask:0xf bank_mask:0xf
    v_add_f32_dpp v{Z+4}, v{Z+4}, v{Z+4} row_ror:8 row_mask:0xf bank_mask:0xf
    v_rcp_f32 v{Z+4}, v{Z+4}
    s_mov_b32 exec_lo, 0x000f000f
    s_mov_b32 exec_hi, 0x000f000f
    v_mul_f32 v{Z}, v{Z}, v{Z+4}
    v_cvt_pk_bf16_f32 v{Z}, v{Z}, v{Z}
    global_store_short {v(vT2)}, v{Z}, s[20:21]
    s_cmp_lg_u32 s{sPO}, s{sREG}
    s_cbranch_scc1 L_noep
    s_mov_b64 exec, 1
    v_mov_b32 {v(vT0)}, s{sEPO}
    v_mov_b32 {v(vT1)}, s{sEP}
    global_store_dword {v(vT0)}, {v(vT1)}, s[24:25]
L_noep:
    s_add_u32 s{sCB}, s{sCB}, s{sSTEP}
    s_cmp_lt_u32 s{sCB}, 16
    s_cbranch_scc1 L_task
L_exit:
    {"s_branch L_fin" if a.stamps else "s_endpgm"}
L_task:
    s_mov_b64 exec, -1
    s_lshl_b32 s{sPO}, s{sCB}, 6
    s_add_u32 s{sPO}, s{sPO}, s{sPB}
    s_add_u32 s{sPO}, s{sPO}, s{sREG}
    s_add_u32 s{sPO+1}, s{sPO}, 0x10000
    s_add_u32 s{sPO+2}, s{sPO}, 0x20000
    s_add_u32 s{sPO+3}, s{sPO}, 0x30000
    s_and_b32 s{sOO}, s{sCB}, 3
    s_lshl_b32 s{sOO}, s{sOO}, 6
    s_and_b32 s{sT1}, s{sCB}, 12
    s_lshl_b32 s{sT1}, s{sT1}, 1
    s_add_u32 s{sOO}, s{sOO}, s{sT1}
    s_cmp_eq_u32 s{sFIRST}, 0
    s_mov_b32 s{sFIRST}, 1
    s_cbranch_scc1 L_taskback
    s_branch L_poll
L_pmore:
    buffer_load_dwordx4 {vr(E+8)}, v{vPA}, s[4:7], s{sPO+2} offen sc1
    s_mov_b64 exec, s[{sMK+6}:{sMK+7}]
    s_cbranch_execz L_p3
    buffer_load_dwordx4 {vr(E+12)}, v{vPA}, s[4:7], s{sPO+3} offen sc1
L_p3:
    s_mov_b64 exec, -1
    s_sub_i32 s{sLOC}, s{sLOC}, 1
    s_cbranch_scc0 L_chk4
L_late:
    s_mov_b32 s{sLOC}, 0x80000000
    s_or_b32 s{sSENT}, s{sSENT}, 1
L_chk4:
    v_add_u32 {v(vT2)}, s{sOO}, {v(vOUT)}
    s_waitcnt vmcnt(0) lgkmcnt(0)
    v_cmp_ne_u32 vcc, s{sTAG}, v{n0}
    v_cmp_ne_u32_e64 s[{sM}:{sM+1}], s{sTAG}, v{n1}
    v_cmp_ne_u32_e64 s[{sM+2}:{sM+3}], s{sTAG}, v{n2}
    v_cmp_ne_u32_e64 s[{sM+4}:{sM+5}], s{sTAG}, v{n3}
    v_max3_f32 {v(vT0)}, v{E+2}, v{E+6}, v{E+10}
    v_max_f32 {v(vT0)}, {v(vT0)}, v{E+14}
    s_or_b64 vcc, vcc, s[{sM}:{sM+1}]
    s_or_b64 vcc, vcc, s[{sM+2}:{sM+3}]
    s_or_b64 vcc, vcc, s[{sM+4}:{sM+5}]
    s_cbranch_vccz L_slow
    s_sub_u32 s{sSPIN}, s{sSPIN}, 1
    s_cbranch_scc1 L_slow
    s_cmp_eq_u32 s{sSENT}, 0
    s_cbranch_scc1 L_poll
    s_cmp_eq_u32 s{sSENT}, 3
    s_cbranch_scc1 L_tog
    s_mov_b32 s{sSENT}, 3
    s_cmp_ge_u32 s{sI}, 4
    s_cbranch_scc1 L_tog
    v_xor_b32 v{G0+3}, s{sXC}, v{G0+3}
    s_add_u32 s{sOWN}, s{sOWN}, 0x100000
    buffer_store_dwordx4 {vr(G0)}, {v(vWS)}, s[24:27], s{sOWN} offen sc1
L_tog:
    s_xor_b32 s{sREG}, s{sREG}, 0x100000
    s_xor_b32 s{sPO}, s{sPO}, 0x100000
    s_xor_b32 s{sPO+1}, s{sPO+1}, 0x100000
    s_xor_b32 s{sPO+2}, s{sPO+2}, 0x100000
    s_xor_b32 s{sPO+3}, s{sPO+3}, 0x100000
    s_xor_b32 s{sTAG}, s{sTAG}, s{sXC}
    v_mov_b32 v{n0}, s{sTAG}
    v_mov_b32 v{n1}, s{sTAG}
    v_mov_b32 v{n2}, s{sTAG}
    v_mov_b32 v{n3}, s{sTAG}
    s_branch L_poll
L_slow:
    s_nop 0
    v_max_f32_dpp {v(vT0)}, {v(vT0)}, {v(vT0)} row_ror:4 row_mask:0xf bank_mask:0xf
    s_nop 1
    v_max_f32_dpp {v(vT0)}, {v(vT0)}, {v(vT0)} row_ror:8 row_mask:0xf bank_mask:0xf
    v_mov_b32 {v(vT1)}, {v(vT0)}
    s_nop 1
    v_permlane16_swap_b32 {v(vT0)}, {v(vT1)}
    v_max_f32 {v(vT0)}, {v(vT0)}, {v(vT1)}
    v_mov_b32 {v(vT1)}, {v(vT0)}
    s_nop 1
    v_permlane32_swap_b32 {v(vT0)}, {v(vT1)}
    v_max_f32 v{vR}, {v(vT0)}, {v(vT1)}
    s_cmp_eq_u64 s[{sMK+4}:{sMK+5}], 0
    s_cbranch_scc1 L_got
    """)
    for k in range(4): g(f"v_sub_f32 v{W+k}, v{E+4*k+2}, v{vR}")
    for k in range(4): g(f"v_exp_f32 v{W+k}, v{W+k}")
    for k in range(4): acc_entry(k, k == 0)
    g("s_branch L_sum")
    cl, nb, pf, cn, cb, x0, x1 = vT0, vT1, vT3, vSO, vPA, vM, vMC
    fq, n_, k_ = vAL, vNEG, vOUT
    g(f"""
L_general:
    s_mov_b64 s[12:13], s[{sKA+4}:{sKA+5}]
    s_mov_b32 s14, s10
    s_mov_b32 s15, 0x20000
    v_mov_b32 v{VD}, 0
    v_mov_b32 v{VD+1}, 0
    v_mov_b32 v{VD+2}, 0
    v_mov_b32 v{VD+3}, 0
    s_lshl_b32 s{sT0}, s{sI}, 10
    s_and_b32 s{sT0}, s{sT0}, 0xfff
    s_add_u32 s{sT0}, s{sT0}, {TBL}
    s_mov_b32 m0, s{sT0}
    v_mov_b32 {v(vT1)}, {v(vWS)}
    v_add_u32 {v(vT5)}, 1, {v(vL)}
    s_mov_b32 s{sT1}, 0x42700000
    s_waitcnt vmcnt(0)
    global_load_lds_dwordx4 {v(vT1)}, s[{sKA+6}:{sKA+7}]
    v_mov_b32 {v(cl)}, s{sM+PERM[0]}
    v_writelane_b32 {v(cl)}, s{sM+PERM[1]}, 1
    v_writelane_b32 {v(cl)}, s{sM+PERM[2]}, 2
    v_writelane_b32 {v(cl)}, s{sM+PERM[3]}, 3
    v_add_u32 {v(nb)}, -1, {v(cl)}
    v_ashrrev_i32 {v(nb)}, 4, {v(nb)}
    v_min_u32 {v(nb)}, 0xff, {v(nb)}
    v_add_u32 {v(nb)}, 1, {v(nb)}
    s_nop 1
    v_add_u32_dpp {v(pf)}, {v(nb)}, {v(nb)} row_shr:1 row_mask:0xf bank_mask:0xf bound_ctrl:0
    v_lshlrev_b32 {v(nb)}, 1, {v(nb)}
    v_cvt_f32_u32 {v(fq)}, {v(nb)}
    v_add_u32_dpp {v(pf)}, {v(pf)}, {v(pf)} row_shr:2 row_mask:0xf bank_mask:0xf bound_ctrl:0
    s_nop 1
    v_cvt_f32_u32_dpp {v(cn)}, {v(pf)} quad_perm:[3,3,3,3] row_mask:0xf bank_mask:0xf
    v_cvt_f32_u32 {v(pf)}, {v(pf)}
    v_rcp_f32 {v(cn)}, {v(cn)}
    v_mul_f32 {v(pf)}, s{sT1}, {v(pf)}
    v_fma_f32 {v(cn)}, {v(pf)}, {v(cn)}, 0.5
    v_cvt_u32_f32 {v(cn)}, {v(cn)}
    v_add_u32 {v(cn)}, {v(cn)}, {v(vT5)}
    v_cmp_ge_u32 vcc, s{sJ}, {v(cn)}
    s_nop 0
    v_mov_b32_dpp {v(cb)}, {v(cn)} row_shr:1 row_mask:0xf bank_mask:0xf bound_ctrl:0
    s_and_b32 s{sB}, vcc_lo, 7
    v_sub_u32 {v(n_)}, {v(cn)}, {v(cb)}
    v_sub_u32 {v(k_)}, s{sJ}, {v(cb)}
    v_cvt_f32_u32 {v(x0)}, {v(n_)}
    v_rcp_f32 {v(x0)}, {v(x0)}
    v_add_u32 {v(pf)}, 1, {v(k_)}
    v_mul_f32 {v(fq)}, {v(fq)}, {v(x0)}
    v_cvt_f32_u32 {v(x0)}, {v(k_)}
    v_cvt_f32_u32 {v(x1)}, {v(pf)}
    v_cmp_eq_u32 vcc, {v(pf)}, {v(n_)}
    v_mul_f32 {v(x0)}, {v(x0)}, {v(fq)}
    v_mul_f32 {v(x1)}, {v(x1)}, {v(fq)}
    v_cvt_u32_f32 {v(x0)}, {v(x0)}
    v_cvt_u32_f32 {v(x1)}, {v(x1)}
    s_bcnt1_i32_b32 s{sB}, s{sB}
    v_cndmask_b32 {v(x1)}, {v(x1)}, {v(nb)}, vcc
    v_readlane_b32 s{sX0}, {v(x0)}, s{sB}
    v_readlane_b32 s{sREM}, {v(cl)}, s{sB}
    v_readlane_b32 s{sX1}, {v(x1)}, s{sB}
    v_readlane_b32 s{sCB}, {v(cb)}, s{sB}
    v_readlane_b32 s{sNB}, {v(n_)}, s{sB}
    s_lshl_b32 s{sB}, s{sB}, 3
    s_lshr_b32 s{sB}, 0x{pack(PERM):x}, s{sB}
    s_and_b32 s{sB}, s{sB}, 3
    """)
    g(wave_range)
    g(f"""
    s_add_u32 s{sT0}, s{sT0}, {TBL}
    v_lshl_add_u32 {v(vT0)}, {v(vL)}, 4, s{sT0}
    s_waitcnt vmcnt(0)
    s_barrier
    ds_read_b32 {v(vSO)}, {v(vT0)}
    s_cmp_gt_i32 s{sREM}, 0
    s_cselect_b32 s{sX1}, 0xdd800000, 0
    """)
    g(wave_range2)
    g(f"""
    s_mov_b32 m0, s{sKM}
    s_mov_b32 s{sFIRST}, 1
    s_waitcnt lgkmcnt(0)
    s_cmp_lt_i32 s{sNU}, 1
    s_cbranch_scc1 L_issued
    s_branch L_have
    """)
    g("L_fin:")
    if a.amp:
        stamp()
        ia, ib = a.amp // 10, a.amp % 10
        g("s_waitcnt lgkmcnt(0)")
        if a.ampwg >= 0:
            g(f"""
            s_cmp_lg_u32 s2, {a.ampwg}
            s_cbranch_scc1 L_end
            s_cmp_lg_u32 s{sI}, 0
            s_cbranch_scc1 L_end
            """)
        g(f"""
        s_sub_u32 s6, s{sST+2*ib}, s{sST+2*ia}
        s_mul_i32 s6, s6, 10
        s_min_u32 s6, s6, 50000
        s_add_u32 s6, s6, s{sST+14}
L_spin:
        s_sleep 4
        s_memrealtime s[2:3]
        s_waitcnt lgkmcnt(0)
        s_sub_u32 s7, s2, s6
        s_cmp_lt_i32 s7, 0
        s_cbranch_scc1 L_spin
        """)
    elif a.stamps:
        stamp()
        g(f"""
        s_waitcnt lgkmcnt(0)
        s_lshl_b32 s6, s2, 4
        s_add_u32 s6, s6, s{sI}
        s_lshl_b32 s6, s6, 7
        s_add_u32 s6, s6, 0x1000000
        v_mov_b32 v14, s6
        s_getreg_b32 s6, hwreg(HW_REG_XCC_ID)
        s_mov_b64 exec, 1
        """)
        for k in range(9):
            g(f"v_mov_b32 v15, s{sST+2*k}")
            g(f"global_store_dword v14, v15, s[24:25] offset:{4*k}")
        g(f"""
        v_mov_b32 v15, s6
        global_store_dword v14, v15, s[24:25] offset:120
        s_sub_u32 s6, 0x{0x80000000 + a.thr:x}, s{sLOC}
        s_cmp_lg_u32 s{sSENT}, 0
        s_cselect_b32 s7, 1000, 0
        s_add_u32 s6, s6, s7
        v_mov_b32 v15, s6
        global_store_dword v14, v15, s[24:25] offset:124
        """)
    g("L_end:")
    g("s_endpgm")
    acc = (NV + 3) // 4 * 4
    out = HDR + f"; @launch grid=(256,1,1) block=({576 if a.pf else 512},1,1) lds={LDS}\n"
    out += DOC
    out += f""".amdgcn_target "amdgcn-amd-amdhsa--gfx950"
.text
.globl {NAME}_kernel
.p2align 8
.type {NAME}_kernel,@function
{NAME}_kernel:
""" + "".join(l + "\n" for l in g.text().split("\n") if l.strip()) + f""".section .rodata,"a"
.p2align 6
.amdhsa_kernel {NAME}_kernel
  .amdhsa_next_free_vgpr {NV}
  .amdhsa_next_free_sgpr 102
  .amdhsa_accum_offset {acc}
  .amdhsa_group_segment_fixed_size 0
  .amdhsa_kernarg_size 64
  .amdhsa_user_sgpr_count 2
  .amdhsa_user_sgpr_kernarg_segment_ptr 1
  .amdhsa_system_sgpr_workgroup_id_x 1
.end_amdhsa_kernel
"""
    return out

if __name__ == "__main__":
    p = argparse.ArgumentParser()
    for k, d in dict(stamps=0, pf=0, thr=24, kst=0, w9=0, amp=0, ampwg=0, forcegen=0, accord=1, tt=0, wp=0, qdma=1, hx=0, prio=1, sel=0, slp=0, wpos=0).items():
        p.add_argument("--" + k, type=int, default=d)
    p.add_argument("-o", default="-")
    a = p.parse_args()
    if a.amp: a.stamps = 1
    t = gen(a)
    for lab, c in [("L_have:", "first two units: K0, Q, V0, K1, V1"), ("L_issued:", "setup that is not needed before the first tile lands"),
                   ("L_loop:", "one unit per trip; vmcnt counts the younger tiles still in flight"), ("L_nomask:", "online softmax"),
                   ("L_vready:", "PV"), ("L_done:", "merge the four waves of each kv head through LDS"),
                   ("L_poll:", "poll the granules of this wave's output slice"),
                   ("L_sum:", "reduce over the siblings held in other lanes, normalise, store"),
                   ("L_task:", "offsets of an output slice"), ("L_general:", "context lengths other than the built-in ones")]:
        t = t.replace("\n" + lab + "\n", "\n" + lab + "    ; " + c + "\n")
    if a.o == "-": sys.stdout.write(t)
    else: open(a.o, "w").write(t)
```
